```python
import torch

def _softmax(x, axis=-1):
    return torch.softmax(x, dim=axis)
def _gelu(x):
    return torch.nn.functional.gelu(x, approximate="tanh")
def _silu(x):
    return torch.nn.functional.silu(x)
def _sigmoid(x):
    return torch.sigmoid(x)
def _layernorm(x, axis=-1, eps=1e-5):
    m = x.mean(dim=axis, keepdim=True)
    v = x.var(dim=axis, keepdim=True, unbiased=False)
    return (x - m) / torch.sqrt(v + eps)
def _scatter_add(tgt, idx, src, axis=0):
    return tgt.clone().index_add_(axis, idx, src)
def _segment_sum(src, seg, n):
    out = torch.zeros((n,) + src.shape[1:], dtype=src.dtype)
    return out.index_add_(0, seg, src)
def _pad(x, pw):
    flat = tuple(v for pair in reversed(pw) for v in pair)
    return torch.nn.functional.pad(x, flat)

kernel_name = 'sequential_preLN__softmax_full_mha__geglu_ffn__prompt'

def setup_inputs():

    _w = (lambda a: (lambda t: t.to(torch.bfloat16) if t.is_floating_point() else t)(torch.as_tensor(a)))
    def _A_setup():
        B, S, D = 1, 2048, 512
        return {
            "x": _w((lambda *s: torch.randn(*s, dtype=torch.bfloat16) * 0.05)(B, S, D)),
            "wqkv": _w((lambda *s: torch.randn(*s, dtype=torch.bfloat16) * 0.05)(D, 3 * D)),
            "wo": _w((lambda *s: torch.randn(*s, dtype=torch.bfloat16) * 0.05)(D, D)),
        }
    _A_in = _A_setup()

    def _B_setup():
        B, S, D, F = 1, 2048, 512, 1376
        return {
            "x": _w((lambda *s: torch.randn(*s, dtype=torch.bfloat16) * 0.05)(B, S, D)),
            "w_gate": _w((lambda *s: torch.randn(*s, dtype=torch.bfloat16) * 0.05)(D, F)),
            "w_up": _w((lambda *s: torch.randn(*s, dtype=torch.bfloat16) * 0.05)(D, F)),
            "w_down": _w((lambda *s: torch.randn(*s, dtype=torch.bfloat16) * 0.05)(F, D)),
        }
    _B_in = _B_setup()

    return {
        "A_x": _A_in["x"],
        "A_wqkv": _A_in["wqkv"],
        "A_wo": _A_in["wo"],
        "B_x": _B_in["x"],
        "B_w_gate": _B_in["w_gate"],
        "B_w_up": _B_in["w_up"],
        "B_w_down": _B_in["w_down"],
    }

def reference(A_x, A_wqkv, A_wo, B_x, B_w_gate, B_w_up, B_w_down):
    def _A_ref(x, wqkv, wo):
        B, S, D = x.shape
        H = 32; Dh = D // H
        qkv = (lambda x, *d: x.permute(*d))((x @ wqkv).reshape(B, S, 3, H, Dh), 2, 0, 3, 1, 4)
        q, k, v = qkv[0], qkv[1], qkv[2]
        scale = Dh ** -0.5
        scores = torch.einsum("bhqd,bhkd->bhqk", q, k) * scale
        p = _softmax(scores, axis=-1)
        o = torch.einsum("bhqk,bhkd->bhqd", p, v)
        return (lambda x, *d: x.permute(*d))(o, 0, 2, 1, 3).reshape(B, S, D) @ wo

    def _B_ref(x, w_gate, w_up, w_down):
        return (_gelu(x @ w_gate) * (x @ w_up)) @ w_down

    x = A_x
    h = x + _A_ref(_layernorm(x, axis=-1), A_wqkv, A_wo)
    h2 = h + _B_ref(_layernorm(h, axis=-1), B_w_gate, B_w_up, B_w_down)
    return h2
```

```python
import re, sys

TRANS = ("v_exp_", "v_log_", "v_rcp_", "v_rsq_", "v_sqrt_", "v_sin_", "v_cos_")

def parse_regs(tok):
    tok = tok.strip()
    tok = tok.replace("abs(", "").replace(")", "").lstrip("-").strip("|")
    m = re.fullmatch(r"([vsa])(\d+)", tok)
    if m:
        return [(m.group(1), int(m.group(2)))]
    m = re.fullmatch(r"([vsa])\[(\d+):(\d+)\]", tok)
    if m:
        return [(m.group(1), i) for i in range(int(m.group(2)), int(m.group(3)) + 1)]
    if tok == "vcc":
        return [("s", 106), ("s", 107)]
    if tok == "vcc_lo":
        return [("s", 106)]
    if tok == "vcc_hi":
        return [("s", 107)]
    if tok == "exec":
        return [("s", 126), ("s", 127)]
    if tok == "m0":
        return [("s", 124)]
    return []

class Ins:
    def __init__(self, text, lineno):
        self.text = text
        self.lineno = lineno
        parts = text.split(None, 1)
        self.op = parts[0]
        rest = parts[1] if len(parts) > 1 else ""
        ops = [o.strip() for o in re.split(r",(?![^\[]*\])", rest)] if rest else []
        self.mods = ""
        if ops:
            sp = ops[-1].split(None, 1)
            if len(sp) > 1:
                ops[-1] = sp[0]
                self.mods = sp[1]
        self.ops = ops
        op = self.op
        self.is_mfma = op.startswith("v_mfma") or op.startswith("v_smfmac")
        self.is_valu = op.startswith("v_") and not self.is_mfma
        self.is_trans = any(op.startswith(t) for t in TRANS)
        self.is_dot = op.startswith("v_dot")
        self.is_salu = op.startswith("s_")
        self.is_vmem = op.startswith(("buffer_", "global_", "flat_", "scratch_"))
        self.is_ds = op.startswith("ds_")
        self.is_lds_dma = self.is_vmem and (" lds" in (" " + self.mods) or "load_lds" in op)
        self.is_store = self.is_vmem and ("store" in op or "atomic" in op)
        self.writes, self.reads = [], []
        R = [parse_regs(o) for o in ops]
        if self.is_mfma:
            self.writes = R[0]
            self.srcA, self.srcB, self.srcC = R[1], R[2], (R[3] if len(R) > 3 else [])
            self.reads = self.srcA + self.srcB + self.srcC
            self.passes = 8 if "32x32x16" in op else 4 if "16x16x32" in op else 16
        elif self.is_valu:
            if op.startswith("v_cmp"):
                self.writes = R[0]
                self.reads = sum(R[1:], [])
                if op.startswith("v_cmpx"):
                    self.writes = self.writes + parse_regs("exec")
            elif op.startswith("v_permlane") and "swap" in op:
                self.writes = R[0] + R[1]
                self.reads = R[0] + R[1]
            elif op.startswith(("v_add_co", "v_sub_co", "v_addc_co", "v_subb_co", "v_subrev_co", "v_div_scale", "v_mad_u64")):
                self.writes = R[0] + R[1]
                self.reads = sum(R[2:], [])
            else:
                self.writes = R[0]
                self.reads = sum(R[1:], [])
                if op.startswith(("v_fmac", "v_dot2c", "v_pk_fmac", "v_mac")) or "sdwa" in op or "d16" in op:
                    self.reads = self.reads + R[0]
                if op.startswith("v_cndmask") and len(ops) == 3:
                    self.reads = self.reads + parse_regs("vcc")
        elif self.is_vmem:
            if self.is_lds_dma:
                self.reads = sum(R, []) + parse_regs("m0")
            elif self.is_store:
                self.reads = sum(R, [])
                if op.startswith("buffer_"):
                    self.data = R[0]
                else:
                    self.data = R[1]
            else:
                self.writes = R[0]
                self.reads = sum(R[1:], [])
        elif self.is_ds:
            if op.startswith(("ds_read", "ds_bpermute", "ds_permute", "ds_swizzle")):
                self.writes = R[0]
                self.reads = sum(R[1:], [])
            else:
                self.reads = sum(R, [])
        elif self.is_salu:
            if op.startswith(("s_cmp", "s_cbranch", "s_branch", "s_waitcnt", "s_barrier", "s_nop", "s_endpgm", "s_setprio", "s_sleep")):
                self.reads = sum(R, [])
            else:
                self.writes = R[0] if R else []
                self.reads = sum(R[1:], [])
                if "saveexec" in op:
                    self.writes = self.writes + parse_regs("exec")
        self.wset = set(self.writes)
        self.rset = set(self.reads)
        self.states = 1
        if op == "s_nop":
            self.states = int(ops[0], 0) + 1

def required(p, c):
    need = 0
    why = ""
    def upd(n, w):
        nonlocal need, why
        if n > need:
            need, why = n, w
    vw = {r for r in p.wset if r[0] in "va"}
    sw = {r for r in p.wset if r[0] == "s"}
    if p.is_valu:
        if c.is_mfma and vw & c.rset:
            upd(3 if p.is_dot else 2, "valu->mfma src")
        if p.is_trans and c.is_valu and not c.is_trans and vw & c.rset:
            upd(1, "trans->valu")
        if p.is_trans and (c.is_vmem or c.is_ds or c.is_mfma) and vw & c.rset:
            upd(2 if c.is_mfma else 1, "trans->mem")
        if c.op.startswith(("v_readlane", "v_readfirstlane")) and vw & c.rset:
            upd(1, "valu->readlane")
        if c.op.startswith("v_permlane") and vw & c.rset:
            upd(2, "valu->permlane")
        if ("dpp" in c.op or "row_" in c.mods or "quad_perm" in c.mods) and vw & c.rset:
            upd(2, "valu->dpp")
        if c.is_vmem and sw & c.rset:
            upd(5, "valu sgpr->vmem")
        if c.is_valu and sw & c.rset:
            upd(2, "valu sgpr->valu")
        if c.op.startswith(("v_readlane", "v_writelane")) and sw & c.rset:
            upd(4, "valu sgpr->lane select")
        if c.is_salu and sw & c.rset:
            upd(1, "valu sgpr->salu (pad)")
        if p.is_dot:
            if (c.is_valu or c.is_vmem or c.is_ds) and (vw & (c.rset | c.wset)):
                same_c = c.op == p.op and c.is_dot and not (vw & set(sum([parse_regs(o) for o in c.ops[1:3]], [])))
                if not same_c:
                    upd(3, "dot->other")
        if ("s", 126) in sw and (c.is_mfma):
            upd(4, "valu exec->mfma")
        if "sdwa" in p.op or "op_sel" in p.mods:
            if c.is_valu and vw & (c.rset | c.wset):
                upd(1, "sdwa/opsel->valu")
    if p.is_mfma:
        n = p.passes
        tab_other = {2: 5, 4: 8, 8: 12, 16: 20}[n]
        tab_c = {2: 4, 4: 6, 8: 10, 16: 18}[n]
        if c.is_mfma:
            if vw & (set(c.srcA) | set(c.srcB)):
                upd(tab_other, "mfma->mfma AB")
            if vw & set(c.srcC):
                if not (list(c.srcC) == list(p.writes) and c.passes == p.passes):
                    upd(tab_c, "mfma->mfma C overlap")
            elif vw & c.wset:
                upd(tab_c, "mfma->mfma WAW (pad)")
        elif (c.is_valu or c.is_vmem or c.is_ds) and (vw & (c.rset | c.wset)):
            upd(tab_other, "mfma->valu/mem")
        if c.is_valu and set(p.srcC) & c.wset:
            upd({2: 1, 4: 3, 8: 7, 16: 15}[n], "mfma C WAR")
        if (c.is_ds or c.is_vmem) and set(p.srcC) & c.wset:
            upd({2: 1, 4: 3, 8: 7, 16: 15}[n], "mfma C WAR(mem)")
    if p.is_salu and ("s", 124) in sw and (c.is_lds_dma or "addtid" in c.op):
        upd(1, "m0->dma")
    if p.is_store and len(getattr(p, "data", [])) >= 3:
        if set(p.data) & c.wset:
            upd(2 if c.is_valu else 1, "store data WAR")
    if p.is_ds and p.op.startswith("ds_write") and False:
        pass
    return need, why

def check(asm, verbose=True):
    lines = asm.splitlines()
    ins = []
    labels = {}
    for i, ln in enumerate(lines, 1):
        s = ln.split(";")[0].strip()
        if not s or s.startswith("."):
            continue
        m = re.match(r"^([\w.$]+):\s*(.*)$", s)
        if m:
            labels[m.group(1)] = len(ins)
            s = m.group(2).strip()
            if not s:
                continue
        if re.match(r"^(amdhsa|\-|\{|---|\.\.\.)", s):
            continue
        ins.append(Ins(s, i))
    n = len(ins)
    preds = [[] for _ in range(n + 1)]
    for i, x in enumerate(ins):
        if x.op == "s_endpgm":
            continue
        if x.op == "s_branch":
            preds[labels[x.ops[0]]].append(i)
            continue
        if x.op.startswith("s_cbranch"):
            preds[labels[x.ops[0]]].append(i)
        preds[i + 1].append(i)
    bad = []
    for ci, c in enumerate(ins):
        stack = [(p, 0) for p in preds[ci]]
        seen = {}
        while stack:
            pi, dist = stack.pop()
            if dist >= 20:
                continue
            if pi in seen and seen[pi] <= dist:
                continue
            seen[pi] = dist
            p = ins[pi]
            need, why = required(p, c)
            if need > dist:
                bad.append((c.lineno, p.lineno, need, dist, why, p.text, c.text))
            for q in preds[pi]:
                stack.append((q, dist + p.states))
    if verbose:
        for b in bad:
            print(f"HAZARD line {b[0]} (producer line {b[1]}): need {b[2]} have {b[3]} [{b[4]}]\n    P: {b[5]}\n    C: {b[6]}")
    return bad

if __name__ == "__main__":
    b = check(open(sys.argv[1]).read())
    print(len(b), "hazards")
```

```python
import sys, struct
sys.path.insert(0, "gen")
import hazard

NAME = "sequential_preLN__softmax_full_mha__geglu_ffn__prompt"

WS_Q   = 0x000000
WS_KV  = 0x200000
WS_O   = 0x600000
WS_H   = 0x800000
WS_ST  = 0xA00000
WS_CS  = 0xA40000
WS_WO  = 0xB00000
WS_WD  = 0xC00000
WS_WGU = 0xE00000
WS_A   = 0x1200000
WS_END = 0x1800000
OOB    = 0x7FFF0000

def f32(x):
    return "0x%08x" % struct.unpack("<I", struct.pack("<f", x))[0]

class K:
    def __init__(self, name):
        self.name = name
        self.lines = []
        self.nv = 0
        self.maxs = 0
    def e(self, s):
        self.lines.append("    " + s)
    def c(self, s):
        self.lines.append("    ; " + s)
    def label(self, l):
        self.lines.append(f"{self.name}_{l}:")
    def L(self, l):
        return f"{self.name}_{l}"
    def v(self, n=1, align=None):
        if align is None:
            align = 1 if n == 1 else (2 if n == 2 else 4)
        self.nv = (self.nv + align - 1) // align * align
        r = self.nv
        self.nv += n
        return r
    def text(self, nsgpr=64):
        nv = max(self.nv, 8)
        acc = (nv + 3) // 4 * 4
        head = f""".text
.globl {self.name}
.p2align 8
.type {self.name},@function
{self.name}:
"""
        tail = f"""
.section .rodata,"a"
.p2align 6
.amdhsa_kernel {self.name}
  .amdhsa_next_free_vgpr {nv}
  .amdhsa_next_free_sgpr {nsgpr}
  .amdhsa_accum_offset {acc}
  .amdhsa_group_segment_fixed_size 0
  .amdhsa_kernarg_size 80
  .amdhsa_user_sgpr_count 2
  .amdhsa_user_sgpr_kernarg_segment_ptr 1
  .amdhsa_system_sgpr_workgroup_id_x 1
.end_amdhsa_kernel
"""
        return head + "\n".join(self.lines) + tail

def vr(b, n):
    return f"v[{b}:{b+n-1}]" if n > 1 else f"v{b}"
def sr(b, n):
    return f"s[{b}:{b+n-1}]" if n > 1 else f"s{b}"

def srd(k, d, base, nbytes):
    k.e(f"s_mov_b32 s{d}, s{base}")
    k.e(f"s_mov_b32 s{d+1}, s{base+1}")
    k.e(f"s_mov_b32 s{d+2}, {hex(nbytes)}")
    k.e(f"s_mov_b32 s{d+3}, 0x00020000")

def mfma32(k, d, a, b, c=None):
    cs = vr(d, 16) if c is None else (c if isinstance(c, str) else vr(c, 16))
    k.e(f"v_mfma_f32_32x32x16_bf16 {vr(d,16)}, {vr(a,4)}, {vr(b,4)}, {cs}")
def mfma16(k, d, a, b):
    k.e(f"v_mfma_f32_16x16x32_bf16 {vr(d,4)}, {vr(a,4)}, {vr(b,4)}, {vr(d,4)}")

def interleave(k, mains, fillers, per):
    fi = 0
    for m in mains:
        k.e(m)
        for _ in range(per):
            if fi < len(fillers):
                k.e(fillers[fi]); fi += 1
    while fi < len(fillers):
        k.e(fillers[fi]); fi += 1

def tile_map_32x8(k, s_tm, s_tn, t0, t1):
    k.e(f"s_and_b32 s{s_tm}, s2, 6")
    k.e(f"s_lshl_b32 s{s_tm}, s{s_tm}, 2")
    k.e(f"s_bfe_u32 s{t0}, s2, 0x30003")
    k.e(f"s_add_u32 s{s_tm}, s{s_tm}, s{t0}")
    k.e(f"s_and_b32 s{s_tn}, s2, 1")
    k.e(f"s_lshl_b32 s{s_tn}, s{s_tn}, 2")
    k.e(f"s_lshr_b32 s{t1}, s2, 6")
    k.e(f"s_add_u32 s{s_tn}, s{s_tn}, s{t1}")

def ln_finish(k, vS, vQ, vNegM, vRstd, t0, t1):
    k.e(f"v_mul_f32 v{vS}, {f32(1.0/512)}, v{vS}")
    k.e(f"v_mul_f32 v{vQ}, {f32(1.0/512)}, v{vQ}")
    k.e(f"v_fma_f32 v{vQ}, -v{vS}, v{vS}, v{vQ}")
    k.e(f"v_max_f32 v{vQ}, 0, v{vQ}")
    k.e(f"v_cvt_pk_bf16_f32 v{vNegM}, -v{vS}, -v{vS}")
    k.e(f"v_cvt_pk_bf16_f32 v{t0}, v{vQ}, v{vQ}")
    k.e(f"v_lshlrev_b32 v{t0}, 16, v{t0}")
    k.e(f"v_add_f32 v{t0}, {f32(1e-5)}, v{t0}")
    k.e(f"v_cvt_pk_bf16_f32 v{t0}, v{t0}, v{t0}")
    k.e(f"v_lshlrev_b32 v{t0}, 16, v{t0}")
    k.e(f"v_sqrt_f32 v{t0}, v{t0}")
    k.e("s_nop 0")
    k.e(f"v_cvt_pk_bf16_f32 v{t0}, v{t0}, v{t0}")
    k.e(f"v_lshlrev_b32 v{t0}, 16, v{t0}")
    k.e(f"v_rcp_f32 v{vRstd}, v{t0}")
    k.e("s_nop 0")

def split2(k, vcs, vdst, t0):
    k.e(f"v_cvt_pk_bf16_f32 v{t0}, v{vcs}, v{vcs}")
    k.e(f"v_lshlrev_b32 v{t0}, 16, v{t0}")
    k.e(f"v_sub_f32 v{t0}, v{vcs}, v{t0}")
    k.e(f"v_cvt_pk_bf16_f32 v{vdst}, v{vcs}, v{t0}")

def gen_k1():
    k = K("k1_qkv_kernel")
    XP = 1040
    WBASE = 64 * XP
    NSLOT = 7
    SLOT = 12288
    MISC = WBASE + NSLOT * SLOT
    MISC2 = MISC + 1024
    MISC3 = MISC2 + 4096
    LDS = MISC3 + 1024
    k.lds = LDS
    vl = k.v(); vt0 = k.v(); vt1 = k.v(); vt2 = k.v()
    vL16 = k.v(); vWg = k.v(); vXA = k.v(); vXB = k.v(); vWbA = k.v(); vWbB = k.v(); vWA = k.v(); vWB = k.v()
    vSum = k.v(); vSq = k.v(); vSum2 = k.v(); vSq2 = k.v()
    sel = k.v(4)
    cs = [k.v(4) for _ in range(3)]
    acc = [k.v(16) for _ in range(3)]
    sets = []
    for i in range(2):
        sets.append(dict(XA=k.v(4), XB=k.v(4), WA=[k.v(4) for _ in range(3)], WB=[k.v(4) for _ in range(3)]))
    tl = [k.v() for _ in range(4)]
    assert vl == 0
    k.e("s_cmp_ge_u32 s2, 256")
    k.e(f"s_cbranch_scc1 {k.L('end')}")
    k.e("s_load_dwordx4 s[4:7], s[0:1], 0")
    k.e("s_load_dwordx2 s[8:9], s[0:1], 72")
    k.e(f"v_lshrrev_b32 v{vt0}, 6, v0")
    k.e("v_and_b32 v0, 63, v0")
    k.e(f"v_readfirstlane_b32 s24, v{vt0}")
    tile_map_32x8(k, 25, 26, 27, 28)
    k.e(f"v_lshlrev_b32 v{vL16}, 4, v0")
    k.e(f"v_bfe_u32 v{vt0}, v0, 2, 3")
    k.e(f"v_mul_u32_u24 v{vWg}, 3072, v{vt0}")
    k.e(f"v_lshrrev_b32 v{vt1}, 5, v0")
    k.e(f"v_lshl_add_u32 v{vWg}, v{vt1}, 6, v{vWg}")
    k.e(f"v_and_b32 v{vt0}, 3, v0")
    k.e(f"v_lshl_add_u32 v{vWg}, v{vt0}, 4, v{vWg}")
    k.e("s_lshl_b32 s29, s25, 16")
    k.e("s_lshl_b32 s27, s24, 14")
    k.e("s_add_u32 s29, s29, s27")
    k.e(f"s_mul_i32 s30, s24, {16*XP}")
    k.e(f"s_mul_i32 s31, s24, {8*3072}")
    k.e("s_lshl_b32 s27, s26, 7")
    k.e("s_add_u32 s31, s31, s27")
    k.e(f"s_mul_i32 s32, s24, 3072")
    k.e(f"s_add_u32 s32, s32, {WBASE}")
    k.e("s_waitcnt lgkmcnt(0)")
    srd(k, 12, 4, 2048 * 1024)
    srd(k, 16, 6, 512 * 3072)
    srd(k, 20, 8, WS_END)
    for j in range(16):
        k.e(f"s_add_u32 m0, s30, {j*16 + (j//4)*4096}")
        if j % 4 == 0 and j > 0:
            k.e("s_add_u32 s29, s29, 4096")
        else:
            k.e("s_nop 0")
        k.e(f"buffer_load_dwordx4 v{vL16}, s[12:15], s29 offen offset:{(j%4)*1024} lds")
    for s in range(NSLOT - 1):
        k.e(f"s_add_u32 m0, s32, {s*SLOT}")
        k.e("s_nop 0")
        for g in range(3):
            k.e(f"buffer_load_dwordx4 v{vWg}, s[16:19], s31 offen offset:{g*1024} lds")
        k.e(f"s_add_u32 s31, s31, {32*3072}")
    k.e("s_and_b32 s33, s24, 1")
    k.e("s_lshr_b32 s34, s24, 1")
    k.e("s_xor_b32 s35, s33, s34")
    k.e(f"v_and_b32 v{vt0}, 31, v0")
    k.e(f"v_mul_u32_u24 v{vXA}, {XP}, v{vt0}")
    k.e(f"v_lshl_add_u32 v{vXA}, v{vt1}, 4, v{vXA}")
    k.e(f"s_mul_i32 s27, s33, {32*XP}")
    k.e("s_lshl_b32 s28, s35, 5")
    k.e("s_add_u32 s36, s27, s28")
    k.e("s_xor_b32 s28, s28, 32")
    k.e("s_add_u32 s37, s27, s28")
    k.e(f"v_add_u32 v{vXB}, s37, v{vXA}")
    k.e(f"v_add_u32 v{vXA}, s36, v{vXA}")
    k.e(f"v_mul_u32_u24 v{vWbA}, 3072, v{vt1}")
    k.e(f"v_bfe_u32 v{vt0}, v0, 2, 2")
    k.e(f"v_lshl_add_u32 v{vWbA}, v{vt0}, 6, v{vWbA}")
    k.e(f"v_bfe_u32 v{vt0}, v0, 4, 1")
    k.e(f"v_lshl_add_u32 v{vWbA}, v{vt0}, 5, v{vWbA}")
    k.e(f"v_and_b32 v{vt2}, 3, v0")
    k.e(f"v_lshl_add_u32 v{vWbA}, v{vt2}, 3, v{vWbA}")
    k.e("s_lshl_b32 s27, s34, 9")
    k.e(f"s_add_u32 s27, s27, {WBASE}")
    k.e("s_mul_i32 s28, s35, 6144")
    k.e("s_add_u32 s36, s27, s28")
    k.e("s_sub_u32 s28, 6144, s28")
    k.e("s_add_u32 s37, s27, s28")
    k.e(f"v_add_u32 v{vWbB}, s37, v{vWbA}")
    k.e(f"v_add_u32 v{vWbA}, s36, v{vWbA}")
    k.e(f"v_bfe_u32 v{vt2}, v0, 2, 1")
    k.e(f"v_cmp_eq_u32 vcc, v{vt0}, v{vt2}")
    k.e(f"v_mov_b32 v{vt2}, 0x3f803f80")
    k.e("s_nop 0")
    k.e(f"v_cndmask_b32 v{sel}, 0, v{vt2}, vcc")
    for i in range(1, 4):
        k.e(f"v_mov_b32 v{sel+i}, v{sel}")
    zs = [vSum, vSq, vSum2, vSq2] + [c + i for c in cs for i in range(4)] + [a + i for a in acc for i in range(16)]
    zs += list(range(sets[1]['XA'], sets[1]['XA'] + 32))
    for z in zs:
        k.e(f"v_mov_b32 v{z}, 0")
    k.e("s_mov_b32 s38, 0")
    k.e(f"s_mov_b32 s39, {(NSLOT-1)*SLOT}")
    k.e("s_mov_b32 s40, 8")
    k.e("s_mov_b32 s41, 0xffff0000")

    def compute_lists(S):
        mains = []
        mains.append(f"v_mfma_f32_32x32x16_bf16 {vr(acc[0],16)}, {vr(S['WA'][0],4)}, {vr(S['XA'],4)}, {vr(acc[0],16)}")
        mains.append(f"v_mfma_f32_32x32x16_bf16 {vr(acc[1],16)}, {vr(S['WA'][1],4)}, {vr(S['XA'],4)}, {vr(acc[1],16)}")
        mains.append(f"v_mfma_f32_32x32x16_bf16 {vr(acc[2],16)}, {vr(S['XA'],4)}, {vr(S['WA'][2],4)}, {vr(acc[2],16)}")
        mains.append(f"v_mfma_f32_32x32x16_bf16 {vr(acc[0],16)}, {vr(S['WB'][0],4)}, {vr(S['XB'],4)}, {vr(acc[0],16)}")
        mains.append(f"v_mfma_f32_32x32x16_bf16 {vr(acc[1],16)}, {vr(S['WB'][1],4)}, {vr(S['XB'],4)}, {vr(acc[1],16)}")
        mains.append(f"v_mfma_f32_32x32x16_bf16 {vr(acc[2],16)}, {vr(S['XB'],4)}, {vr(S['WB'][2],4)}, {vr(acc[2],16)}")
        small = [f"v_mfma_f32_16x16x32_bf16 {vr(cs[g],4)}, {vr(sel,4)}, {vr(S['WA'][g],4)}, {vr(cs[g],4)}" for g in range(3)]
        valu = []
        for i in range(4):
            a, b = tl[(2*i) % 4], tl[(2*i+1) % 4]
            x = S['XA'] + i
            valu += [f"v_lshlrev_b32 v{a}, 16, v{x}", f"v_and_b32 v{b}, s41, v{x}",
                     f"v_fmac_f32 v{vSq}, v{a}, v{a}", f"v_fmac_f32 v{vSq2}, v{b}, v{b}",
                     f"v_add_f32 v{vSum}, v{vSum}, v{a}", f"v_add_f32 v{vSum2}, v{vSum2}, v{b}"]
        return mains, small, valu

    def reads(S, xoff):
        r = [f"ds_read_b128 {vr(S['XA'],4)}, v{vXA} offset:{xoff}"]
        for g in range(3):
            r.append(f"ds_read_b64_tr_b16 {vr(S['WA'][g],2)}, v{vWA} offset:{g*1024}")
            r.append(f"ds_read_b64_tr_b16 {vr(S['WA'][g]+2,2)}, v{vWA} offset:{g*1024+256}")
        r.append(f"ds_read_b128 {vr(S['XB'],4)}, v{vXB} offset:{xoff}")
        for g in range(3):
            r.append(f"ds_read_b64_tr_b16 {vr(S['WB'][g],2)}, v{vWB} offset:{g*1024}")
            r.append(f"ds_read_b64_tr_b16 {vr(S['WB'][g]+2,2)}, v{vWB} offset:{g*1024+256}")
        return r

    k.label("loop")
    for half in range(2):
        Srd, Scp = sets[half], sets[1 - half]
        k.e(f"v_add_u32 v{vWA}, s38, v{vWbA}")
        k.e(f"v_add_u32 v{vWB}, s38, v{vWbB}")
        k.e("s_add_u32 m0, s32, s39")
        k.e(f"s_waitcnt vmcnt({3*(NSLOT-2)}) lgkmcnt(0)")
        k.e("s_barrier")
        mains, small, valu = compute_lists(Scp)
        rd = reads(Srd, half * 64)
        dma = [f"buffer_load_dwordx4 v{vWg}, s[16:19], s31 offen offset:{g*1024} lds" for g in range(3)]
        sal = [f"s_add_u32 s31, s31, {32*3072}",
               f"s_add_u32 s38, s38, {SLOT}", f"s_cmp_eq_u32 s38, {NSLOT*SLOT}", "s_cselect_b32 s38, 0, s38",
               f"s_add_u32 s39, s39, {SLOT}", f"s_cmp_eq_u32 s39, {NSLOT*SLOT}", "s_cselect_b32 s39, 0, s39"]
        fill = rd[:7] + dma + rd[7:] + sal
        merged = []
        vi = 0
        for f in fill:
            merged.append(f)
            if vi < len(valu):
                merged.append(valu[vi]); vi += 1
        merged += valu[vi:]
        interleave(k, mains + small, merged, 6)
    k.e(f"v_add_u32 v{vXA}, 128, v{vXA}")
    k.e(f"v_add_u32 v{vXB}, 128, v{vXB}")
    k.e("s_sub_u32 s40, s40, 1")
    k.e("s_cmp_lg_u32 s40, 0")
    k.e(f"s_cbranch_scc1 {k.L('loop')}")
    k.e("s_waitcnt lgkmcnt(0)")
    mains, small, valu = compute_lists(sets[1])
    interleave(k, small + mains, valu, 3)
    k.e(f"v_add_f32 v{vSum}, v{vSum}, v{vSum2}")
    k.e(f"v_add_f32 v{vSq}, v{vSq}, v{vSq2}")
    k.e("s_lshl_b32 s27, s24, 8")
    k.e(f"s_add_u32 s27, s27, {MISC}")
    k.e(f"v_lshl_add_u32 v{vt0}, v0, 2, s27")
    k.e(f"v_permlane32_swap_b32 v{vSum}, v{vSq}")
    k.e(f"v_add_f32 v{vSum}, v{vSum}, v{vSq}")
    k.e(f"ds_write_b32 v{vt0}, v{vSum}")
    T = sets[0]['XA']
    for g in range(3):
        k.e(f"v_mov_b32 v{T+g}, v{cs[g]}")
    k.e("s_lshl_b32 s27, s24, 10")
    k.e(f"s_add_u32 s27, s27, {MISC2}")
    k.e(f"v_add_u32 v{vt1}, s27, v{vL16}")
    k.e(f"ds_write_b128 v{vt1}, {vr(T,4)}")
    k.e(f"v_and_b32 v{vt2}, 31, v0")
    k.e("s_lshl_b32 s27, s33, 8")
    k.e(f"s_add_u32 s27, s27, {MISC}")
    k.e(f"v_lshl_add_u32 v{vt2}, v{vt2}, 2, s27")
    k.e(f"v_xor_b32 v{vt1}, 1024, v{vt1}")
    k.e("s_waitcnt lgkmcnt(0)")
    k.e("s_barrier")
    A = sets[0]['XB']; B = sets[0]['WA'][0]
    k.e(f"ds_read2_b32 {vr(A,2)}, v{vt2} offset0:0 offset1:32")
    k.e(f"ds_read2_b32 {vr(A+2,2)}, v{vt2} offset0:128 offset1:160")
    k.e(f"ds_read_b128 {vr(B,4)}, v{vt1}")
    BP = sets[1]['XA']; AP = [sets[1]['WA'][g] for g in range(3)]
    for r in [BP+1, BP+2, BP+3] + [a + i for a in AP for i in (1, 2, 3)]:
        k.e(f"v_mov_b32 v{r}, 0")
    k.e("s_waitcnt lgkmcnt(1)")
    k.e(f"v_add_f32 v{vSum}, v{A}, v{A+2}")
    k.e(f"v_add_f32 v{vSq}, v{A+1}, v{A+3}")
    vR = vSum2
    ln_finish(k, vSum, vSq, BP, vR, vt2, vt1)
    k.e(f"v_add_u32 v{vt0}, {MISC3-MISC}, v{vt0}")
    k.e(f"ds_write_b32 v{vt0}, v{vR}")
    k.e("v_cmp_gt_u32 vcc, 32, v0")
    k.e("s_waitcnt lgkmcnt(1)")
    for g in range(3):
        k.e(f"v_add_f32 v{T+g}, v{T+g}, v{B+g}")
    k.e(f"v_cndmask_b32 v{BP}, 0, v{BP}, vcc")
    for g in range(3):
        split2(k, T + g, AP[g], vt2)
    k.e(f"v_lshrrev_b32 v{vt1}, 5, v0")
    k.e("s_lshl_b32 s27, s24, 8")
    k.e(f"s_add_u32 s27, s27, {MISC3}")
    k.e(f"v_lshl_add_u32 v{vt1}, v{vt1}, 4, s27")
    RR = sets[0]['WA'][0]
    k.e("s_waitcnt lgkmcnt(0)")
    for j in range(4):
        k.e(f"ds_read_b128 {vr(RR+4*j,4)}, v{vt1} offset:{j*32}")
    mfma32(k, acc[0], AP[0], BP)
    mfma32(k, acc[1], AP[1], BP)
    mfma32(k, acc[2], BP, AP[2])
    k.e("s_lshl_b32 s27, s26, 2")
    k.e("s_lshl_b32 s28, s34, 1")
    k.e("s_add_u32 s27, s27, s28")
    k.e("s_lshl_b32 s27, s27, 6")
    k.e("s_lshl_b32 s28, s25, 1")
    k.e("s_add_u32 s27, s27, s28")
    k.e("s_add_u32 s27, s27, s33")
    k.e("s_lshl_b32 s42, s27, 10")
    k.e("s_add_u32 s43, s42, 0x10000")
    k.e("s_lshl_b32 s44, s27, 11")
    k.e(f"s_add_u32 s44, s44, {hex(WS_KV)}")
    k.e("s_add_u32 s45, s44, 0x20000")
    k.e(f"v_bfe_u32 v{vt0}, v0, 4, 1")
    k.e(f"v_lshlrev_b32 v{vt0}, 17, v{vt0}")
    k.e(f"v_lshrrev_b32 v{vt1}, 5, v0")
    k.e(f"v_lshl_add_u32 v{vt0}, v{vt1}, 8, v{vt0}")
    k.e(f"v_and_b32 v{vt1}, 15, v0")
    k.e(f"v_lshl_add_u32 v{vt0}, v{vt1}, 4, v{vt0}")
    k.e(f"v_mul_f32 v{vt2}, {f32(0.25*1.4426950408889634)}, v{vR}")
    P = sets[1]['WB'][0]
    P2 = sets[1]['XA']
    for b, (sc, soffs) in enumerate(((vt2, (42, 43)), (vR, (44, 45)))):
        for i in range(16):
            k.e(f"v_mul_f32 v{acc[b]+i}, v{sc}, v{acc[b]+i}")
        for i in range(8):
            k.e(f"v_cvt_pk_bf16_f32 v{acc[b]+i}, v{acc[b]+2*i}, v{acc[b]+2*i+1}")
        k.e(f"buffer_store_dwordx4 {vr(acc[b],4)}, v{vL16}, s[20:23], s{soffs[0]} offen")
        k.e(f"buffer_store_dwordx4 {vr(acc[b]+4,4)}, v{vL16}, s[20:23], s{soffs[1]} offen")
    k.e("s_waitcnt lgkmcnt(0)")
    for i in range(16):
        k.e(f"v_mul_f32 v{acc[2]+i}, v{RR+i}, v{acc[2]+i}")
    for i in range(8):
        k.e(f"v_cvt_pk_bf16_f32 v{acc[2]+i}, v{acc[2]+2*i}, v{acc[2]+2*i+1}")
    k.e(f"buffer_store_dwordx4 {vr(acc[2],4)}, v{vt0}, s[20:23], s44 offen offset:1024")
    k.e(f"buffer_store_dwordx4 {vr(acc[2]+4,4)}, v{vt0}, s[20:23], s44 offen offset:1536")
    k.label("end")
    k.e("s_endpgm")
    assert MISC2 % 2048 == 0, MISC2
    return k

def gen_k2():
    k = K("k2_attn_kernel")
    k.lds = 131072 + 4096
    vl = k.v(); vt0 = k.v(); vt1 = k.v(); vL16 = k.v(); vK = k.v(); vV = k.v(); vSrc = k.v(); vDst = k.v()
    Q = k.v(4); KA = k.v(4); KB = k.v(4)
    VA = [k.v(4), k.v(4)]; VB = [k.v(4), k.v(4)]
    P0 = k.v(4); P1 = k.v(4)
    PR = [k.v(8) for _ in range(4)]
    NM = k.v(16); SA = k.v(16); SB = k.v(16); O = k.v(16)
    k.e("s_cmp_ge_u32 s2, 256")
    k.e(f"s_cbranch_scc1 {k.L('end')}")
    k.e("s_load_dwordx2 s[8:9], s[0:1], 72")
    k.e("s_load_dwordx2 s[4:5], s[0:1], 16")
    k.e("s_load_dwordx4 s[12:15], s[0:1], 32")
    k.e("s_load_dwordx2 s[6:7], s[0:1], 48")
    k.e(f"v_lshrrev_b32 v{vt0}, 6, v0")
    k.e("v_and_b32 v0, 63, v0")
    k.e(f"v_readfirstlane_b32 s24, v{vt0}")
    k.e(f"v_lshlrev_b32 v{vL16}, 4, v0")
    k.e("s_and_b32 s25, s2, 7")
    k.e("s_lshl_b32 s25, s25, 2")
    k.e("s_bfe_u32 s27, s2, 0x20003")
    k.e("s_add_u32 s25, s25, s27")
    k.e("s_lshr_b32 s26, s2, 5")
    k.e("s_lshl_b32 s26, s26, 3")
    k.e("s_add_u32 s26, s26, s24")
    k.e("s_lshl_b32 s27, s25, 6")
    k.e("s_add_u32 s27, s27, s26")
    k.e("s_lshl_b32 s28, s27, 10")
    k.e("s_lshl_b32 s29, s25, 17")
    k.e("s_lshl_b32 s30, s24, 11")
    k.e("s_add_u32 s29, s29, s30")
    k.e(f"s_add_u32 s29, s29, {hex(WS_KV)}")
    k.e("s_waitcnt lgkmcnt(0)")
    srd(k, 20, 8, WS_END)
    k.e(f"buffer_load_dwordx4 {vr(Q,4)}, v{vL16}, s[20:23], s28 offen")
    for c in range(8):
        k.e(f"s_add_u32 m0, s30, {c*16384}")
        if c:
            k.e("s_add_u32 s29, s29, 16384")
        else:
            k.e("s_nop 0")
        k.e(f"buffer_load_dwordx4 v{vL16}, s[20:23], s29 offen lds")
        k.e(f"buffer_load_dwordx4 v{vL16}, s[20:23], s29 offen offset:1024 lds")
    k.e(f"v_lshrrev_b32 v{vt1}, 5, v0")
    k.e(f"v_and_b32 v{vt0}, 31, v0")
    k.e("s_cmp_lt_u32 s2, 86")
    k.e(f"s_cbranch_scc0 {k.L('prepB')}")
    k.e("s_cmp_ge_u32 s2, 43")
    k.e("s_cselect_b32 s31, 1, 0")
    k.e("s_cselect_b32 s16, s14, s12")
    k.e("s_cselect_b32 s17, s15, s13")
    k.e("s_cselect_b32 s27, 43, 0")
    k.e("s_sub_u32 s32, s2, s27")
    k.e(f"s_mov_b32 s18, {512*2752}")
    k.e("s_mov_b32 s33, 2752")
    k.e("s_lshl_b32 s34, s24, 2")
    k.e("s_mov_b32 s35, 32")
    k.e("s_mul_i32 s27, s32, 43691")
    k.e("s_lshr_b32 s27, s27, 17")
    k.e("s_mul_i32 s28, s27, 3")
    k.e("s_sub_u32 s28, s32, s28")
    k.e("s_lshl_b32 s27, s27, 5")
    k.e("s_add_u32 s27, s27, s34")
    k.e("s_mul_i32 s27, s27, 6")
    k.e("s_lshl_b32 s28, s28, 1")
    k.e("s_add_u32 s27, s27, s28")
    k.e("s_lshl_b32 s36, s27, 10")
    k.e(f"s_add_u32 s36, s36, {hex(WS_WGU)}")
    k.e("s_mov_b32 s37, 6144")
    k.e(f"v_lshrrev_b32 v{vDst}, 4, v{vt0}")
    k.e(f"v_lshlrev_b32 v{vDst}, 10, v{vDst}")
    k.e(f"v_and_b32 v{vSrc}, 15, v0")
    k.e(f"v_lshl_add_u32 v{vDst}, v{vSrc}, 4, v{vDst}")
    k.e("s_lshl_b32 s27, s31, 8")
    k.e(f"v_add_u32 v{vDst}, s27, v{vDst}")
    k.e("s_lshl_b32 s38, s32, 11")
    k.e("s_lshr_b32 s27, s24, 2")
    k.e("s_lshl_b32 s27, s27, 9")
    k.e("s_add_u32 s38, s38, s27")
    k.e("s_and_b32 s27, s24, 3")
    k.e("s_lshl_b32 s27, s27, 2")
    k.e("s_add_u32 s38, s38, s27")
    k.e(f"s_add_u32 s38, s38, {hex(WS_CS)}")
    k.e(f"s_branch {k.L('prepC')}")
    k.label("prepB")
    k.e("s_sub_u32 s27, s2, 86")
    k.e("s_lshl_b32 s27, s27, 3")
    k.e("s_add_u32 s27, s27, s24")
    k.e("s_and_b32 s32, s27, 15")
    k.e("s_cmp_lt_u32 s27, 352")
    k.e("s_cselect_b32 s16, s6, s4")
    k.e("s_cselect_b32 s17, s7, s5")
    k.e(f"s_mov_b32 s18, {512*1024}")
    k.e(f"s_cselect_b32 s18, {1376*1024}, s18")
    k.e("s_cselect_b32 s35, 86, 32")
    k.e("s_cselect_b32 s28, 0, 352")
    k.e(f"s_mov_b32 s36, {hex(WS_WO)}")
    k.e(f"s_cselect_b32 s36, {hex(WS_WD)}, s36")
    k.e("s_sub_u32 s27, s27, s28")
    k.e("s_lshr_b32 s27, s27, 4")
    k.e("s_lshl_b32 s34, s27, 2")
    k.e("s_mov_b32 s33, 1024")
    k.e("s_lshr_b32 s27, s32, 1")
    k.e("s_mul_i32 s27, s27, s35")
    k.e("s_add_u32 s27, s27, s34")
    k.e("s_lshl_b32 s27, s27, 1")
    k.e("s_and_b32 s28, s32, 1")
    k.e("s_add_u32 s27, s27, s28")
    k.e("s_lshl_b32 s27, s27, 10")
    k.e("s_add_u32 s36, s36, s27")
    k.e("s_mov_b32 s37, 2048")
    k.e(f"v_lshlrev_b32 v{vDst}, 4, v{vt0}")
    k.e(f"s_mov_b32 s38, {hex(OOB)}")
    k.label("prepC")
    k.e("s_mov_b32 s19, 0x00020000")
    k.e("s_lshl_b32 s27, s33, 2")
    k.e(f"v_mul_u32_u24 v{vSrc}, s27, v{vt1}")
    k.e(f"v_lshl_add_u32 v{vSrc}, v{vt0}, 1, v{vSrc}")
    k.e("s_lshl_b32 s39, s34, 4")
    k.e("s_mul_i32 s39, s39, s33")
    k.e("s_lshl_b32 s27, s32, 6")
    k.e("s_add_u32 s39, s39, s27")
    k.e("s_mul_i32 s40, s33, 5")
    for sl in range(4):
        for j in range(8):
            k.e(f"buffer_load_ushort v{PR[sl]+j}, v{vSrc}, s[16:19], s39 offen")
            k.e(f"s_add_u32 s39, s39, s{40 if j % 4 == 3 else 33}")
    NPREP = 32
    k.e(f"v_mov_b32 v{vK}, v{vL16}")
    k.e(f"v_lshlrev_b32 v{vV}, 8, v{vt1}")
    k.e(f"v_and_b32 v{vt0}, 15, v0")
    k.e(f"v_lshl_add_u32 v{vV}, v{vt0}, 4, v{vV}")
    k.e(f"v_mov_b32 v{vt0}, 0x3f803f80")
    for r in VA + VB:
        for i in range(4):
            k.e(f"v_mov_b32 v{r+i}, v{vt0}")
    k.e("s_mov_b32 s42, 0x0000ffff")
    k.e("s_mov_b32 s43, 0x0000ffff")
    k.e("s_mov_b32 s44, 3")
    k.e("s_mov_b32 s45, 0")
    k.e(f"s_waitcnt vmcnt({14+NPREP})")
    k.e("s_barrier")
    k.e(f"ds_read_b128 {vr(KA,4)}, v{vK}")
    k.e("s_waitcnt lgkmcnt(0)")
    mfma32(k, SA, KA, Q, "0")
    k.e("s_nop 7")
    k.e("s_nop 3")
    k.e(f"v_max3_f32 v{vt0}, v{SA}, v{SA+1}, v{SA+2}")
    for i in range(3, 15, 2):
        k.e(f"v_max3_f32 v{vt0}, v{vt0}, v{SA+i}, v{SA+i+1}")
    k.e(f"v_max_f32 v{vt0}, v{vt0}, v{SA+15}")
    k.label("setm")
    k.e(f"v_mov_b32 v{vt1}, v{vt0}")
    k.e("s_nop 1")
    k.e(f"v_permlane32_swap_b32 v{vt0}, v{vt1}")
    k.e(f"v_max_f32 v{vt0}, v{vt0}, v{vt1}")
    for i in range(16):
        k.e(f"v_sub_f32 v{NM+i}, 0, v{vt0}")
    for i in range(16):
        k.e(f"v_mov_b32 v{O+i}, 0")
    k.e(f"ds_read_b128 {vr(KB,4)}, v{vK} offset:2048")
    k.e("s_mov_b64 exec, s[42:43]")
    k.e(f"ds_read_b128 {vr(VA[0],4)}, v{vV} offset:1024")
    k.e(f"ds_read_b128 {vr(VA[1],4)}, v{vV} offset:1536")
    k.e("s_mov_b64 exec, -1")
    mfma32(k, SA, KA, Q, NM)
    k.e("s_mov_b32 s41, 0")
    k.e("s_nop 5")
    k.label("loop")
    k.e("s_cmp_eq_u32 s41, s44")
    k.e(f"s_cbranch_scc1 {k.L('chk')}")
    k.label("back")
    for half in range(2):
        S, Sn = (SA, SB) if half == 0 else (SB, SA)
        Kn, Knn = (KB, KA) if half == 0 else (KA, KB)
        Vc, Vn = (VA, VB) if half == 0 else (VB, VA)
        base = half * 2048
        k.e("s_waitcnt lgkmcnt(2)")
        mfma32(k, Sn, Kn, Q, NM)
        k.e(f"ds_read_b128 {vr(Knn,4)}, v{vK} offset:{base+4096}")
        for i in range(8):
            k.e(f"v_exp_f32 v{S+i}, v{S+i}")
            if i == 1:
                pass
        for i in range(4):
            k.e(f"v_cvt_pk_bf16_f32 v{P0+i}, v{S+2*i}, v{S+2*i+1}")
        k.e(f"v_exp_f32 v{S+8}, v{S+8}")
        k.e("s_waitcnt lgkmcnt(1)")
        mfma32(k, O, Vc[0], P0)
        for i in range(9, 16):
            k.e(f"v_exp_f32 v{S+i}, v{S+i}")
        k.e("s_mov_b64 exec, s[42:43]")
        k.e(f"ds_read_b128 {vr(Vn[0],4)}, v{vV} offset:{base+2048+1024}")
        k.e(f"ds_read_b128 {vr(Vn[1],4)}, v{vV} offset:{base+2048+1536}")
        k.e("s_mov_b64 exec, -1")
        for i in range(4):
            k.e(f"v_cvt_pk_bf16_f32 v{P1+i}, v{S+8+2*i}, v{S+8+2*i+1}")
        if half == 1:
            k.e(f"v_add_u32 v{vK}, 4096, v{vK}")
            k.e(f"v_add_u32 v{vV}, 4096, v{vV}")
        else:
            k.e("s_add_u32 s41, s41, 1")
            k.e("s_cmp_lt_u32 s41, 32")
        mfma32(k, O, Vc[1], P1)
    k.e(f"s_cbranch_scc1 {k.L('loop')}")
    k.e("s_waitcnt lgkmcnt(0)")
    k.e("s_nop 7")
    k.e("s_nop 3")
    k.e(f"v_mov_b32 v{vt1}, {f32(2.0**60)}")
    k.e(f"v_cmp_nlt_f32 vcc, v{O+8}, v{vt1}")
    k.e("s_nop 0")
    k.e("s_cmp_eq_u64 vcc, 0")
    k.e(f"s_cbranch_scc1 {k.L('fin')}")
    k.e("s_cmp_eq_u32 s45, 0")
    k.e(f"s_cbranch_scc0 {k.L('fin')}")
    k.e("s_mov_b32 s45, 1")
    k.e(f"v_mov_b32 v{vK}, v{vL16}")
    k.e(f"v_subrev_u32 v{vV}, 0x20000, v{vV}")
    k.e(f"v_mov_b32 v{vt0}, 0xff800000")
    k.e("s_mov_b32 s41, 0")
    k.label("fbloop")
    k.e(f"ds_read_b128 {vr(KA,4)}, v{vK}")
    k.e(f"v_add_u32 v{vK}, 2048, v{vK}")
    k.e("s_waitcnt lgkmcnt(0)")
    mfma32(k, SA, KA, Q, "0")
    k.e("s_add_u32 s41, s41, 1")
    k.e("s_cmp_lt_u32 s41, 64")
    k.e("s_nop 7")
    k.e("s_nop 3")
    for i in range(0, 16, 2):
        k.e(f"v_max3_f32 v{vt0}, v{vt0}, v{SA+i}, v{SA+i+1}")
    k.e(f"s_cbranch_scc1 {k.L('fbloop')}")
    k.e(f"v_mov_b32 v{vK}, v{vL16}")
    k.e(f"ds_read_b128 {vr(KA,4)}, v{vK}")
    k.e("s_waitcnt lgkmcnt(0)")
    k.e(f"s_branch {k.L('setm')}")
    k.label("chk")
    k.e("s_cmp_eq_u32 s44, 3")
    k.e(f"s_cbranch_scc0 {k.L('chk2')}")
    k.e(f"s_waitcnt vmcnt({8+NPREP})")
    k.e("s_barrier")
    k.e("s_mov_b32 s44, 15")
    k.e(f"s_branch {k.L('back')}")
    k.label("chk2")
    k.e("s_waitcnt vmcnt(0)")
    k.e("s_barrier")
    k.e("s_mov_b32 s44, 99")
    k.e(f"v_lshrrev_b32 v{vt1}, 5, v0")
    k.e(f"v_lshl_add_u32 v{vt1}, v{vt1}, 9, v{vDst}")
    k.e(f"v_mov_b32 v{vt0}, 0")
    k.e("s_mov_b32 s27, 0x3f803f80")
    for sl in range(4):
        for i in range(4):
            k.e(f"v_lshl_or_b32 v{PR[sl]+i}, v{PR[sl]+2*i+1}, 16, v{PR[sl]+2*i}")
        k.e("s_cmp_lt_u32 s34, s35")
        k.e(f"s_cselect_b32 s28, s36, {hex(OOB)}")
        k.e(f"buffer_store_dwordx4 {vr(PR[sl],4)}, v{vt1}, s[20:23], s28 offen")
        k.e("s_add_u32 s34, s34, 1")
        k.e("s_add_u32 s36, s36, s37")
        for i in range(4):
            k.e(f"v_dot2c_f32_bf16 v{vt0}, s27, v{PR[sl]+i}")
    k.e("s_nop 2")
    k.e(f"v_mov_b32 v{vSrc}, v{vt0}")
    k.e("s_nop 1")
    k.e(f"v_permlane32_swap_b32 v{vt0}, v{vSrc}")
    k.e(f"v_add_f32 v{vt0}, v{vt0}, v{vSrc}")
    k.e(f"buffer_store_dword v{vt0}, v{vDst}, s[20:23], s38 offen")
    k.e(f"s_branch {k.L('back')}")
    k.label("fin")
    k.e(f"v_rcp_f32 v{vt0}, v{O+8}")
    k.e("s_lshr_b32 s27, s26, 1")
    k.e("s_lshl_b32 s27, s27, 5")
    k.e("s_add_u32 s27, s27, s25")
    k.e("s_lshl_b32 s27, s27, 1")
    k.e("s_and_b32 s28, s26, 1")
    k.e("s_add_u32 s27, s27, s28")
    k.e("s_lshl_b32 s27, s27, 10")
    k.e(f"s_add_u32 s27, s27, {hex(WS_O)}")
    for i in range(8):
        k.e(f"v_mul_f32 v{O+i}, v{vt0}, v{O+i}")
    for i in range(4):
        k.e(f"v_cvt_pk_bf16_f32 v{O+i}, v{O+2*i}, v{O+2*i+1}")
    k.e(f"buffer_store_dwordx4 {vr(O,4)}, v{vL16}, s[20:23], s27 offen")
    k.label("end")
    k.e("s_endpgm")
    return k

def gen_gemm64(name, nks, act_off, w_off, mode):
    k = K(name)
    NSLOT = 9
    SLOT = 16384
    k.lds = NSLOT * SLOT
    nst = (nks + 3) // 4
    assert nst % 2 == 0
    vl = k.v(); vt0 = k.v(); vt1 = k.v(); vL16 = k.v(); vAb = k.v(); vWb = k.v(); vA = k.v(); vW = k.v()
    vS = k.v(); vQ = k.v(); vO = k.v(); vt2 = k.v()
    R = k.v(8)
    acc = k.v(16)
    sets = [dict(A=[k.v(4) for _ in range(4)], W=[k.v(4) for _ in range(4)]) for _ in range(2)]
    k.e("s_cmp_ge_u32 s2, 256")
    k.e(f"s_cbranch_scc1 {k.L('end')}")
    k.e("s_load_dwordx2 s[8:9], s[0:1], 72")
    k.e(f"s_load_dwordx2 s[4:5], s[0:1], {0 if mode == 'wo' else 56}")
    k.e(f"v_lshrrev_b32 v{vt0}, 6, v0")
    k.e("v_and_b32 v0, 63, v0")
    k.e(f"v_readfirstlane_b32 s24, v{vt0}")
    tile_map_32x8(k, 25, 26, 27, 28)
    k.e(f"v_lshlrev_b32 v{vL16}, 4, v0")
    k.e("s_and_b32 s33, s24, 1")
    k.e("s_lshr_b32 s34, s24, 1")
    k.e(f"s_mul_i32 s27, s25, {nks*2048}")
    k.e(f"s_add_u32 s27, s27, {hex(act_off)}")
    k.e(f"s_mul_i32 s28, s26, {nks*2048}")
    k.e(f"s_add_u32 s28, s28, {hex(w_off)}")
    k.e("s_cmp_eq_u32 s34, 0")
    k.e("s_cselect_b32 s27, s27, s28")
    k.e("s_lshl_b32 s31, s33, 12")
    k.e("s_lshl_b32 s32, s24, 12")
    k.e(f"v_and_b32 v{vt0}, 31, v0")
    k.e(f"v_lshrrev_b32 v{vt1}, 5, v0")
    k.e(f"v_lshlrev_b32 v{vO}, 10, v{vt0}")
    k.e("s_lshl_b32 s29, s25, 16")
    k.e("s_lshl_b32 s30, s33, 15")
    k.e("s_add_u32 s29, s29, s30")
    k.e("s_lshl_b32 s30, s26, 7")
    k.e("s_add_u32 s29, s29, s30")
    k.e("s_lshl_b32 s30, s34, 6")
    k.e("s_add_u32 s29, s29, s30")
    k.e("s_lshr_b32 s35, s25, 1")
    k.e("s_lshl_b32 s35, s35, 5")
    k.e("s_lshl_b32 s30, s26, 2")
    k.e("s_add_u32 s35, s35, s30")
    k.e("s_lshl_b32 s30, s34, 1")
    k.e("s_add_u32 s35, s35, s30")
    k.e("s_lshl_b32 s35, s35, 2")
    k.e("s_and_b32 s30, s25, 1")
    k.e("s_lshl_b32 s30, s30, 1")
    k.e("s_add_u32 s35, s35, s30")
    k.e("s_add_u32 s35, s35, s33")
    k.e("s_lshl_b32 s35, s35, 10")
    k.e(f"s_add_u32 s35, s35, {hex(WS_H)}")
    k.e("s_add_u32 s36, s35, 4096")
    k.e("s_waitcnt lgkmcnt(0)")
    srd(k, 20, 8, WS_END)
    srd(k, 12, 4, 2048 * 1024)
    k.e("s_add_u32 s16, s8, s27")
    k.e("s_addc_u32 s17, s9, 0")
    k.e(f"s_mov_b32 s18, {nks*2048}")
    k.e("s_mov_b32 s19, 0x00020000")
    if mode == "wo":
        k.e(f"v_lshl_add_u32 v{vO}, v{vt1}, 3, v{vO}")
        for j in range(4):
            k.e(f"buffer_load_dwordx2 {vr(R+2*j,2)}, v{vO}, s[12:15], s29 offen offset:{j*16}")
    else:
        k.e(f"v_lshl_add_u32 v{vO}, v{vt1}, 4, v{vO}")
        k.e(f"buffer_load_dwordx4 {vr(R,4)}, v{vL16}, s[20:23], s35 offen")
        k.e(f"buffer_load_dwordx4 {vr(R+4,4)}, v{vL16}, s[20:23], s36 offen")
    for s in range(NSLOT - 1):
        k.e(f"s_add_u32 m0, s32, {s*SLOT}")
        k.e("s_nop 0")
        for g in range(4):
            k.e(f"buffer_load_dwordx4 v{vL16}, s[16:19], s31 offen offset:{g*1024} lds")
        k.e("s_add_u32 s31, s31, 8192")
    k.e("s_lshl_b32 s27, s33, 10")
    k.e(f"v_add_u32 v{vAb}, s27, v{vL16}")
    k.e("s_lshl_b32 s27, s34, 10")
    k.e("s_add_u32 s27, s27, 8192")
    k.e(f"v_add_u32 v{vWb}, s27, v{vL16}")
    for z in list(range(acc, acc + 16)) + list(range(sets[1]['A'][0], sets[1]['A'][0] + 32)):
        k.e(f"v_mov_b32 v{z}, 0")
    k.e("s_mov_b32 s38, 0")
    k.e(f"s_mov_b32 s39, {(NSLOT-1)*SLOT}")
    k.e(f"s_mov_b32 s40, {nst//2}")
    def mf(S):
        return [f"v_mfma_f32_32x32x16_bf16 {vr(acc,16)}, {vr(S['W'][i],4)}, {vr(S['A'][i],4)}, {vr(acc,16)}" for i in range(4)]
    k.label("loop")
    for half in range(2):
        Srd, Scp = sets[half], sets[1 - half]
        k.e(f"v_add_u32 v{vA}, s38, v{vAb}")
        k.e(f"v_add_u32 v{vW}, s38, v{vWb}")
        k.e("s_add_u32 m0, s32, s39")
        k.e(f"s_waitcnt vmcnt({4*(NSLOT-2)}) lgkmcnt(0)")
        k.e("s_barrier")
        rd = []
        for i in range(4):
            rd.append(f"ds_read_b128 {vr(Srd['A'][i],4)}, v{vA} offset:{i*2048}")
            rd.append(f"ds_read_b128 {vr(Srd['W'][i],4)}, v{vW} offset:{i*2048}")
        dma = [f"buffer_load_dwordx4 v{vL16}, s[16:19], s31 offen offset:{g*1024} lds" for g in range(4)]
        sal = ["s_add_u32 s31, s31, 8192",
               f"s_add_u32 s38, s38, {SLOT}", f"s_cmp_eq_u32 s38, {NSLOT*SLOT}", "s_cselect_b32 s38, 0, s38",
               f"s_add_u32 s39, s39, {SLOT}", f"s_cmp_eq_u32 s39, {NSLOT*SLOT}", "s_cselect_b32 s39, 0, s39"]
        interleave(k, mf(Scp), rd + dma + sal, 5)
    k.e("s_sub_u32 s40, s40, 1")
    k.e("s_cmp_lg_u32 s40, 0")
    k.e(f"s_cbranch_scc1 {k.L('loop')}")
    k.e("s_waitcnt lgkmcnt(0)")
    for m in mf(sets[1]):
        k.e(m)
    k.e("s_mov_b32 s41, 0xffff0000")
    T = sets[0]['A'][0]
    for i in range(8):
        k.e(f"v_lshlrev_b32 v{T+2*i}, 16, v{R+i}")
        k.e(f"v_and_b32 v{T+2*i+1}, s41, v{R+i}")
    for i in range(8):
        k.e(f"v_cvt_pk_bf16_f32 v{R+i}, v{acc+2*i}, v{acc+2*i+1}")
    for i in range(8):
        k.e(f"v_lshlrev_b32 v{acc+2*i}, 16, v{R+i}")
        k.e(f"v_and_b32 v{acc+2*i+1}, s41, v{R+i}")
    for i in range(16):
        k.e(f"v_add_f32 v{acc+i}, v{acc+i}, v{T+i}")
    for i in range(8):
        k.e(f"v_cvt_pk_bf16_f32 v{R+i}, v{acc+2*i}, v{acc+2*i+1}")
    if mode == "wo":
        k.e(f"buffer_store_dwordx4 {vr(R,4)}, v{vL16}, s[20:23], s35 offen")
        k.e(f"buffer_store_dwordx4 {vr(R+4,4)}, v{vL16}, s[20:23], s36 offen")
        k.e(f"v_mov_b32 v{vS}, 0")
        k.e(f"v_mov_b32 v{vQ}, 0")
        k.e("s_mov_b32 s27, 0x3f803f80")
        for i in range(8):
            k.e(f"v_dot2c_f32_bf16 v{vS}, s27, v{R+i}")
            k.e(f"v_dot2c_f32_bf16 v{vQ}, v{R+i}, v{R+i}")
        k.e("s_lshl_b32 s27, s25, 1")
        k.e("s_add_u32 s27, s27, s33")
        k.e("s_lshl_b32 s27, s27, 12")
        k.e("s_lshl_b32 s28, s26, 9")
        k.e("s_add_u32 s27, s27, s28")
        k.e("s_lshl_b32 s28, s34, 3")
        k.e("s_add_u32 s27, s27, s28")
        k.e(f"s_add_u32 s27, s27, {hex(WS_ST)}")
        k.e(f"v_lshlrev_b32 v{vt0}, 4, v{vt0}")
        k.e(f"v_lshl_add_u32 v{vt0}, v{vt1}, 2, v{vt0}")
        k.e(f"v_permlane32_swap_b32 v{vS}, v{vQ}")
        k.e(f"v_add_f32 v{vS}, v{vS}, v{vQ}")
        k.e(f"buffer_store_dword v{vS}, v{vt0}, s[20:23], s27 offen")
    else:
        k.e("s_nop 1")
        k.e(f"v_permlane32_swap_b32 v{R}, v{R+2}")
        k.e(f"v_permlane32_swap_b32 v{R+1}, v{R+3}")
        k.e(f"v_permlane32_swap_b32 v{R+4}, v{R+6}")
        k.e(f"v_permlane32_swap_b32 v{R+5}, v{R+7}")
        k.e(f"buffer_store_dwordx4 {vr(R,4)}, v{vO}, s[12:15], s29 offen")
        k.e(f"buffer_store_dwordx4 {vr(R+4,4)}, v{vO}, s[12:15], s29 offen offset:32")
    k.label("end")
    k.e("s_endpgm")
    return k

def gen_k4():
    k = K("k4_gu_kernel")
    NSLOT = 7
    SLOT = 20480
    k.lds = NSLOT * SLOT
    vl = k.v(); vt0 = k.v(); vt1 = k.v(); vL16 = k.v(); vXb = k.v(); vWb = k.v(); vX = k.v(); vW = k.v()
    ST = [k.v(16) for _ in range(2)]
    CS = [k.v(4) for _ in range(3)]
    acc = [[k.v(16) for _ in range(3)] for _ in range(2)]
    sets = [dict(X=[[k.v(4) for _ in range(2)] for _ in range(2)], W=[[k.v(4) for _ in range(3)] for _ in range(2)]) for _ in range(2)]
    k.e("s_cmp_ge_u32 s2, 256")
    k.e(f"s_cbranch_scc1 {k.L('end')}")
    k.e("s_and_b32 s26, s2, 1")
    k.e("s_lshl_b32 s26, s26, 3")
    k.e("s_lshr_b32 s27, s2, 5")
    k.e("s_add_u32 s26, s26, s27")
    k.e("s_cmp_ge_u32 s26, 15")
    k.e(f"s_cbranch_scc1 {k.L('end')}")
    k.e("s_load_dwordx2 s[8:9], s[0:1], 72")
    k.e(f"v_lshrrev_b32 v{vt0}, 6, v0")
    k.e("v_and_b32 v0, 63, v0")
    k.e(f"v_readfirstlane_b32 s24, v{vt0}")
    k.e("s_and_b32 s25, s2, 6")
    k.e("s_lshl_b32 s25, s25, 1")
    k.e("s_bfe_u32 s27, s2, 0x20003")
    k.e("s_add_u32 s25, s25, s27")
    k.e(f"v_lshlrev_b32 v{vL16}, 4, v0")
    k.e("s_and_b32 s33, s24, 1")
    k.e("s_lshr_b32 s34, s24, 1")
    k.e("s_lshl_b32 s27, s25, 17")
    k.e(f"s_add_u32 s27, s27, {hex(WS_H)}")
    k.e(f"s_mul_i32 s28, s26, {32*6144}")
    k.e(f"s_add_u32 s28, s28, {hex(WS_WGU)}")
    k.e("s_lshl_b32 s30, s24, 11")
    k.e("s_mul_i32 s31, s24, 3072")
    k.e("s_mov_b32 s29, s30")
    k.e("s_add_u32 s32, s31, 8192")
    k.e("s_lshl_b32 s35, s25, 2")
    k.e("s_lshl_b32 s36, s33, 1")
    k.e("s_add_u32 s35, s35, s36")
    k.e("s_lshl_b32 s36, s35, 12")
    k.e(f"s_add_u32 s36, s36, {hex(WS_ST)}")
    k.e("s_add_u32 s37, s36, 4096")
    k.e("s_mul_i32 s42, s26, 6")
    k.e("s_mul_i32 s43, s34, 3")
    k.e("s_add_u32 s42, s42, s43")
    k.e("s_lshl_b32 s43, s42, 10")
    k.e(f"s_add_u32 s43, s43, {hex(WS_CS)}")
    k.e("s_waitcnt lgkmcnt(0)")
    srd(k, 20, 8, WS_END)
    k.e("s_add_u32 s12, s8, s27")
    k.e("s_addc_u32 s13, s9, 0")
    k.e("s_mov_b32 s14, 0x20000")
    k.e("s_mov_b32 s15, 0x00020000")
    k.e("s_add_u32 s16, s8, s28")
    k.e("s_addc_u32 s17, s9, 0")
    k.e(f"s_mov_b32 s18, {32*6144}")
    k.e("s_mov_b32 s19, 0x00020000")
    def dma_list():
        return ([f"buffer_load_dwordx4 v{vL16}, s[12:15], s30 offen offset:{g*1024} lds" for g in range(2)],
                [f"buffer_load_dwordx4 v{vL16}, s[16:19], s31 offen offset:{g*1024} lds" for g in range(3)])
    for b in range(2):
        for q in range(4):
            k.e(f"buffer_load_dwordx4 {vr(ST[b]+4*q,4)}, v{vL16}, s[20:23], s{36+b} offen offset:{q*1024}")
    for u in range(3):
        k.e(f"buffer_load_dwordx4 {vr(CS[u],4)}, v{vL16}, s[20:23], s43 offen offset:{u*1024}")
    for s in range(NSLOT - 1):
        dx, dw = dma_list()
        k.e(f"s_add_u32 m0, s29, {s*SLOT}")
        k.e("s_nop 0")
        for d in dx: k.e(d)
        k.e(f"s_add_u32 m0, s32, {s*SLOT}")
        k.e("s_add_u32 s30, s30, 8192")
        for d in dw: k.e(d)
        k.e("s_add_u32 s31, s31, 12288")
    k.e("s_lshl_b32 s27, s33, 11")
    k.e(f"v_add_u32 v{vXb}, s27, v{vL16}")
    k.e("s_mul_i32 s27, s34, 3072")
    k.e("s_add_u32 s27, s27, 8192")
    k.e(f"v_add_u32 v{vWb}, s27, v{vL16}")
    s1 = sets[1]['X'][0][0]
    for z in list(range(acc[0][0], acc[0][0] + 96)) + list(range(s1, s1 + 40)):
        k.e(f"v_mov_b32 v{z}, 0")
    k.e("s_mov_b32 s38, 0")
    k.e(f"s_mov_b32 s39, {(NSLOT-1)*SLOT}")
    k.e("s_mov_b32 s40, 8")
    def mf(S):
        r = []
        for kk in range(2):
            for u in range(3):
                for b in range(2):
                    r.append(f"v_mfma_f32_32x32x16_bf16 {vr(acc[b][u],16)}, {vr(S['W'][kk][u],4)}, {vr(S['X'][kk][b],4)}, {vr(acc[b][u],16)}")
        return r
    k.label("loop")
    for half in range(2):
        Srd, Scp = sets[half], sets[1 - half]
        k.e(f"v_add_u32 v{vX}, s38, v{vXb}")
        k.e(f"v_add_u32 v{vW}, s38, v{vWb}")
        k.e("s_add_u32 m0, s29, s39")
        k.e(f"s_waitcnt vmcnt({5*(NSLOT-2)}) lgkmcnt(0)")
        k.e("s_barrier")
        rd = []
        for kk in range(2):
            for b in range(2):
                rd.append(f"ds_read_b128 {vr(Srd['X'][kk][b],4)}, v{vX} offset:{kk*4096+b*1024}")
            for u in range(3):
                rd.append(f"ds_read_b128 {vr(Srd['W'][kk][u],4)}, v{vW} offset:{kk*6144+u*1024}")
        dx, dw = dma_list()
        sal = ["s_add_u32 s31, s31, 12288",
               f"s_add_u32 s38, s38, {SLOT}", f"s_cmp_eq_u32 s38, {NSLOT*SLOT}", "s_cselect_b32 s38, 0, s38",
               f"s_add_u32 s39, s39, {SLOT}", f"s_cmp_eq_u32 s39, {NSLOT*SLOT}", "s_cselect_b32 s39, 0, s39"]
        fill = dx + ["s_add_u32 m0, s32, s39", "s_add_u32 s30, s30, 8192"] + dw + rd + sal
        interleave(k, mf(Scp), fill, 2)
    k.e("s_sub_u32 s40, s40, 1")
    k.e("s_cmp_lg_u32 s40, 0")
    k.e(f"s_cbranch_scc1 {k.L('loop')}")
    k.e("s_waitcnt lgkmcnt(0)")
    S0 = sets[0]['X'][0][0]
    BP = [S0, S0 + 4]; AP = [S0 + 8, S0 + 12, S0 + 16]
    RS = [S0 + 20, S0 + 21]; C1 = [S0 + 22, S0 + 23]; C2 = [S0 + 24, S0 + 25]; C3 = [S0 + 26, S0 + 27]
    t2 = S0 + 28; t3 = S0 + 29
    for m in mf(sets[1]):
        k.e(m)
    k.e("v_cmp_gt_u32 vcc, 32, v0")
    for r in BP + AP:
        for i in (1, 2, 3):
            k.e(f"v_mov_b32 v{r+i}, 0")
    for b in range(2):
        s = ST[b]
        for i in range(2, 16, 2):
            k.e(f"v_add_f32 v{s}, v{s}, v{s+i}")
            k.e(f"v_add_f32 v{s+1}, v{s+1}, v{s+i+1}")
        k.e(f"v_mov_b32 v{s+2}, v{s}")
        k.e(f"v_mov_b32 v{s+3}, v{s+1}")
        k.e("s_nop 1")
        k.e(f"v_permlane32_swap_b32 v{s}, v{s+2}")
        k.e(f"v_permlane32_swap_b32 v{s+1}, v{s+3}")
        k.e(f"v_add_f32 v{s}, v{s}, v{s+2}")
        k.e(f"v_add_f32 v{s+1}, v{s+1}, v{s+3}")
        ln_finish(k, s, s + 1, BP[b], RS[b], t2, t3)
        k.e(f"v_cndmask_b32 v{BP[b]}, 0, v{BP[b]}, vcc")
        A_ = -2.0 * 1.4426950408889634 * 0.7978845608028654
        k.e(f"v_mul_f32 v{C3[b]}, v{t2}, v{t2}")
        k.e(f"v_mul_f32 v{C1[b]}, {f32(A_)}, v{RS[b]}")
        k.e(f"v_mul_f32 v{C2[b]}, v{RS[b]}, v{RS[b]}")
        k.e(f"v_mul_f32 v{C2[b]}, v{C2[b]}, v{C1[b]}")
        k.e(f"v_mul_f32 v{C2[b]}, {f32(0.044715)}, v{C2[b]}")
    for u in range(3):
        c = CS[u]
        k.e(f"v_add_f32 v{c}, v{c}, v{c+1}")
        k.e(f"v_add_f32 v{c+2}, v{c+2}, v{c+3}")
        k.e(f"v_add_f32 v{c}, v{c}, v{c+2}")
        k.e(f"v_mov_b32 v{c+1}, v{c}")
        k.e("s_nop 1")
        k.e(f"v_permlane32_swap_b32 v{c}, v{c+1}")
        k.e(f"v_add_f32 v{c}, v{c}, v{c+1}")
        split2(k, c, AP[u], t2)
    k.e("s_nop 1")
    for u in range(3):
        for b in range(2):
            mfma32(k, acc[b][u], AP[u], BP[b])
    k.e("s_lshr_b32 s27, s35, 1")
    k.e("s_mul_i32 s27, s27, 86")
    k.e("s_add_u32 s27, s27, s42")
    k.e("s_lshl_b32 s27, s27, 11")
    k.e(f"s_add_u32 s27, s27, {hex(WS_A)}")
    k.e("s_nop 3")
    T = ST[0]
    for u in range(3):
        k.e("s_cmp_lt_u32 s42, 86")
        k.e(f"s_cselect_b32 s28, s27, {hex(OOB)}")
        k.e("s_add_u32 s42, s42, 1")
        k.e("s_add_u32 s27, s27, 2048")
        for b in range(2):
            a = acc[b][u]
            for i in range(8):
                k.e(f"v_mul_f32 v{T+i}, v{a+i}, v{a+i}")
            for i in range(8):
                k.e(f"v_fma_f32 v{T+i}, v{T+i}, v{C2[b]}, v{C1[b]}")
            for i in range(8):
                k.e(f"v_mul_f32 v{T+i}, v{T+i}, v{a+i}")
            for i in range(8):
                k.e(f"v_exp_f32 v{T+i}, v{T+i}")
            for i in range(8):
                k.e(f"v_mul_f32 v{a+i}, v{a+i}, v{a+8+i}")
            for i in range(8):
                k.e(f"v_fma_f32 v{T+i}, v{T+i}, v{C3[b]}, v{C3[b]}")
            for i in range(8):
                k.e(f"v_rcp_f32 v{T+i}, v{T+i}")
            k.e("s_nop 0")
            for i in range(8):
                k.e(f"v_mul_f32 v{a+i}, v{a+i}, v{T+i}")
            for i in range(4):
                k.e(f"v_cvt_pk_bf16_f32 v{a+i}, v{a+2*i}, v{a+2*i+1}")
            k.e(f"buffer_store_dwordx4 {vr(a,4)}, v{vL16}, s[20:23], s28 offen offset:{b*1024}")
    k.label("end")
    k.e("s_endpgm")
    return k

def build():
    ks = [(gen_k1(), 256), (gen_k2(), 512),
          (gen_gemm64("k3_wo_kernel", 32, WS_O, WS_WO, "wo"), 256),
          (gen_k4(), 256),
          (gen_gemm64("k5_down_kernel", 86, WS_A, WS_WD, "down"), 256)]
    ref = open(f"cdna_kernels/{NAME}.s.ref").read().splitlines()
    head = [l for l in ref if l.startswith(";") and "@launch" not in l and "Override" not in l and "grid=ceil" not in l]
    out = "\n".join(head) + "\n"
    for k, blk in ks:
        out += f"; @launch kernel={k.name} grid=(256,1,1) block=({blk},1,1) lds={k.lds}\n"
    out += '.amdgcn_target "amdgcn-amd-amdhsa--gfx950"\n'
    for k, blk in ks:
        out += k.text()
    return out

if __name__ == "__main__":
    out = build()
    path = sys.argv[1] if len(sys.argv) > 1 else f"cdna_kernels/{NAME}.s"
    open(path, "w").write(out)
    bad = hazard.check(out)
    print("hazards:", len(bad))
```

```python
import re, sys

TRANS = ("v_exp_", "v_log_", "v_rcp_", "v_rsq_", "v_sqrt_", "v_sin_", "v_cos_")

def parse_regs(tok):
    tok = tok.strip()
    tok = tok.replace("abs(", "").replace(")", "").lstrip("-").strip("|")
    m = re.fullmatch(r"([vsa])(\d+)", tok)
    if m:
        return [(m.group(1), int(m.group(2)))]
    m = re.fullmatch(r"([vsa])\[(\d+):(\d+)\]", tok)
    if m:
        return [(m.group(1), i) for i in range(int(m.group(2)), int(m.group(3)) + 1)]
    if tok == "vcc":
        return [("s", 106), ("s", 107)]
    if tok == "vcc_lo":
        return [("s", 106)]
    if tok == "vcc_hi":
        return [("s", 107)]
    if tok == "exec":
        return [("s", 126), ("s", 127)]
    if tok == "m0":
        return [("s", 124)]
    return []

class Ins:
    def __init__(self, text, lineno):
        self.text = text
        self.lineno = lineno
        parts = text.split(None, 1)
        self.op = parts[0]
        rest = parts[1] if len(parts) > 1 else ""
        ops = [o.strip() for o in re.split(r",(?![^\[]*\])", rest)] if rest else []
        self.mods = ""
        if ops:
            sp = ops[-1].split(None, 1)
            if len(sp) > 1:
                ops[-1] = sp[0]
                self.mods = sp[1]
        self.ops = ops
        op = self.op
        self.is_mfma = op.startswith("v_mfma") or op.startswith("v_smfmac")
        self.is_valu = op.startswith("v_") and not self.is_mfma
        self.is_trans = any(op.startswith(t) for t in TRANS)
        self.is_dot = op.startswith("v_dot")
        self.is_salu = op.startswith("s_")
        self.is_vmem = op.startswith(("buffer_", "global_", "flat_", "scratch_"))
        self.is_ds = op.startswith("ds_")
        self.is_lds_dma = self.is_vmem and (" lds" in (" " + self.mods) or "load_lds" in op)
        self.is_store = self.is_vmem and ("store" in op or "atomic" in op)
        self.writes, self.reads = [], []
        R = [parse_regs(o) for o in ops]
        if self.is_mfma:
            self.writes = R[0]
            self.srcA, self.srcB, self.srcC = R[1], R[2], (R[3] if len(R) > 3 else [])
            if op.startswith("v_smfmac"):
                self.srcB = self.srcB + self.srcC
                self.srcC = R[0]
            self.reads = self.srcA + self.srcB + self.srcC
            self.passes = 8 if ("32x32x16" in op or "smfmac_f32_32x32x32" in op) else 4 if "16x16x32" in op else 16
        elif self.is_valu:
            if op.startswith("v_cmp"):
                self.writes = R[0]
                self.reads = sum(R[1:], [])
                if op.startswith("v_cmpx"):
                    self.writes = self.writes + parse_regs("exec")
            elif op.startswith("v_permlane") and "swap" in op:
                self.writes = R[0] + R[1]
                self.reads = R[0] + R[1]
            elif op.startswith(("v_add_co", "v_sub_co", "v_addc_co", "v_subb_co", "v_subrev_co", "v_div_scale", "v_mad_u64")):
                self.writes = R[0] + R[1]
                self.reads = sum(R[2:], [])
            else:
                self.writes = R[0]
                self.reads = sum(R[1:], [])
                if op.startswith(("v_fmac", "v_dot2c", "v_pk_fmac", "v_mac")) or "sdwa" in op or "d16" in op:
                    self.reads = self.reads + R[0]
                if op.startswith("v_cndmask") and len(ops) == 3:
                    self.reads = self.reads + parse_regs("vcc")
        elif self.is_vmem:
            if self.is_lds_dma:
                self.reads = sum(R, []) + parse_regs("m0")
            elif self.is_store:
                self.reads = sum(R, [])
                if op.startswith("buffer_"):
                    self.data = R[0]
                else:
                    self.data = R[1]
            else:
                self.writes = R[0]
                self.reads = sum(R[1:], [])
        elif self.is_ds:
            if op.startswith(("ds_read", "ds_bpermute", "ds_permute", "ds_swizzle")):
                self.writes = R[0]
                self.reads = sum(R[1:], [])
            else:
                self.reads = sum(R, [])
        elif self.is_salu:
            if op.startswith(("s_cmp", "s_cbranch", "s_branch", "s_waitcnt", "s_barrier", "s_nop", "s_endpgm", "s_setprio", "s_sleep")):
                self.reads = sum(R, [])
            else:
                self.writes = R[0] if R else []
                self.reads = sum(R[1:], [])
                if "saveexec" in op:
                    self.writes = self.writes + parse_regs("exec")
        self.wset = set(self.writes)
        self.rset = set(self.reads)
        self.states = 1
        if op == "s_nop":
            self.states = int(ops[0], 0) + 1

def required(p, c):
    need = 0
    why = ""
    def upd(n, w):
        nonlocal need, why
        if n > need:
            need, why = n, w
    vw = {r for r in p.wset if r[0] in "va"}
    sw = {r for r in p.wset if r[0] == "s"}
    if p.is_valu:
        if c.is_mfma and vw & c.rset:
            upd(3 if p.is_dot else 2, "valu->mfma src")
        if p.is_trans and c.is_valu and not c.is_trans and vw & c.rset:
            upd(1, "trans->valu")
        if p.is_trans and (c.is_vmem or c.is_ds or c.is_mfma) and vw & c.rset:
            upd(2 if c.is_mfma else 1, "trans->mem")
        if c.op.startswith(("v_readlane", "v_readfirstlane")) and vw & c.rset:
            upd(1, "valu->readlane")
        if c.op.startswith("v_permlane") and vw & c.rset:
            upd(2, "valu->permlane")
        if ("dpp" in c.op or "row_" in c.mods or "quad_perm" in c.mods) and vw & c.rset:
            upd(2, "valu->dpp")
        if c.is_vmem and sw & c.rset:
            upd(5, "valu sgpr->vmem")
        if c.is_valu and sw & c.rset:
            upd(2, "valu sgpr->valu")
        if c.op.startswith(("v_readlane", "v_writelane")) and sw & c.rset:
            upd(4, "valu sgpr->lane select")
        if c.is_salu and sw & c.rset:
            upd(1, "valu sgpr->salu (pad)")
        if p.is_dot:
            if (c.is_valu or c.is_vmem or c.is_ds) and (vw & (c.rset | c.wset)):
                same_c = c.op == p.op and c.is_dot and not (vw & set(sum([parse_regs(o) for o in c.ops[1:3]], [])))
                if not same_c:
                    upd(3, "dot->other")
        if ("s", 126) in sw and (c.is_mfma):
            upd(4, "valu exec->mfma")
        if "sdwa" in p.op or "op_sel" in p.mods:
            if c.is_valu and vw & (c.rset | c.wset):
                upd(1, "sdwa/opsel->valu")
    if p.is_mfma:
        n = p.passes
        tab_other = {2: 5, 4: 8, 8: 12, 16: 20}[n]
        tab_c = {2: 4, 4: 6, 8: 10, 16: 18}[n]
        if c.is_mfma:
            if vw & (set(c.srcA) | set(c.srcB)):
                upd(tab_other, "mfma->mfma AB")
            if vw & set(c.srcC):
                if not (list(c.srcC) == list(p.writes) and c.passes == p.passes):
                    upd(tab_c, "mfma->mfma C overlap")
            elif vw & c.wset:
                upd(tab_c, "mfma->mfma WAW (pad)")
        elif (c.is_valu or c.is_vmem or c.is_ds) and (vw & (c.rset | c.wset)):
            upd(tab_other, "mfma->valu/mem")
        if c.is_valu and set(p.srcC) & c.wset:
            upd({2: 1, 4: 3, 8: 7, 16: 15}[n], "mfma C WAR")
        if (c.is_ds or c.is_vmem) and set(p.srcC) & c.wset:
            upd({2: 1, 4: 3, 8: 7, 16: 15}[n], "mfma C WAR(mem)")
    if p.is_salu and ("s", 124) in sw and (c.is_lds_dma or "addtid" in c.op):
        upd(1, "m0->dma")
    if p.is_store and len(getattr(p, "data", [])) >= 3:
        if set(p.data) & c.wset:
            upd(2 if c.is_valu else 1, "store data WAR")
    if p.is_ds and p.op.startswith("ds_write") and False:
        pass
    return need, why

def check(asm, verbose=True):
    lines = asm.splitlines()
    ins = []
    labels = {}
    for i, ln in enumerate(lines, 1):
        s = ln.split(";")[0].strip()
        if not s or s.startswith("."):
            continue
        m = re.match(r"^([\w.$]+):\s*(.*)$", s)
        if m:
            labels[m.group(1)] = len(ins)
            s = m.group(2).strip()
            if not s:
                continue
        if re.match(r"^(amdhsa|\-|\{|---|\.\.\.)", s):
            continue
        ins.append(Ins(s, i))
    n = len(ins)
    preds = [[] for _ in range(n + 1)]
    for i, x in enumerate(ins):
        if x.op == "s_endpgm":
            continue
        if x.op == "s_branch":
            preds[labels[x.ops[0]]].append(i)
            continue
        if x.op.startswith("s_cbranch"):
            preds[labels[x.ops[0]]].append(i)
        preds[i + 1].append(i)
    bad = []
    for ci, c in enumerate(ins):
        stack = [(p, 0) for p in preds[ci]]
        seen = {}
        while stack:
            pi, dist = stack.pop()
            if dist >= 20:
                continue
            if pi in seen and seen[pi] <= dist:
                continue
            seen[pi] = dist
            p = ins[pi]
            need, why = required(p, c)
            if need > dist:
                bad.append((c.lineno, p.lineno, need, dist, why, p.text, c.text))
            for q in preds[pi]:
                stack.append((q, dist + p.states))
    if verbose:
        for b in bad:
            print(f"HAZARD line {b[0]} (producer line {b[1]}): need {b[2]} have {b[3]} [{b[4]}]\n    P: {b[5]}\n    C: {b[6]}")
    return bad

if __name__ == "__main__":
    b = check(open(sys.argv[1]).read())
    print(len(b), "hazards")
```

```python
import sys, struct
sys.path.insert(0, "gen")
import hazard

NAME = "sequential_preLN__softmax_full_mha__geglu_ffn__prompt"

WS_Q   = 0x000000
WS_KV  = 0x200000
WS_O   = 0x600000
WS_H   = 0x800000
WS_ST  = 0xA00000
WS_CS  = 0xA40000
WS_WO  = 0xB00000
WS_WD  = 0xC00000
WS_WGU = 0xE00000
WS_A   = 0x1200000
WS_END = 0x1800000
OOB    = 0x7FFF0000
WS_DBG = 0x2000000
STAMP = False
import os
NODMA = int(os.environ.get('NODMA', '0'))
TICK = int(os.environ.get('TICK', '0'))

def f32(x):
    return "0x%08x" % struct.unpack("<I", struct.pack("<f", x))[0]

class K:
    def __init__(self, name):
        self.name = name
        self.lines = []
        self.nv = 0
        self.maxs = 0
    def e(self, s):
        if NODMA and (s.endswith(" lds") or s.startswith("s_load_dword s48")) and not self.name.startswith("k2"):
            s = "s_nop 0"
        self.lines.append("    " + s)
    def c(self, s):
        self.lines.append("    ; " + s)
    def label(self, l):
        self.lines.append(f"{self.name}_{l}:")
    def L(self, l):
        return f"{self.name}_{l}"
    def v(self, n=1, align=None):
        if align is None:
            align = 1 if n == 1 else (2 if n == 2 else 4)
        self.nv = (self.nv + align - 1) // align * align
        r = self.nv
        self.nv += n
        return r
    def stamp(self, idx):
        if not STAMP:
            return
        self.e(f"s_memtime s[{64+2*idx}:{65+2*idx}]")
        if idx in (3, 4):
            self.e(f"s_memrealtime s[{80+2*idx}:{81+2*idx}]")
        self.nstamp = max(getattr(self, "nstamp", 0), idx + 1)
    def tick(self):
        if not TICK:
            return
        n = getattr(self, "ntick", 0)
        self.e(f"s_memtime s[{52+2*n}:{53+2*n}]")
        self.ntick = n + 1
    def tick_flush(self, kidx):
        if not TICK:
            return
        n = self.ntick
        self.e("s_waitcnt vmcnt(0) lgkmcnt(0)")
        self.e(f"s_add_u32 s44, s8, {hex(WS_DBG + kidx*0x40000)}")
        self.e("s_addc_u32 s45, s9, 0")
        self.e("s_mov_b32 s46, 0x40000")
        self.e("s_mov_b32 s47, 0x00020000")
        self.e("s_lshl_b32 s48, s2, 3")
        self.e("s_add_u32 s48, s48, s24")
        self.e("s_lshl_b32 s48, s48, 7")
        self.e("v_mov_b32 v2, 0")
        for i in range(n):
            self.e(f"v_mov_b32 v0, s{52+2*i}")
            self.e(f"buffer_store_dword v0, v2, s[44:47], s48 offen offset:{i*4}")
        self.e("s_endpgm")
    def stamp_flush(self, kidx):
        if not STAMP:
            return
        n = self.nstamp
        self.e("s_waitcnt vmcnt(0) lgkmcnt(0)")
        self.stamp(n)
        self.e("s_memrealtime s[62:63]")
        n += 1
        self.e("s_waitcnt lgkmcnt(0)")
        self.e(f"s_add_u32 s56, s8, {hex(WS_DBG + kidx*0x40000)}")
        self.e("s_addc_u32 s57, s9, 0")
        self.e("s_mov_b32 s58, 0x40000")
        self.e("s_mov_b32 s59, 0x00020000")
        self.e("s_lshl_b32 s60, s2, 3")
        self.e("s_add_u32 s60, s60, s24")
        self.e("s_lshl_b32 s60, s60, 7")
        self.e("v_mov_b32 v2, 0")
        for i in range(n):
            self.e(f"v_mov_b32 v0, s{64+2*i}")
            self.e(f"v_mov_b32 v1, s{80+2*i if i in (3, 4) else 62}")
            self.e(f"buffer_store_dwordx2 v[0:1], v2, s[56:59], s60 offen offset:{i*8}")
    def text(self, nsgpr=102):
        nv = max(self.nv, 8)
        acc = (nv + 3) // 4 * 4
        head = f""".text
.globl {self.name}
.p2align 8
.type {self.name},@function
{self.name}:
"""
        tail = f"""
.section .rodata,"a"
.p2align 6
.amdhsa_kernel {self.name}
  .amdhsa_next_free_vgpr {nv}
  .amdhsa_next_free_sgpr {nsgpr}
  .amdhsa_accum_offset {acc}
  .amdhsa_group_segment_fixed_size 0
  .amdhsa_kernarg_size 80
  .amdhsa_user_sgpr_count 2
  .amdhsa_user_sgpr_kernarg_segment_ptr 1
  .amdhsa_system_sgpr_workgroup_id_x 1
.end_amdhsa_kernel
"""
        return head + "\n".join(self.lines) + tail

def vr(b, n):
    return f"v[{b}:{b+n-1}]" if n > 1 else f"v{b}"
def sr(b, n):
    return f"s[{b}:{b+n-1}]" if n > 1 else f"s{b}"

def srd(k, d, base, nbytes):
    k.e(f"s_mov_b32 s{d}, s{base}")
    k.e(f"s_mov_b32 s{d+1}, s{base+1}")
    k.e(f"s_mov_b32 s{d+2}, {hex(nbytes)}")
    k.e(f"s_mov_b32 s{d+3}, 0x00020000")

def mfma32(k, d, a, b, c=None):
    cs = vr(d, 16) if c is None else (c if isinstance(c, str) else vr(c, 16))
    k.e(f"v_mfma_f32_32x32x16_bf16 {vr(d,16)}, {vr(a,4)}, {vr(b,4)}, {cs}")
def mfma16(k, d, a, b):
    k.e(f"v_mfma_f32_16x16x32_bf16 {vr(d,4)}, {vr(a,4)}, {vr(b,4)}, {vr(d,4)}")

def interleave(k, mains, fillers, per):
    fi = 0
    for m in mains:
        k.e(m)
        for _ in range(per):
            if fi < len(fillers):
                k.e(fillers[fi]); fi += 1
    while fi < len(fillers):
        k.e(fillers[fi]); fi += 1

def tile_map_32x8(k, s_tm, s_tn, t0, t1):
    k.e(f"s_and_b32 s{s_tm}, s2, 6")
    k.e(f"s_lshl_b32 s{s_tm}, s{s_tm}, 2")
    k.e(f"s_bfe_u32 s{t0}, s2, 0x30003")
    k.e(f"s_add_u32 s{s_tm}, s{s_tm}, s{t0}")
    k.e(f"s_and_b32 s{s_tn}, s2, 1")
    k.e(f"s_lshl_b32 s{s_tn}, s{s_tn}, 2")
    k.e(f"s_lshr_b32 s{t1}, s2, 6")
    k.e(f"s_add_u32 s{s_tn}, s{s_tn}, s{t1}")

def ln_finish(k, vS, vQ, vNegM, vRstd, t0, t1):
    k.e(f"v_mul_f32 v{vS}, {f32(1.0/512)}, v{vS}")
    k.e(f"v_mul_f32 v{vQ}, {f32(1.0/512)}, v{vQ}")
    k.e(f"v_fma_f32 v{vQ}, -v{vS}, v{vS}, v{vQ}")
    k.e(f"v_max_f32 v{vQ}, 0, v{vQ}")
    k.e(f"v_cvt_pk_bf16_f32 v{vNegM}, -v{vS}, -v{vS}")
    k.e(f"v_cvt_pk_bf16_f32 v{t0}, v{vQ}, v{vQ}")
    k.e(f"v_lshlrev_b32 v{t0}, 16, v{t0}")
    k.e(f"v_add_f32 v{t0}, {f32(1e-5)}, v{t0}")
    k.e(f"v_cvt_pk_bf16_f32 v{t0}, v{t0}, v{t0}")
    k.e(f"v_lshlrev_b32 v{t0}, 16, v{t0}")
    k.e(f"v_sqrt_f32 v{t0}, v{t0}")
    k.e("s_nop 0")
    k.e(f"v_cvt_pk_bf16_f32 v{t0}, v{t0}, v{t0}")
    k.e(f"v_lshlrev_b32 v{t0}, 16, v{t0}")
    k.e(f"v_rcp_f32 v{vRstd}, v{t0}")
    k.e("s_nop 0")

def split2(k, vcs, vdst, t0):
    k.e(f"v_cvt_pk_bf16_f32 v{t0}, v{vcs}, v{vcs}")
    k.e(f"v_lshlrev_b32 v{t0}, 16, v{t0}")
    k.e(f"v_sub_f32 v{t0}, v{vcs}, v{t0}")
    k.e(f"v_cvt_pk_bf16_f32 v{vdst}, v{vcs}, v{t0}")

import os
ROT = int(os.environ.get("ROT", "0"))
PREFETCH = int(os.environ.get("PREFETCH", "1"))
PREP_ST = os.environ.get("PREP_ST", "sc1")
ZROWS = int(os.environ.get("ZROWS", "1"))
G64_NSLOT = int(os.environ.get("G64_NSLOT", "6"))
G64_D = int(os.environ.get("G64_D", "4"))
K1MAP = int(os.environ.get("K1MAP", "0"))
ROWMAP = int(os.environ.get("ROWMAP", "1"))
WDPF = int(os.environ.get("WDPF", "2"))
SPF = int(os.environ.get("SPF", "128"))
WNT = os.environ.get("WNT", "")
K1_D = int(os.environ.get("K1_D", "4"))
K1_SPF = int(os.environ.get("K1_SPF", "0"))
K1_PER = int(os.environ.get("K1_PER", "3"))
K1_CODEPF = int(os.environ.get("K1_CODEPF", "44"))
ACTPF = int(os.environ.get("ACTPF", "0"))
K1_NOSTAT = int(os.environ.get("K1_NOSTAT", "0"))
K1_PRIO = int(os.environ.get("K1_PRIO", "0"))
def wave_setup(k, vt):
    k.e(f"v_lshrrev_b32 v{vt}, 6, v0")
    k.e("v_and_b32 v0, 63, v0")
    k.e(f"v_readfirstlane_b32 s24, v{vt}")

def adv(k, sreg, step, wrap):
    return [f"s_add_u32 s{sreg}, s{sreg}, {step}", f"s_cmp_eq_u32 s{sreg}, {wrap}", f"s_cselect_b32 s{sreg}, 0, s{sreg}"]

def spread(k, mains, reads, others, rper, oper):
    ri = oi = 0
    for m in mains:
        k.e(m)
        n = 0
        while ri < len(reads) and n < rper:
            k.e(reads[ri]); ri += 1; n += 1
        if ri >= len(reads):
            while oi < len(others) and n < oper:
                k.e(others[oi]); oi += 1; n += 1
    for x in reads[ri:] + others[oi:]:
        k.e(x)

def consumer_loop_m(k, nhalf, pre_stage, reads, mfmas, per, cnt=40, barA=True):
    for x in pre_stage(0): k.e(x)
    k.e(f"s_mov_b32 s{cnt}, {nhalf//2}")
    k.stamp(2)
    k.e("s_barrier")
    k.stamp(3)
    for x in reads(0): k.e(x)
    for x in pre_stage(1): k.e(x)
    k.e("s_waitcnt lgkmcnt(0)")
    if not barA:
        k.e("s_barrier")
    k.e(f"s_branch {k.L('cin')}")
    m0, m1 = mfmas(0), mfmas(1)
    k.label("cloop")
    k.e("s_waitcnt lgkmcnt(0)")
    k.e(m1[-1])
    k.label("cin")
    if barA:
        k.e("s_barrier")
    spread(k, m0[:-1], reads(1), pre_stage(0) + [f"s_sub_u32 s{cnt}, s{cnt}, 1", f"s_cmp_eq_u32 s{cnt}, 0"], per, 5)
    k.e("s_waitcnt lgkmcnt(0)")
    k.e(m0[-1])
    k.e(f"s_cbranch_scc1 {k.L('cpost')}")
    k.e("s_barrier")
    spread(k, m1[:-1], reads(0), pre_stage(1), per, 5)
    k.e(f"s_branch {k.L('cloop')}")
    k.label("cpost")
    k.stamp(4)

def consumer_loop_s(k, nst, pre_stage, reads, mfmas, cnt=40):
    nr = len(reads(0))
    for x in pre_stage(): k.e(x)
    k.e(f"s_mov_b32 s{cnt}, {nst//2}")
    k.stamp(2)
    k.e("s_barrier")
    k.stamp(3)
    for x in reads(0): k.e(x)
    for x in pre_stage(): k.e(x)
    k.label("cloop")
    k.e("s_barrier")
    for x in reads(1): k.e(x)
    k.e(f"s_waitcnt lgkmcnt({nr})")
    interleave(k, mfmas(0), pre_stage() + [f"s_sub_u32 s{cnt}, s{cnt}, 1", f"s_cmp_eq_u32 s{cnt}, 0"], 3)
    k.e(f"s_cbranch_scc1 {k.L('cpost')}")
    k.e("s_barrier")
    for x in reads(0): k.e(x)
    k.e(f"s_waitcnt lgkmcnt({nr})")
    interleave(k, mfmas(1), pre_stage(), 3)
    k.e(f"s_branch {k.L('cloop')}")
    k.label("cpost")
    k.stamp(4)

def loader_loop(k, nst, D, n, issue, cnt=40, hooks=(), split_first=False):
    k.e(f"s_mov_b32 s{cnt}, 0")
    k.label("lloop")
    k.e(f"s_cmp_lt_u32 s{cnt}, {D}")
    k.e(f"s_cbranch_scc1 {k.L('lskip')}")
    if STAMP or split_first:
        k.e(f"s_cmp_eq_u32 s{cnt}, {D}")
        k.e(f"s_cbranch_scc0 {k.L('lst')}")
        k.stamp(2)
        if split_first:
            k.e(f"s_waitcnt vmcnt({n*(D-1) + n//2})")
            k.e("s_barrier")
        k.label("lst")
    k.e(f"s_waitcnt vmcnt({n*(D-1)})")
    k.e("s_barrier")
    k.label("lskip")
    issue()
    for hi, (at, fn) in enumerate(hooks):
        k.e(f"s_cmp_eq_u32 s{cnt}, {at}")
        k.e(f"s_cbranch_scc0 {k.L('lh%d' % hi)}")
        fn()
        k.label("lh%d" % hi)
    k.e(f"s_add_u32 s{cnt}, s{cnt}, 1")
    k.e(f"s_cmp_lt_u32 s{cnt}, {nst}")
    k.e(f"s_cbranch_scc1 {k.L('lloop')}")
    k.stamp(3)
    for i in range(D):
        k.e(f"s_waitcnt vmcnt({n*(D-1-i)})")
        k.e("s_barrier")
    k.stamp(4)

def pkmul_bcast(k, d, s):
    if s % 2 == 0:
        k.e(f"v_pk_mul_f32 {vr(d,2)}, {vr(d,2)}, {vr(s,2)} op_sel_hi:[1,0]")
    else:
        k.e(f"v_pk_mul_f32 {vr(d,2)}, {vr(d,2)}, {vr(s-1,2)} op_sel:[0,1]")

def code_prefetch(k, sp, swave, nlines):
    if not nlines:
        return
    k.e(f"s_getpc_b64 s[{sp}:{sp+1}]")
    k.e(f"s_and_b32 s{sp+2}, s24, 3")
    k.e(f"s_lshl_b32 s{sp+2}, s{sp+2}, 7")
    k.e(f"s_add_u32 s{sp}, s{sp}, s{sp+2}")
    k.e(f"s_addc_u32 s{sp+1}, s{sp+1}, 0")
    for i in range(0, nlines, 4):
        k.e(f"s_load_dword s{sp+2}, s[{sp}:{sp+1}], {i*128}")
    k.e("s_waitcnt lgkmcnt(0)")

def gen_k1():
    k = K("k1_qkv_kernel")
    XP = 1040
    XH = 32 * XP
    WBASE = 2 * XH
    NSLOT = 7
    D = K1_D
    SLOT = 12288
    MISC = WBASE + NSLOT * SLOT
    MISC2 = MISC + 1024
    k.lds = MISC2 + 4096
    assert MISC2 % 2048 == 0
    vl = k.v(); vt0 = k.v(); vt1 = k.v(); vt2 = k.v()
    vL16 = k.v()
    vXp = [k.v(), k.v()]; vXm = [k.v(), k.v()]
    vW0 = [k.v(), k.v()]; vW1 = [k.v(), k.v()]
    vR = k.v(2); vR2 = vR + 1
    sel = k.v(4)
    cs = [k.v(4) for _ in range(3)]
    acc = [k.v(16) for _ in range(3)]
    sets = [dict(XA=k.v(4), XB=k.v(4), WA=[k.v(4) for _ in range(3)], WB=[k.v(4) for _ in range(3)]) for _ in range(2)]
    BP = k.v(4); AP = [k.v(4) for _ in range(3)]
    RR = sets[0]['WA'][0]
    assert k.nv <= 168
    k.e("s_cmp_ge_u32 s2, 256")
    k.e(f"s_cbranch_scc1 {k.L('end')}")
    k.stamp(0)
    k.tick()
    k.e("s_load_dwordx4 s[4:7], s[0:1], 0")
    k.e("s_load_dwordx2 s[8:9], s[0:1], 72")
    wave_setup(k, vt0)
    tile_map_32x8(k, 25, 26, 27, 28)
    k.e(f"v_lshrrev_b32 v{vt1}, 5, v0")
    k.e("s_cmp_ge_u32 s24, 4")
    k.e(f"s_cbranch_scc1 {k.L('cons')}")
    vWg = vXp[0]; vXg = vXp[1]
    k.e(f"v_lshrrev_b32 v{vt0}, 3, v0")
    k.e(f"v_mul_u32_u24 v{vWg}, 3072, v{vt0}")
    k.e(f"v_lshrrev_b32 v{vt0}, 2, v0")
    k.e(f"v_and_b32 v{vt0}, 4, v{vt0}")
    k.e(f"v_xor_b32 v{vt0}, v{vt0}, v0")
    k.e(f"v_and_b32 v{vt0}, 7, v{vt0}")
    k.e(f"v_lshl_add_u32 v{vWg}, v{vt0}, 4, v{vWg}")
    k.e(f"v_lshlrev_b32 v{vt0}, 3, v{vt1}")
    k.e(f"v_xor_b32 v{vt0}, v{vt0}, v0")
    k.e(f"v_lshl_add_u32 v{vt0}, s27, 2, v{vt0}")
    k.e(f"v_and_b32 v{vt0}, 31, v{vt0}")
    k.e(f"v_lshlrev_b32 v{vXg}, 10, v{vt1}")
    k.e(f"v_lshl_add_u32 v{vXg}, v{vt0}, 4, v{vXg}")
    k.e("s_lshl_b32 s31, s25, 16")
    k.e("s_lshl_b32 s36, s24, 11")
    k.e("s_add_u32 s31, s31, s36")
    k.e(f"s_mul_i32 s29, s24, {XP}")
    for g in range(4):
        k.e(f"s_add_u32 s36, s28, {g}")
        k.e("s_and_b32 s36, s36, 3")
        k.e(f"s_mul_i32 s{44+g}, s36, {8*XP}")
        k.e(f"s_add_u32 s{44+g}, s{44+g}, s29")
        k.e("s_lshl_b32 s36, s36, 14")
        k.e(f"s_add_u32 s{48+g}, s36, s31")
    k.e(f"s_mul_i32 s32, s24, {8*3072}")
    k.e("s_lshl_b32 s33, s26, 7")
    k.e("s_add_u32 s32, s32, s33")
    k.e(f"s_mul_i32 s33, s27, {32*3072}")
    k.e("s_add_u32 s33, s33, s32")
    k.e(f"s_add_u32 s35, s32, {256*3072}")
    k.e("s_mul_i32 s34, s24, 3072")
    k.e(f"s_add_u32 s34, s34, {WBASE}")
    k.e(f"s_mov_b32 s14, {2048*1024}")
    k.e("s_mov_b32 s15, 0x00020000")
    k.e(f"s_mov_b32 s18, {512*3072}")
    k.e("s_mov_b32 s19, 0x00020000")
    k.e("s_mov_b32 m0, s44")
    k.e("s_waitcnt lgkmcnt(0)")
    k.stamp(1)
    k.e("s_mov_b64 s[12:13], s[4:5]")
    k.e("s_mov_b64 s[16:17], s[6:7]")
    first = [True]
    nout = []
    def xgrp(g, half):
        if not first[0]:
            k.e(f"s_add_u32 m0, s{44+g}, {half*(XH-512)}")
            k.e(f"s_add_u32 s36, s{48+g}, 8192")
        else:
            k.e(f"s_add_u32 s36, s{48+g}, 8192")
        first[0] = False
        k.e(f"buffer_load_dwordx4 v{vXg}, s[12:15], s{48+g} offen offset:{half*512} lds")
        k.e(f"s_add_u32 m0, s{44+g}, {half*(XH-512) + 4*XP}")
        k.e("s_nop 0")
        k.e(f"buffer_load_dwordx4 v{vXg}, s[12:15], s36 offen offset:{half*512} lds")
        nout.extend([("x", half)] * 2)
    def wstage(q):
        k.e(f"s_add_u32 m0, s34, {(q % NSLOT)*SLOT}")
        k.e(f"s_add_u32 s36, s33, {32*3072}")
        for g in range(3):
            k.e(f"buffer_load_dwordx4 v{vWg}, s[16:19], s33 offen offset:{g*1024} lds")
        if q == 7:
            k.e("s_cmp_eq_u32 s36, s35")
            k.e("s_cselect_b32 s33, s32, s36")
            k.e(f"s_add_u32 s33, s33, {256*3072}")
            k.e("s_mov_b32 s32, s35")
            k.e(f"s_add_u32 s35, s35, {256*3072}")
        elif q < 15:
            k.e("s_cmp_eq_u32 s36, s35")
            k.e("s_cselect_b32 s33, s32, s36")
        nout.extend([("w", q)] * 3)
    def wait_for(s):
        need = lambda t: (t[0] == "w" and t[1] <= s) or (t[0] == "x" and t[1] <= (1 if s >= 5 else 0))
        last = max(i for i, t in enumerate(nout) if need(t))
        k.e(f"s_waitcnt vmcnt({len(nout) - 1 - last})")
        k.e("s_barrier")
        k.tick()
    xgrp(0, 0); wstage(0)
    for g in (1, 2, 3): xgrp(g, 0)
    for q in range(1, D): wstage(q)
    k.stamp(2)
    for s in range(16):
        wait_for(s)
        if s < 2:
            xgrp(2*s, 1); xgrp(2*s+1, 1)
        if s + D < 16:
            wstage(s + D)
        if s == 15 - D:
            k.stamp(3)
    k.stamp(4)
    k.tick_flush(1)
    k.e(f"s_branch {k.L('fin')}")
    k.label("cons")
    k.e("s_cmp_ge_u32 s24, 8")
    k.e(f"s_cbranch_scc1 {k.L('stat')}")
    if K1_PRIO: k.e(f"s_setprio {K1_PRIO}")
    k.e(f"v_lshlrev_b32 v{vL16}, 4, v0")
    k.e("s_and_b32 s33, s24, 1")
    k.e("s_bfe_u32 s34, s24, 0x10001")
    k.e("s_xor_b32 s35, s33, s34")
    k.e(f"v_bfe_u32 v{vt0}, v0, 1, 4")
    k.e(f"v_mul_u32_u24 v{vt2}, {XP}, v{vt0}")
    k.e(f"v_lshl_add_u32 v{vt2}, v{vt1}, 4, v{vt2}")
    k.e(f"v_and_b32 v{vt0}, 1, v0")
    k.e(f"v_mul_u32_u24 v{vXp[0]}, {512+128}, v{vt0}")
    k.e(f"v_mul_u32_u24 v{vXm[0]}, {512-128}, v{vt0}")
    k.e(f"s_mul_i32 s36, s33, {16*XP}")
    k.e("s_lshl_b32 s37, s35, 5")
    k.e("s_add_u32 s38, s36, s37")
    k.e("s_xor_b32 s37, s37, 32")
    k.e("s_add_u32 s39, s36, s37")
    k.e(f"v_add3_u32 v{vXp[1]}, v{vXp[0]}, v{vt2}, s39")
    k.e(f"v_add3_u32 v{vXm[1]}, v{vXm[0]}, v{vt2}, s39")
    k.e(f"v_add3_u32 v{vXp[0]}, v{vXp[0]}, v{vt2}, s38")
    k.e(f"v_add3_u32 v{vXm[0]}, v{vXm[0]}, v{vt2}, s38")
    w = vW1[1]
    k.e(f"v_mul_u32_u24 v{w}, 3072, v{vt1}")
    k.e(f"v_bfe_u32 v{vt0}, v0, 2, 2")
    k.e(f"v_lshl_add_u32 v{w}, v{vt0}, 7, v{w}")
    k.e(f"v_bfe_u32 v{vt0}, v0, 3, 1")
    k.e(f"v_xor_b32 v{vt0}, s34, v{vt0}")
    k.e(f"v_lshl_add_u32 v{w}, v{vt0}, 6, v{w}")
    k.e(f"v_bfe_u32 v{vt0}, v0, 4, 1")
    k.e(f"v_lshl_add_u32 v{w}, v{vt0}, 5, v{w}")
    k.e(f"v_and_b32 v{vt2}, 3, v0")
    k.e(f"v_lshl_add_u32 v{w}, v{vt2}, 3, v{w}")
    k.e("s_mul_i32 s28, s35, 6144")
    k.e(f"s_add_u32 s36, s28, {WBASE}")
    k.e(f"s_sub_u32 s37, {WBASE+6144}, s28")
    k.e(f"v_add_u32 v{vW0[0]}, s36, v{w}")
    k.e(f"v_add_u32 v{vW0[1]}, s37, v{w}")
    k.e(f"v_add_u32 v{vW1[0]}, {4*SLOT}, v{vW0[0]}")
    k.e(f"v_add_u32 v{vW1[1]}, {4*SLOT}, v{vW0[1]}")
    k.e(f"v_bfe_u32 v{vt2}, v0, 2, 1")
    k.e(f"v_cmp_eq_u32 vcc, v{vt0}, v{vt2}")
    k.e(f"v_mov_b32 v{vt2}, 0x3f803f80")
    k.e("s_nop 0")
    k.e(f"v_cndmask_b32 v{sel}, 0, v{vt2}, vcc")
    for i in range(1, 4):
        k.e(f"v_mov_b32 v{sel+i}, v{sel}")
    for z in list(range(BP, BP + 16)):
        k.e(f"v_mov_b32 v{z}, 0")
    k.e("s_lshl_b32 s27, s26, 2")
    k.e("s_lshl_b32 s28, s34, 1")
    k.e("s_add_u32 s27, s27, s28")
    k.e("s_lshl_b32 s27, s27, 6")
    k.e("s_lshl_b32 s28, s25, 1")
    k.e("s_add_u32 s27, s27, s28")
    k.e("s_add_u32 s27, s27, s33")
    k.e("s_lshl_b32 s42, s27, 10")
    k.e("s_add_u32 s43, s42, 0x10000")
    k.e("s_lshl_b32 s44, s27, 11")
    k.e(f"s_add_u32 s44, s44, {hex(WS_KV)}")
    k.e("s_add_u32 s45, s44, 0x20000")
    k.e("s_waitcnt lgkmcnt(0)")
    k.stamp(1)
    srd(k, 20, 8, WS_END)
    code_prefetch(k, 46, 33, K1_CODEPF)
    def big(S, first=False):
        r = []
        for n, (X, W) in enumerate(((S['XA'], S['WA']), (S['XB'], S['WB']))):
            c = lambda a: "0" if (first and n == 0) else vr(a, 16)
            r.append(f"v_mfma_f32_32x32x16_bf16 {vr(acc[0],16)}, {vr(W[0],4)}, {vr(X,4)}, {c(acc[0])}")
            r.append(f"v_mfma_f32_32x32x16_bf16 {vr(acc[1],16)}, {vr(W[1],4)}, {vr(X,4)}, {c(acc[1])}")
            r.append(f"v_mfma_f32_32x32x16_bf16 {vr(acc[2],16)}, {vr(X,4)}, {vr(W[2],4)}, {c(acc[2])}")
        return r
    def small(S, first=False):
        return [f"v_mfma_f32_16x16x32_bf16 {vr(cs[g],4)}, {vr(sel,4)}, {vr(S['WA'][g],4)}, {'0' if first else vr(cs[g],4)}" for g in range(3)]
    def reads(q):
        S = sets[q & 1]
        koff = (q & 7) * 64
        xb = vXm if (koff & 128) else vXp
        xo = (q >> 3) * XH + koff
        sl = q % NSLOT
        wb, wo = (vW0, sl * SLOT) if sl < 4 else (vW1, (sl - 4) * SLOT)
        r = []
        for n, (X, W) in enumerate((('XA', 'WA'), ('XB', 'WB'))):
            r.append(f"ds_read_b128 {vr(S[X],4)}, v{xb[n]} offset:{xo}")
            for g in range(3):
                r.append(f"ds_read_b64_tr_b16 {vr(S[W][g],2)}, v{wb[n]} offset:{wo+g*1024}")
                r.append(f"ds_read_b64_tr_b16 {vr(S[W][g]+2,2)}, v{wb[n]} offset:{wo+g*1024+512}")
        return r
    k.stamp(2)
    k.e("s_barrier")
    k.stamp(3)
    for x in reads(0): k.e(x)
    k.e("s_waitcnt lgkmcnt(0)")
    for q in range(15):
        k.e("s_barrier")
        b = big(sets[q & 1], q == 0); s = small(sets[q & 1], q == 0)
        m = b[:5] + s + b[5:]
        spread(k, m[:-1], reads(q + 1), [], K1_PER, 5)
        k.e("s_waitcnt lgkmcnt(0)")
        k.e(m[-1])
    k.stamp(4)
    for m in small(sets[1]): k.e(m)
    k.e(f"v_and_b32 v{vt0}, 31, v0")
    k.e("s_lshl_b32 s27, s33, 7")
    k.e(f"s_add_u32 s27, s27, {MISC}")
    k.e(f"v_lshl_add_u32 v{vt0}, v{vt0}, 2, s27")
    k.e(f"v_lshl_add_u32 v{vt1}, v{vt1}, 4, s27")
    bg = big(sets[1])
    k.e(bg[0])
    k.e(f"ds_read_b32 v{BP}, v{vt0}")
    k.e(f"ds_read_b32 v{vR}, v{vt0} offset:256")
    for j in range(4):
        k.e(f"ds_read_b128 {vr(RR+4*j,4)}, v{vt1} offset:{256+j*32}")
    T = sets[0]['XA']; B = sets[0]['XB']
    k.e(bg[1])
    k.e("s_and_b32 s27, s24, 3")
    k.e("s_lshl_b32 s27, s27, 10")
    k.e(f"s_add_u32 s27, s27, {MISC2}")
    k.e(f"v_add_u32 v{vt1}, s27, v{vL16}")
    for g in range(3):
        k.e(f"v_mov_b32 v{T+g}, v{cs[g]}")
    k.e(f"ds_write_b128 v{vt1}, {vr(T,4)}")
    k.e(bg[2])
    k.e(f"v_xor_b32 v{vt1}, 1024, v{vt1}")
    k.e("v_cmp_gt_u32 vcc, 32, v0")
    k.e("s_waitcnt lgkmcnt(0)")
    k.e(bg[3])
    k.e("s_barrier")
    k.e(f"ds_read_b128 {vr(B,4)}, v{vt1}")
    k.e(bg[4])
    k.e(f"v_cndmask_b32 v{BP}, 0, v{BP}, vcc")
    k.e(f"v_mul_f32 v{vR2}, {f32(0.25*1.4426950408889634)}, v{vR}")
    k.e(f"v_bfe_u32 v{vt0}, v0, 4, 1")
    k.e(f"v_lshlrev_b32 v{vt0}, 17, v{vt0}")
    k.e(f"v_lshrrev_b32 v{vt1}, 5, v0")
    k.e(bg[5])
    k.e(f"v_lshl_add_u32 v{vt0}, v{vt1}, 8, v{vt0}")
    k.e(f"v_and_b32 v{vt1}, 15, v0")
    k.e(f"v_lshl_add_u32 v{vt0}, v{vt1}, 4, v{vt0}")
    k.e("s_waitcnt lgkmcnt(0)")
    for g in range(3):
        k.e(f"v_add_f32 v{T+g}, v{T+g}, v{B+g}")
        split2(k, T + g, AP[g], vt2)
        if g == 1: mfma32(k, acc[0], AP[0], BP)
        if g == 2: mfma32(k, acc[1], AP[1], BP)
    k.e("s_nop 0")
    mfma32(k, acc[2], BP, AP[2])
    k.e("s_nop 4")
    for b, (sc, soffs) in enumerate(((vR2, (42, 43)), (vR, (44, 45)))):
        for i in range(0, 16, 2):
            if b == 0 and i < 8:
                k.e(f"v_mul_f32 v{acc[b]+i}, v{sc}, v{acc[b]+i}")
                k.e(f"v_mul_f32 v{acc[b]+i+1}, v{sc}, v{acc[b]+i+1}")
            else:
                pkmul_bcast(k, acc[b] + i, sc)
        for i in range(8):
            k.e(f"v_cvt_pk_bf16_f32 v{acc[b]+i}, v{acc[b]+2*i}, v{acc[b]+2*i+1}")
        k.e(f"buffer_store_dwordx4 {vr(acc[b],4)}, v{vL16}, s[20:23], s{soffs[0]} offen")
        k.e(f"buffer_store_dwordx4 {vr(acc[b]+4,4)}, v{vL16}, s[20:23], s{soffs[1]} offen")
    a = acc[2]
    for i in range(0, 16, 2):
        k.e(f"v_pk_mul_f32 {vr(a+i,2)}, {vr(a+i,2)}, {vr(RR+i,2)}")
    for i in range(8):
        k.e(f"v_cvt_pk_bf16_f32 v{a+i}, v{a+2*i}, v{a+2*i+1}")
    k.e(f"v_permlane32_swap_b32 v{a}, v{a+2}")
    k.e(f"v_permlane32_swap_b32 v{a+1}, v{a+3}")
    k.e(f"buffer_store_dwordx4 {vr(a,4)}, v{vt0}, s[20:23], s44 offen offset:1024")
    k.e(f"v_permlane32_swap_b32 v{a+4}, v{a+6}")
    k.e(f"v_permlane32_swap_b32 v{a+5}, v{a+7}")
    k.e(f"buffer_store_dwordx4 {vr(a+4,4)}, v{vt0}, s[20:23], s44 offen offset:1536")
    k.label("fin")
    k.stamp_flush(1)
    k.label("end")
    k.e("s_endpgm")
    k.label("stat")
    if K1_NOSTAT:
        k.e("s_endpgm")
    k.e("s_setprio 3")
    vSum = vXp[0]; vSq = vXp[1]; vSum2 = vXm[0]; vSq2 = vXm[1]; vXs = vW0[0]
    k.e("s_and_b32 s29, s24, 3")
    k.e("s_add_u32 s30, s27, 8")
    k.e("s_lshl_b32 s30, s30, 5")
    k.e("s_lshl_b32 s31, s29, 3")
    k.e("s_add_u32 s30, s30, s31")
    k.e("s_mul_i32 s30, s30, 3072")
    k.e("s_lshl_b32 s31, s26, 7")
    k.e("s_add_u32 s30, s30, s31")
    k.e("s_lshl_b32 s31, s25, 6")
    k.e("s_lshl_b32 s32, s28, 4")
    k.e("s_add_u32 s31, s31, s32")
    k.e("s_lshl_b32 s32, s29, 2")
    k.e("s_add_u32 s31, s31, s32")
    k.e("s_lshl_b32 s31, s31, 10")
    k.e("s_add_u32 s31, s31, 512")
    k.e(f"v_and_b32 v{vt0}, 15, v0")
    k.e(f"v_lshrrev_b32 v{vt2}, 1, v{vt0}")
    k.e(f"v_mul_u32_u24 v{vXs}, {XP}, v{vt2}")
    k.e(f"v_and_b32 v{vt2}, 1, v0")
    k.e(f"v_lshl_add_u32 v{vXs}, v{vt2}, 9, v{vXs}")
    k.e(f"v_lshrrev_b32 v{vt1}, 4, v0")
    k.e(f"v_xor_b32 v{vt1}, v{vt1}, v{vt2}")
    k.e(f"v_lshl_add_u32 v{vXs}, v{vt1}, 7, v{vXs}")
    k.e(f"s_mul_i32 s36, s29, {8*XP}")
    k.e(f"v_add_u32 v{vXs}, s36, v{vXs}")
    for z in (vSum, vSq, vSum2, vSq2):
        k.e(f"v_mov_b32 v{z}, 0")
    k.e("s_mov_b32 s41, 0xffff0000")
    k.e("s_mov_b32 s40, 4")
    k.e("s_waitcnt lgkmcnt(0)")
    k.e("s_add_u32 s32, s6, s30")
    k.e("s_addc_u32 s33, s7, 0")
    k.e("s_add_u32 s34, s4, s31")
    k.e("s_addc_u32 s35, s5, 0")
    if K1_SPF:
        pf = [f"s_load_dword s48, s[34:35], {r*1024 + c*128}" for r in range(4) for c in range(4)]
        pf += [f"s_load_dword s48, s[32:33], {r*1024}" for r in range(24)]
        for x in pf[:K1_SPF]: k.e(x)
    XS = [sets[0]['XA'], sets[0]['XB']]
    tl = [sets[1]['XA'] + i for i in range(4)]
    def proc(X):
        for i in range(4):
            a, b = tl[(2*i) % 4], tl[(2*i+1) % 4]
            x = X + i
            for ln in [f"v_lshlrev_b32 v{a}, 16, v{x}", f"v_and_b32 v{b}, s41, v{x}",
                       f"v_fmac_f32 v{vSq}, v{a}, v{a}", f"v_fmac_f32 v{vSq2}, v{b}, v{b}",
                       f"v_add_f32 v{vSum}, v{vSum}, v{a}", f"v_add_f32 v{vSum2}, v{vSum2}, v{b}"]:
                k.e(ln)
    k.e("s_mov_b32 s40, 0")
    k.e("s_barrier")
    k.e(f"ds_read_b128 {vr(XS[0],4)}, v{vXs}")
    k.label("sloop")
    k.e("s_waitcnt lgkmcnt(0)")
    k.e(f"ds_read_b128 {vr(XS[1],4)}, v{vXs} offset:16")
    k.e("s_cmp_eq_u32 s40, 3")
    k.e(f"s_cselect_b32 s36, {XH-96}, 32")
    k.e(f"v_add_u32 v{vXs}, s36, v{vXs}")
    k.e("s_cmp_lt_u32 s40, 2")
    proc(XS[0])
    k.e(f"s_cbranch_scc1 {k.L('snb')}")
    k.e("s_barrier")
    k.label("snb")
    k.e("s_waitcnt lgkmcnt(0)")
    k.e(f"ds_read_b128 {vr(XS[0],4)}, v{vXs}")
    k.e("s_add_u32 s40, s40, 1")
    k.e("s_cmp_lt_u32 s40, 8")
    proc(XS[1])
    k.e("s_barrier")
    k.e(f"s_cbranch_scc1 {k.L('sloop')}")
    k.e(f"v_add_f32 v{vSum}, v{vSum}, v{vSum2}")
    k.e(f"v_add_f32 v{vSq}, v{vSq}, v{vSq2}")
    k.e("s_nop 1")
    k.e(f"v_permlane32_swap_b32 v{vSum}, v{vSq}")
    k.e(f"v_add_f32 v{vSum}, v{vSum}, v{vSq}")
    k.e(f"v_mov_b32 v{vSq}, v{vSum}")
    k.e("s_nop 1")
    k.e(f"v_permlane16_swap_b32 v{vSum}, v{vSq}")
    k.e(f"v_add_f32 v{vSum}, v{vSum}, v{vSq}")
    k.e(f"v_mov_b32 v{vSq}, v{vSum}")
    k.e("s_nop 1")
    k.e(f"v_permlane32_swap_b32 v{vSum}, v{vSq}")
    ln_finish(k, vSum, vSq, vSum2, vSq2, vt2, vt1)
    k.e("s_lshl_b32 s36, s29, 6")
    k.e(f"s_add_u32 s36, s36, {MISC}")
    k.e(f"v_lshl_add_u32 v{vt0}, v{vt0}, 2, s36")
    k.e(f"ds_write2_b32 v{vt0}, v{vSum2}, v{vSq2} offset0:0 offset1:64")
    k.e("s_waitcnt lgkmcnt(0)")
    k.e("s_barrier")
    k.e("s_endpgm")
    return k

def gen_k2():
    k = K("k2_attn_kernel")
    STG = 131072
    k.lds = STG + 32768
    vl = k.v(); vt0 = k.v(); vt1 = k.v(); vL16 = k.v(); vK = k.v(); vV = k.v(); vSrc = k.v(); vDst = k.v()
    vIdx = k.v(); vCs = k.v(); vt2 = k.v(); vt3 = k.v()
    Q = k.v(4); KA = k.v(4); KB = k.v(4)
    VA = [k.v(4), k.v(4)]; VB = [k.v(4), k.v(4)]
    PR = [k.v(4) for _ in range(4)]
    NM = k.v(16); SA = k.v(16); SB = k.v(16); O = k.v(16)
    k.e("s_cmp_ge_u32 s2, 256")
    k.e(f"s_cbranch_scc1 {k.L('end')}")
    k.stamp(0)
    k.e("s_load_dwordx2 s[8:9], s[0:1], 72")
    k.e("s_load_dwordx2 s[4:5], s[0:1], 16")
    k.e("s_load_dwordx4 s[12:15], s[0:1], 32")
    k.e("s_load_dwordx2 s[6:7], s[0:1], 48")
    wave_setup(k, vt0)
    k.e(f"v_lshlrev_b32 v{vL16}, 4, v0")
    k.e("s_and_b32 s25, s2, 1")
    k.e("s_lshl_b32 s25, s25, 4")
    k.e("s_bfe_u32 s27, s2, 0x40003")
    k.e("s_add_u32 s25, s25, s27")
    k.e("s_and_b32 s40, s2, 6")
    k.e("s_lshr_b32 s26, s2, 7")
    k.e("s_add_u32 s26, s26, s40")
    k.e("s_lshl_b32 s40, s40, 14")
    k.e("s_lshl_b32 s26, s26, 3")
    k.e("s_add_u32 s26, s26, s24")
    k.e("s_lshl_b32 s27, s25, 6")
    k.e("s_add_u32 s27, s27, s26")
    k.e("s_lshl_b32 s28, s27, 10")
    k.e("s_lshl_b32 s29, s25, 17")
    k.e(f"s_add_u32 s29, s29, {hex(WS_KV)}")
    k.e("s_lshl_b32 m0, s24, 11")
    k.e("s_add_u32 s27, s29, m0")
    k.e("s_add_u32 s27, s27, s40")
    k.e("s_waitcnt lgkmcnt(0)")
    k.stamp(1)
    srd(k, 20, 8, WS_END)
    k.e(f"buffer_load_dwordx4 v{vL16}, s[20:23], s27 offen lds")
    k.e(f"buffer_load_dwordx4 {vr(Q,4)}, v{vL16}, s[20:23], s28 offen")
    k.e(f"buffer_load_dwordx4 v{vL16}, s[20:23], s27 offen offset:1024 lds")
    k.e("s_and_b32 s30, s24, 3")
    k.e("s_lshl_b32 s30, s30, 12")
    k.e("s_cmp_ge_u32 s24, 4")
    k.e("s_cselect_b32 s31, 0x10000, 0x4000" if False else "s_cselect_b32 s31, 4, 1")
    k.e("s_lshl_b32 s31, s31, 14")
    k.e("s_add_u32 s30, s30, s31")
    def bulk(nch, tag):
        k.e(f"s_mov_b32 s31, {nch}")
        k.label(tag)
        k.e("s_mov_b32 m0, s30")
        k.e("s_add_u32 s27, s30, s40")
        k.e("s_and_b32 s27, s27, 0x1ffff")
        k.e("s_add_u32 s27, s27, s29")
        for g in range(4):
            k.e(f"buffer_load_dwordx4 v{vL16}, s[20:23], s27 offen offset:{g*1024} lds")
        k.e("s_add_u32 s30, s30, 16384")
        k.e("s_sub_u32 s31, s31, 1")
        k.e("s_cmp_lg_u32 s31, 0")
        k.e(f"s_cbranch_scc1 {k.L(tag)}")
    k.e(f"v_lshrrev_b32 v{vt1}, 5, v0")
    k.e(f"v_mov_b32 v{vK}, v{vL16}")
    k.e(f"v_lshlrev_b32 v{vV}, 8, v{vt1}")
    k.e(f"v_and_b32 v{vt0}, 15, v0")
    k.e(f"v_lshl_add_u32 v{vV}, v{vt0}, 4, v{vV}")
    k.e(f"v_mov_b32 v{vt0}, 0x3f803f80")
    if ZROWS:
        k.e(f"v_and_b32 v{vt2}, 11, v0")
        k.e(f"v_cmp_eq_u32 vcc, 0, v{vt2}")
        k.e("s_nop 1")
        k.e(f"v_cndmask_b32 v{vt0}, 0, v{vt0}, vcc")
    for r in VA + VB:
        for i in range(4):
            k.e(f"v_mov_b32 v{r+i}, v{vt0}")
    k.e(f"v_mov_b32 v{vIdx}, 0xdddddddd")
    k.e("s_mov_b32 s42, 0x0000ffff")
    k.e("s_mov_b32 s43, 0x0000ffff")
    k.e("s_mov_b32 s44, 0")
    k.e("s_mov_b32 s45, 0")
    k.stamp(2)
    k.e("s_waitcnt vmcnt(0)")
    k.e("s_barrier")
    k.e(f"ds_read_b128 {vr(KA,4)}, v{vK}")
    k.e("s_cmp_ge_u32 s24, 4")
    k.e(f"s_cbranch_scc1 {k.L('nob1')}")
    bulk(3, "bulk1")
    k.label("nob1")
    k.e(f"s_branch {k.L('prep1')}")
    k.label("prep1r")
    k.e("s_waitcnt lgkmcnt(0)")
    mfma32(k, SA, KA, Q, "0")
    k.e("s_nop 7")
    k.e("s_nop 3")
    k.e(f"v_max3_f32 v{vt0}, v{SA}, v{SA+1}, v{SA+2}")
    for i in range(3, 15, 2):
        k.e(f"v_max3_f32 v{vt0}, v{vt0}, v{SA+i}, v{SA+i+1}")
    k.e(f"v_max_f32 v{vt0}, v{vt0}, v{SA+15}")
    k.label("setm")
    k.e(f"ds_read_b128 {vr(KB,4)}, v{vK} offset:2048")
    k.e("s_mov_b64 exec, s[42:43]")
    k.e(f"ds_read_b128 {vr(VA[0],4)}, v{vV} offset:1024")
    k.e(f"ds_read_b128 {vr(VA[1],4)}, v{vV} offset:1536")
    k.e("s_mov_b64 exec, -1")
    k.e(f"v_mov_b32 v{vt1}, v{vt0}")
    k.e("s_nop 1")
    k.e(f"v_permlane32_swap_b32 v{vt0}, v{vt1}")
    k.e(f"v_max_f32 v{vt0}, v{vt0}, v{vt1}")
    for i in range(16):
        k.e(f"v_sub_f32 v{NM+i}, 0, v{vt0}")
    k.e("s_nop 1")
    mfma32(k, SA, KA, Q, NM)
    for i in range(16):
        k.e(f"v_mov_b32 v{O+i}, 0")
    for i in range(8, 16):
        k.e(f"v_mov_b32 v{SB+i}, 0")
    k.e("s_mov_b32 s41, 0")
    k.stamp(3)
    def smf(a, b):
        k.e(f"v_smfmac_f32_32x32x32_bf16 {vr(O,16)}, {vr(a,4)}, {vr(b,8)}, v{vIdx}")
    k.label("loop")
    for t in range(8):
        half = t & 1
        S, Sn = (SA, SB) if half == 0 else (SB, SA)
        Kn, Knn = (KB, KA) if half == 0 else (KA, KB)
        Vc, Vp = (VA, VB) if half == 0 else (VB, VA)
        base = t * 2048
        if half == 0:
            k.e(f"s_setprio {3 - t//2}")
        if t == 6:
            k.e("s_cmp_eq_u32 s41, s44")
            k.e(f"s_cbranch_scc1 {k.L('chk')}")
            k.label("back")
        for i in range(0, 3):
            k.e(f"v_exp_f32 v{S+i}, v{S+i}")
        smf(Vp[1], Sn + 8)
        for i in range(3, 8):
            k.e(f"v_exp_f32 v{S+i}, v{S+i}")
        k.e("s_waitcnt lgkmcnt(2)")
        mfma32(k, Sn, Kn, Q, NM)
        k.e(f"ds_read_b128 {vr(Knn,4)}, v{vK} offset:{base+4096}")
        for i in range(8, 13):
            k.e(f"v_exp_f32 v{S+i}, v{S+i}")
        k.e("s_waitcnt lgkmcnt(1)")
        smf(Vc[0], S)
        k.e("s_mov_b64 exec, s[42:43]")
        k.e(f"ds_read_b128 {vr(Vp[0],4)}, v{vV} offset:{base+2048+1024}")
        k.e(f"ds_read_b128 {vr(Vp[1],4)}, v{vV} offset:{base+2048+1536}")
        k.e("s_mov_b64 exec, -1")
        if t == 7:
            k.e(f"v_add_u32 v{vK}, 0x4000, v{vK}")
            k.e(f"v_add_u32 v{vV}, 0x4000, v{vV}")
            k.e("s_add_u32 s41, s41, 1")
            k.e("s_cmp_lt_u32 s41, 8")
        for i in range(13, 16):
            k.e(f"v_exp_f32 v{S+i}, v{S+i}")
    k.e(f"s_cbranch_scc1 {k.L('loop')}")
    k.stamp(4)
    k.e("s_nop 0")
    smf(VB[1], SB + 8)
    k.e("s_lshr_b32 s27, s26, 1")
    k.e("s_lshl_b32 s27, s27, 5")
    k.e("s_add_u32 s27, s27, s25")
    k.e("s_lshl_b32 s27, s27, 1")
    k.e("s_and_b32 s28, s26, 1")
    k.e("s_add_u32 s27, s27, s28")
    k.e("s_lshl_b32 s27, s27, 10")
    k.e(f"s_add_u32 s27, s27, {hex(WS_O)}")
    k.e("s_waitcnt lgkmcnt(0)")
    k.e(f"v_mov_b32 v{vt1}, {f32(2.0**60)}")
    k.e("s_nop 1")
    k.e(f"v_cmp_nlt_f32 vcc, v{O+8}, v{vt1}")
    k.e(f"v_rcp_f32 v{vt0}, v{O+8}")
    k.e(f"s_cbranch_vccnz {k.L('fb')}")
    k.label("fin")
    for i in range(8):
        k.e(f"v_mul_f32 v{O+i}, v{vt0}, v{O+i}")
    for i in range(4):
        k.e(f"v_cvt_pk_bf16_f32 v{O+i}, v{O+2*i}, v{O+2*i+1}")
    k.e(f"buffer_store_dwordx4 {vr(O,4)}, v{vL16}, s[20:23], s27 offen")
    k.stamp_flush(2)
    k.label("end")
    k.e("s_endpgm")
    k.label("fb")
    k.e("s_cmp_eq_u32 s45, 0")
    k.e(f"s_cbranch_scc0 {k.L('fin')}")
    k.e("s_mov_b32 s45, 1")
    k.e(f"v_mov_b32 v{vK}, v{vL16}")
    k.e(f"v_subrev_u32 v{vV}, 0x20000, v{vV}")
    k.e(f"v_mov_b32 v{vt0}, 0xff800000")
    k.e("s_mov_b32 s41, 0")
    k.label("fbloop")
    k.e(f"ds_read_b128 {vr(KA,4)}, v{vK}")
    k.e(f"v_add_u32 v{vK}, 2048, v{vK}")
    k.e("s_waitcnt lgkmcnt(0)")
    mfma32(k, SA, KA, Q, "0")
    k.e("s_add_u32 s41, s41, 1")
    k.e("s_cmp_lt_u32 s41, 64")
    k.e("s_nop 7")
    k.e("s_nop 3")
    for i in range(0, 16, 2):
        k.e(f"v_max3_f32 v{vt0}, v{vt0}, v{SA+i}, v{SA+i+1}")
    k.e(f"s_cbranch_scc1 {k.L('fbloop')}")
    k.e(f"v_mov_b32 v{vK}, v{vL16}")
    k.e(f"ds_read_b128 {vr(KA,4)}, v{vK}")
    k.e("s_waitcnt lgkmcnt(0)")
    k.e(f"s_branch {k.L('setm')}")
    k.label("chk")
    k.e("s_add_u32 s44, s44, 1")
    k.e("s_cmp_eq_u32 s41, 1")
    k.e(f"s_cbranch_scc1 {k.L('prep2')}")
    k.e("s_cmp_eq_u32 s41, 3")
    k.e(f"s_cbranch_scc1 {k.L('b2')}")
    k.e("s_cmp_lt_u32 s24, 4")
    k.e(f"s_cbranch_scc1 {k.L('b1a')}")
    k.e("s_barrier")
    bulk(4, "bulk2")
    k.e(f"s_branch {k.L('back')}")
    k.label("b1a")
    k.e("s_waitcnt vmcnt(4)")
    k.e("s_cmp_eq_u32 s46, 0")
    k.e(f"s_cbranch_scc0 {k.L('b1b')}")
    k.e("s_waitcnt vmcnt(0)")
    k.label("b1b")
    k.e("s_barrier")
    k.e(f"s_branch {k.L('back')}")
    k.label("prep1")
    k.e("s_sub_u32 s27, 7, s24")
    k.e("s_lshl_b32 s27, s27, 8")
    k.e("s_add_u32 s27, s27, s2")
    k.e("s_mov_b32 s46, 0")
    k.e("s_cmp_ge_u32 s27, 1176")
    k.e(f"s_cbranch_scc1 {k.L('prep1r')}")
    k.e("s_mov_b32 s46, 1")
    k.e(f"v_lshrrev_b32 v{vt1}, 5, v0")
    k.e(f"v_and_b32 v{vt0}, 31, v0")
    k.e("s_cmp_lt_u32 s27, 704")
    k.e(f"s_cbranch_scc0 {k.L('prepB')}")
    k.e("s_cmp_ge_u32 s27, 352")
    k.e("s_cselect_b32 s47, 256, 0")
    k.e("s_cselect_b32 s16, s14, s12")
    k.e("s_cselect_b32 s17, s15, s13")
    k.e("s_cselect_b32 s28, 352, 0")
    k.e("s_sub_u32 s27, s27, s28")
    k.e("s_and_b32 s34, s27, 15")
    k.e("s_lshr_b32 s32, s27, 4")
    k.e(f"s_mov_b32 s18, {512*2752}")
    k.e("s_mov_b32 s33, 2752")
    for p in range(2):
        k.e("s_lshl_b32 s27, s32, 1")
        if p: k.e("s_add_u32 s27, s27, 1")
        k.e("s_mul_i32 s28, s27, 43691")
        k.e("s_lshr_b32 s28, s28, 17")
        k.e("s_mul_i32 s35, s28, 186")
        k.e("s_lshl_b32 s28, s27, 1")
        k.e("s_add_u32 s35, s35, s28")
        k.e("s_mul_i32 s28, s34, 12")
        k.e("s_add_u32 s35, s35, s28")
        k.e("s_lshl_b32 s35, s35, 10")
        k.e(f"s_add_u32 s{36+p}, s35, {hex(WS_WGU)}")
    k.e("s_cmp_eq_u32 s32, 21")
    k.e(f"s_cselect_b32 s37, {hex(OOB)}, s37")
    k.e("s_mov_b32 s38, 6144")
    k.e(f"v_lshrrev_b32 v{vt2}, 4, v{vt0}")
    k.e(f"v_and_b32 v{vt3}, 15, v0")
    k.e(f"v_lshlrev_b32 v{vt3}, 4, v{vt3}")
    k.e(f"v_add_u32 v{vt3}, s47, v{vt3}")
    k.e(f"v_lshl_add_u32 v{vDst}, v{vt2}, 10, v{vt3}")
    k.e(f"v_lshl_add_u32 v{vDst}, v{vt1}, 9, v{vDst}")
    k.e(f"v_lshl_add_u32 v{vCs}, v{vt2}, 11, v{vt3}")
    k.e(f"v_lshl_add_u32 v{vCs}, v{vt1}, 12, v{vCs}")
    k.e("s_lshl_b32 s39, s32, 13")
    k.e("s_lshr_b32 s27, s34, 2")
    k.e("s_lshl_b32 s27, s27, 9")
    k.e("s_add_u32 s39, s39, s27")
    k.e("s_and_b32 s27, s34, 3")
    k.e("s_lshl_b32 s27, s27, 2")
    k.e("s_add_u32 s39, s39, s27")
    k.e(f"s_add_u32 s39, s39, {hex(WS_CS)}")
    k.e(f"s_branch {k.L('prepC')}")
    k.label("prepB")
    k.e("s_cmp_lt_u32 s27, 1048")
    k.e("s_cselect_b32 s16, s6, s4")
    k.e("s_cselect_b32 s17, s7, s5")
    k.e(f"s_mov_b32 s18, {512*1024}")
    k.e(f"s_cselect_b32 s18, {1376*1024}, s18")
    k.e("s_cselect_b32 s35, 86, 32")
    k.e("s_movk_i32 s28, 1048")
    k.e("s_cselect_b32 s28, 704, s28")
    k.e(f"s_mov_b32 s36, {hex(WS_WO)}")
    k.e(f"s_cselect_b32 s36, {hex(WS_WD)}, s36")
    k.e("s_sub_u32 s27, s27, s28")
    k.e("s_and_b32 s32, s27, 7")
    k.e("s_lshr_b32 s34, s27, 3")
    k.e("s_mov_b32 s33, 1024")
    k.e("s_mul_i32 s27, s32, s35")
    k.e("s_lshl_b32 s28, s34, 1")
    k.e("s_add_u32 s27, s27, s28")
    k.e("s_lshl_b32 s27, s27, 11")
    k.e("s_add_u32 s36, s36, s27")
    k.e("s_add_u32 s37, s36, 1024")
    k.e("s_mov_b32 s38, 2048")
    k.e(f"v_mov_b32 v{vDst}, v{vL16}")
    k.e(f"v_mov_b32 v{vCs}, 0")
    k.e(f"s_mov_b32 s39, {hex(OOB)}")
    k.label("prepC")
    k.e("s_mov_b32 s19, 0x00020000")
    k.e(f"v_lshrrev_b32 v{vt2}, 3, v0")
    k.e(f"v_mul_u32_u24 v{vSrc}, s33, v{vt2}")
    k.e(f"v_lshrrev_b32 v{vt2}, 2, v0")
    k.e(f"v_and_b32 v{vt2}, 4, v{vt2}")
    k.e(f"v_xor_b32 v{vt2}, v{vt2}, v0")
    k.e(f"v_and_b32 v{vt2}, 7, v{vt2}")
    k.e(f"v_lshl_add_u32 v{vSrc}, v{vt2}, 4, v{vSrc}")
    k.e("s_lshl_b32 s27, s34, 5")
    k.e("s_mul_i32 s27, s27, s33")
    k.e("s_lshl_b32 s28, s32, 7")
    k.e("s_add_u32 s27, s27, s28")
    k.e("s_lshl_b32 s33, s33, 3")
    k.e("s_lshl_b32 s28, s24, 12")
    k.e(f"s_add_u32 s28, s28, {STG}")
    for rb in range(4):
        k.e(f"s_add_u32 m0, s28, {rb*1024}")
        k.e("s_nop 0")
        k.e(f"buffer_load_dwordx4 v{vSrc}, s[16:19], s27 offen lds")
        k.e("s_add_u32 s27, s27, s33")
    k.e(f"v_and_b32 v{vt2}, 3, v0")
    k.e(f"v_lshlrev_b32 v{vSrc}, 3, v{vt2}")
    k.e(f"v_lshl_add_u32 v{vSrc}, v{vt1}, 9, v{vSrc}")
    k.e(f"v_bfe_u32 v{vt2}, v0, 2, 2")
    k.e(f"v_lshl_add_u32 v{vSrc}, v{vt2}, 7, v{vSrc}")
    k.e(f"v_bfe_u32 v{vt2}, v0, 3, 1")
    k.e(f"v_lshl_add_u32 v{vSrc}, v{vt2}, 6, v{vSrc}")
    k.e(f"v_bfe_u32 v{vt2}, v0, 4, 1")
    k.e(f"v_lshl_add_u32 v{vSrc}, v{vt2}, 5, v{vSrc}")
    k.e(f"v_add_u32 v{vSrc}, s28, v{vSrc}")
    k.e(f"s_branch {k.L('prep1r')}")
    k.label("prep2")
    k.e("s_mov_b32 s44, 3")
    k.e("s_cmp_eq_u32 s46, 0")
    k.e(f"s_cbranch_scc1 {k.L('back')}")
    k.e(f"v_xor_b32 v{vt2}, 64, v{vSrc}")
    k.e("s_waitcnt vmcnt(0)")
    for ksl in range(2):
        for p in range(2):
            r = PR[ksl*2+p]
            a = vSrc if p == 0 else vt2
            k.e(f"ds_read_b64_tr_b16 {vr(r,2)}, v{a} offset:{ksl*2048}")
            k.e(f"ds_read_b64_tr_b16 {vr(r+2,2)}, v{a} offset:{ksl*2048+1024}")
    k.e(f"v_mov_b32 v{vt0}, 0")
    k.e(f"v_mov_b32 v{vt1}, 0")
    k.e("s_mov_b32 s27, 0x3f803f80")
    k.e("s_waitcnt lgkmcnt(0)")
    for ksl in range(2):
        for p in range(2):
            r = PR[ksl*2+p]
            k.e(f"buffer_store_dwordx4 {vr(r,4)}, v{vDst}, s[20:23], s{36+p} offen {PREP_ST}")
            if ksl == 0:
                k.e(f"s_add_u32 s{36+p}, s{36+p}, s38")
            for i in range(4):
                k.e(f"v_dot2c_f32_bf16 v{vt0 if p == 0 else vt1}, s27, v{r+i}")
    k.e("s_nop 2")
    k.e(f"v_permlane32_swap_b32 v{vt0}, v{vt1}")
    k.e(f"v_add_f32 v{vt0}, v{vt0}, v{vt1}")
    k.e(f"buffer_store_dword v{vt0}, v{vCs}, s[20:23], s39 offen")
    k.e(f"s_branch {k.L('back')}")
    k.label("b2")
    k.e("s_waitcnt vmcnt(0)")
    k.e("s_barrier")
    k.e("s_mov_b32 s44, 99")
    if PREFETCH:
        k.e("s_lshr_b32 s27, s2, 3")
        k.e("s_lshl_b32 s27, s27, 3")
        k.e("s_add_u32 s27, s27, s24")
        k.e("s_and_b32 s28, s2, 1")
        for (base, half, per, reg) in ((WS_WO, 0x40000, 1024, PR[0]), (WS_WGU, 8*32*6144, 6144, PR[0]+1), (WS_WD, 4*86*2048, 2752, PR[0]+2)):
            nl = (per + 127) // 128
            k.e(f"s_mul_i32 s32, s28, {half}")
            k.e(f"s_mul_i32 s33, s27, {per}")
            k.e("s_add_u32 s32, s32, s33")
            k.e(f"s_add_u32 s32, s32, {hex(base)}")
            k.e(f"v_min_u32 v{vt0}, {nl-1 if per % 128 == 0 else nl}, v0")
            k.e(f"v_lshlrev_b32 v{vt0}, 7, v{vt0}")
            k.e(f"buffer_load_dword v{reg}, v{vt0}, s[20:23], s32 offen")
    k.e(f"s_branch {k.L('back')}")
    return k

def gen_gemm64(name, nks, act_off, w_off, mode):
    k = K(name)
    NSLOT = G64_NSLOT
    D = G64_D
    SLOT = 16384
    RES = NSLOT * SLOT
    k.lds = RES + 8192
    nst = (nks + 3) // 4
    assert nst % 2 == 0
    vl = k.v(); vt0 = k.v(); vt1 = k.v(); vL16 = k.v(); vAb = k.v(); vWb = k.v(); vA = k.v(); vW = k.v()
    vS = k.v(); vQ = k.v(); vO = k.v(); vt2 = k.v()
    vRa = k.v(4)
    R = k.v(8)
    acc = k.v(16)
    T = k.v(16)
    sets = [dict(A=[k.v(4) for _ in range(4)], W=[k.v(4) for _ in range(4)]) for _ in range(2)]
    k.e("s_cmp_ge_u32 s2, 256")
    k.e(f"s_cbranch_scc1 {k.L('end')}")
    k.stamp(0)
    k.tick()
    k.e("s_load_dwordx2 s[8:9], s[0:1], 72")
    k.e(f"s_load_dwordx2 s[4:5], s[0:1], {0 if mode == 'wo' else 56}")
    wave_setup(k, vt0)
    tile_map_32x8(k, 25, 26, 27, 28)
    k.e(f"v_lshlrev_b32 v{vL16}, 4, v0")
    k.e("s_and_b32 s33, s24, 1")
    k.e("s_bfe_u32 s34, s24, 0x10001")
    def hf_offset():
        k.e("s_lshr_b32 s35, s25, 1")
        k.e("s_lshl_b32 s35, s35, 5")
        k.e("s_lshl_b32 s30, s26, 2")
        k.e("s_add_u32 s35, s35, s30")
        k.e("s_lshl_b32 s30, s34, 1")
        k.e("s_add_u32 s35, s35, s30")
        k.e("s_lshl_b32 s35, s35, 2")
        k.e("s_and_b32 s30, s25, 1")
        k.e("s_lshl_b32 s30, s30, 1")
        k.e("s_add_u32 s35, s35, s30")
        k.e("s_add_u32 s35, s35, s33")
        k.e("s_lshl_b32 s35, s35, 10")
        k.e(f"s_add_u32 s35, s35, {hex(WS_H)}")
    k.e("s_cmp_ge_u32 s24, 4")
    k.e(f"s_cbranch_scc1 {k.L('cons')}")
    split = 4 if mode == "wo" else 12
    k.e(f"s_mul_i32 s27, s25, {nks*2048}")
    k.e(f"s_add_u32 s27, s27, {hex(act_off)}")
    k.e(f"s_mul_i32 s30, s26, {nks*2048}")
    k.e(f"s_add_u32 s30, s30, {hex(w_off)}")
    k.e("s_cmp_eq_u32 s34, 0")
    k.e("s_cselect_b32 s30, s27, s30")
    k.e("s_lshl_b32 s29, s33, 12")
    k.e("s_lshl_b32 s32, s24, 12")
    k.e("s_bitcmp1_b32 s2, 0")
    k.e(f"s_cselect_b32 s31, {split*8192}, 0")
    k.e(f"s_cselect_b32 s36, 0, {split*8192}")
    k.e("s_add_u32 s31, s31, s29")
    nl = 16 if mode == "wo" else 48
    k.e("s_lshl_b32 s28, s28, 2")
    k.e("s_add_u32 s28, s28, s24")
    k.e(f"s_mul_i32 s28, s28, {nl*128}")
    k.e("s_add_u32 s27, s27, s28")
    k.e("s_add_u32 s27, s27, s36")
    k.e(f"s_mov_b32 s18, {nks*2048}")
    k.e("s_mov_b32 s19, 0x00020000")
    k.e("s_mov_b32 m0, s32")
    k.e("s_waitcnt lgkmcnt(0)")
    k.stamp(1)
    k.e("s_add_u32 s16, s8, s30")
    k.e("s_addc_u32 s17, s9, 0")
    nout = []
    def issue(q):
        if q:
            k.e(f"s_add_u32 m0, s32, {(q % NSLOT)*SLOT}")
            if q == nst - split:
                k.e("s_add_u32 s31, s31, 8192")
                k.e("s_bitcmp1_b32 s2, 0")
                k.e("s_cselect_b32 s31, s29, s31")
            else:
                k.e("s_add_u32 s31, s31, 8192")
        for g in range(4):
            k.e(f"buffer_load_dwordx4 v{vL16}, s[16:19], s31 offen offset:{g*1024} lds")
        nout.extend([q] * 4)
    pf = [f"s_load_dword s48, s[46:47], {i*128}" for i in range(nl)] if ACTPF else []
    def resid():
        k.e("s_lshl_b32 s27, s24, 11")
        k.e(f"s_add_u32 m0, s27, {RES}")
        if mode == "wo":
            srd(k, 12, 4, 2048 * 1024)
            k.e(f"v_lshrrev_b32 v{vt0}, 3, v0")
            k.e(f"v_xor_b32 v{vt1}, v{vt0}, v0")
            k.e(f"v_and_b32 v{vt1}, 7, v{vt1}")
            k.e(f"v_lshlrev_b32 v{vt0}, 10, v{vt0}")
            k.e(f"v_lshl_add_u32 v{vt0}, v{vt1}, 4, v{vt0}")
            k.e("s_lshl_b32 s27, s25, 16")
            k.e("s_lshl_b32 s28, s24, 14")
            k.e("s_add_u32 s27, s27, s28")
            k.e("s_lshl_b32 s28, s26, 7")
            k.e("s_add_u32 s27, s27, s28")
            k.e(f"buffer_load_dwordx4 v{vt0}, s[12:15], s27 offen lds")
            k.e(f"s_add_u32 s27, s27, {8192-1024}")
            k.e(f"buffer_load_dwordx4 v{vt0}, s[12:15], s27 offen offset:1024 lds")
        else:
            srd(k, 20, 8, WS_END)
            hf_offset()
            k.e(f"buffer_load_dwordx4 v{vL16}, s[20:23], s35 offen lds")
            k.e(f"s_add_u32 s35, s35, {4096-1024}")
            k.e(f"buffer_load_dwordx4 v{vL16}, s[20:23], s35 offen offset:1024 lds")
    for q in range(D):
        issue(q)
        if q == 1:
            k.e("s_add_u32 s46, s8, s27")
            k.e("s_addc_u32 s47, s9, 0")
            for x in pf[:14]: k.e(x)
    k.stamp(2)
    pi = 14
    for s in range(nst):
        last = max(i for i, t in enumerate(nout) if t <= s)
        k.e(f"s_waitcnt vmcnt({len(nout) - 1 - last})")
        k.e("s_barrier")
        k.tick()
        if s + D < nst:
            issue(s + D)
            if s == 0:
                resid()
                nout.extend([nst - 1] * 2)
            if s + D == nst - 1:
                k.stamp(3)
        if s >= 1:
            for x in pf[pi:pi+6]: k.e(x)
            pi += 6
    k.stamp(4)
    k.tick_flush(int(name[1]))
    k.e(f"s_branch {k.L('fin')}")
    k.label("cons")
    k.e("s_lshl_b32 s27, s33, 10")
    k.e(f"v_add_u32 v{vAb}, s27, v{vL16}")
    k.e("s_lshl_b32 s27, s34, 10")
    k.e("s_add_u32 s27, s27, 8192")
    k.e(f"v_add_u32 v{vWb}, s27, v{vL16}")
    for z in range(acc, acc + 16):
        k.e(f"v_mov_b32 v{z}, 0")
    k.e("s_mov_b32 s38, 0")
    k.e("s_mov_b32 s41, 0xffff0000")
    k.e(f"v_and_b32 v{vt0}, 31, v0")
    k.e(f"v_lshrrev_b32 v{vt1}, 5, v0")
    if mode == "wo":
        hf_offset()
        k.e("s_add_u32 s36, s35, 4096")
        k.e("s_lshl_b32 s37, s25, 1")
        k.e("s_add_u32 s37, s37, s33")
        k.e("s_lshl_b32 s37, s37, 12")
        k.e("s_lshl_b32 s28, s26, 9")
        k.e("s_add_u32 s37, s37, s28")
        k.e("s_lshl_b32 s28, s34, 3")
        k.e("s_add_u32 s37, s37, s28")
        k.e(f"s_add_u32 s37, s37, {hex(WS_ST)}")
        k.e(f"v_and_b32 v{vt2}, 7, v0")
        k.e("s_lshl_b32 s27, s34, 2")
        k.e(f"v_xor_b32 v{vt2}, s27, v{vt2}")
        k.e(f"v_lshlrev_b32 v{vt2}, 4, v{vt2}")
        k.e(f"v_lshl_add_u32 v{vt2}, v{vt0}, 7, v{vt2}")
        k.e(f"v_lshl_add_u32 v{vt2}, v{vt1}, 3, v{vt2}")
        k.e("s_lshl_b32 s27, s33, 12")
        k.e(f"s_add_u32 s27, s27, {RES}")
        k.e(f"v_add_u32 v{vRa}, s27, v{vt2}")
        for j in range(1, 4):
            k.e(f"v_xor_b32 v{vRa+j}, {j*16}, v{vRa}")
        k.e(f"v_lshlrev_b32 v{vt0}, 4, v{vt0}")
        k.e(f"v_lshl_add_u32 v{vt0}, v{vt1}, 2, v{vt0}")
        k.e(f"v_mov_b32 v{vS}, 0")
        k.e(f"v_mov_b32 v{vQ}, 0")
        k.e("s_mov_b32 s42, 0x3f803f80")
        k.e("s_waitcnt lgkmcnt(0)")
        k.stamp(1)
        srd(k, 20, 8, WS_END)
    else:
        k.e(f"v_lshlrev_b32 v{vO}, 10, v{vt0}")
        k.e(f"v_lshl_add_u32 v{vO}, v{vt1}, 4, v{vO}")
        k.e("s_lshl_b32 s29, s25, 16")
        k.e("s_lshl_b32 s30, s33, 15")
        k.e("s_add_u32 s29, s29, s30")
        k.e("s_lshl_b32 s30, s26, 7")
        k.e("s_add_u32 s29, s29, s30")
        k.e("s_lshl_b32 s30, s34, 6")
        k.e("s_add_u32 s29, s29, s30")
        k.e("s_and_b32 s27, s24, 3")
        k.e("s_lshl_b32 s27, s27, 11")
        k.e(f"s_add_u32 s27, s27, {RES}")
        k.e(f"v_add_u32 v{vRa}, s27, v{vL16}")
        k.e("s_waitcnt lgkmcnt(0)")
        k.stamp(1)
        srd(k, 12, 4, 2048 * 1024)
    def pre_stage():
        return [f"v_add_u32 v{vA}, s38, v{vAb}", f"v_add_u32 v{vW}, s38, v{vWb}"] + adv(k, 38, SLOT, NSLOT*SLOT)
    def mf(i):
        S = sets[i]
        return [f"v_mfma_f32_32x32x16_bf16 {vr(acc,16)}, {vr(S['W'][j],4)}, {vr(S['A'][j],4)}, {vr(acc,16)}" for j in range(4)]
    def reads(i):
        S = sets[i]
        rd = []
        for j in range(4):
            rd.append(f"ds_read_b128 {vr(S['A'][j],4)}, v{vA} offset:{j*2048}")
            rd.append(f"ds_read_b128 {vr(S['W'][j],4)}, v{vW} offset:{j*2048}")
        return rd
    assert D <= NSLOT - 2
    consumer_loop_s(k, nst, pre_stage, reads, mf)
    if mode == "wo":
        for j in range(4):
            k.e(f"ds_read_b64 {vr(R+2*j,2)}, v{vRa+j}")
        nr = 4
    else:
        k.e(f"ds_read_b128 {vr(R,4)}, v{vRa}")
        k.e(f"ds_read_b128 {vr(R+4,4)}, v{vRa} offset:1024")
        nr = 2
    m = mf(1)
    for j in range(4):
        k.e(f"s_waitcnt lgkmcnt({6-2*j+nr})")
        k.e(m[j])
    k.e("s_waitcnt lgkmcnt(0)")
    for i in range(8):
        k.e(f"v_lshlrev_b32 v{T+2*i}, 16, v{R+i}")
        k.e(f"v_and_b32 v{T+2*i+1}, s41, v{R+i}")
    for i in range(8):
        k.e(f"v_cvt_pk_bf16_f32 v{R+i}, v{acc+2*i}, v{acc+2*i+1}")
    for i in range(8):
        k.e(f"v_lshlrev_b32 v{acc+2*i}, 16, v{R+i}")
        k.e(f"v_and_b32 v{acc+2*i+1}, s41, v{R+i}")
    for i in range(0, 16, 2):
        k.e(f"v_pk_add_f32 {vr(acc+i,2)}, {vr(acc+i,2)}, {vr(T+i,2)}")
    for i in range(8):
        k.e(f"v_cvt_pk_bf16_f32 v{R+i}, v{acc+2*i}, v{acc+2*i+1}")
    if mode == "wo":
        k.e(f"buffer_store_dwordx4 {vr(R,4)}, v{vL16}, s[20:23], s35 offen")
        k.e(f"buffer_store_dwordx4 {vr(R+4,4)}, v{vL16}, s[20:23], s36 offen")
        for i in range(8):
            k.e(f"v_dot2c_f32_bf16 v{vS}, s42, v{R+i}")
            k.e(f"v_dot2c_f32_bf16 v{vQ}, v{R+i}, v{R+i}")
        k.e("s_nop 2")
        k.e(f"v_permlane32_swap_b32 v{vS}, v{vQ}")
        k.e(f"v_add_f32 v{vS}, v{vS}, v{vQ}")
        k.e(f"buffer_store_dword v{vS}, v{vt0}, s[20:23], s37 offen")
    else:
        k.e(f"v_permlane32_swap_b32 v{R}, v{R+2}")
        k.e(f"v_permlane32_swap_b32 v{R+1}, v{R+3}")
        k.e(f"buffer_store_dwordx4 {vr(R,4)}, v{vO}, s[12:15], s29 offen")
        k.e(f"v_permlane32_swap_b32 v{R+4}, v{R+6}")
        k.e(f"v_permlane32_swap_b32 v{R+5}, v{R+7}")
        k.e(f"buffer_store_dwordx4 {vr(R+4,4)}, v{vO}, s[12:15], s29 offen offset:32")
    k.label("fin")
    k.stamp_flush(int(name[1]))
    k.label("end")
    k.e("s_endpgm")
    return k

def gen_k4():
    k = K("k4_gu_kernel")
    NSLOT = 6
    D = 2
    SLOT = 20480
    MISC = NSLOT * SLOT
    MISC2 = MISC + 2048
    k.lds = MISC2 + 2048
    vl = k.v(); vt0 = k.v(); vt1 = k.v(); vL16 = k.v(); vXb = k.v(); vWb = k.v(); vX = k.v(); vW = k.v()
    CC = [k.v(4), k.v(4)]
    T = k.v(8)
    BP = [k.v(4), k.v(4)]; AP = [k.v(4) for _ in range(3)]
    acc = [[k.v(16) for _ in range(3)] for _ in range(2)]
    sets = [dict(X=[[k.v(4) for _ in range(2)] for _ in range(2)], W=[[k.v(4) for _ in range(3)] for _ in range(2)]) for _ in range(2)]
    k.e("s_cmp_ge_u32 s2, 256")
    k.e(f"s_cbranch_scc1 {k.L('end')}")
    k.e("s_and_b32 s26, s2, 1")
    k.e("s_lshl_b32 s26, s26, 3")
    k.e("s_lshr_b32 s28, s2, 5")
    k.e("s_add_u32 s26, s26, s28")
    k.e("s_cmp_ge_u32 s26, 15")
    k.e(f"s_cbranch_scc1 {k.L('end')}")
    k.stamp(0)
    k.tick()
    k.e("s_load_dwordx2 s[8:9], s[0:1], 72")
    wave_setup(k, vt0)
    k.e("s_and_b32 s25, s2, 6")
    k.e("s_lshl_b32 s25, s25, 1")
    k.e("s_bfe_u32 s27, s2, 0x20003")
    k.e("s_add_u32 s25, s25, s27")
    k.e(f"v_lshlrev_b32 v{vL16}, 4, v0")
    k.e("s_cmp_ge_u32 s24, 4")
    k.e(f"s_cbranch_scc1 {k.L('cons')}")
    k.e("s_lshl_b32 s27, s25, 17")
    k.e(f"s_add_u32 s27, s27, {hex(WS_H)}")
    k.e(f"s_mul_i32 s31, s26, {32*6144}")
    k.e(f"s_add_u32 s31, s31, {hex(WS_WGU)}")
    k.e("s_lshl_b32 s29, s24, 11")
    k.e("s_mul_i32 s32, s24, 3072")
    k.e("s_add_u32 s30, s27, s29")
    k.e("s_add_u32 s31, s31, s32")
    k.e("s_add_u32 s32, s32, 8192")
    k.e("s_bitcmp1_b32 s2, 0")
    k.e("s_cselect_b32 s33, 0x10000, 0")
    k.e(f"s_cselect_b32 s34, {8*12288}, 0")
    k.e("s_cselect_b32 s36, 0, 0x10000")
    k.e("s_add_u32 s33, s33, s30")
    k.e("s_add_u32 s34, s34, s31")
    k.e("s_min_u32 s28, s28, 6")
    k.e("s_lshl_b32 s28, s28, 2")
    k.e("s_add_u32 s28, s28, s24")
    k.e(f"s_mul_i32 s28, s28, {19*128}")
    k.e("s_add_u32 s27, s27, s28")
    k.e("s_add_u32 s27, s27, s36")
    k.e(f"s_mov_b32 s22, {hex(WS_END)}")
    k.e("s_mov_b32 s23, 0x00020000")
    k.e("s_mov_b32 m0, s29")
    k.e("s_waitcnt lgkmcnt(0)")
    k.stamp(1)
    k.e("s_mov_b64 s[20:21], s[8:9]")
    nout = []
    def issue(q):
        if q:
            k.e(f"s_add_u32 m0, s29, {(q % NSLOT)*SLOT}")
            k.e("s_add_u32 s33, s33, 8192")
            if q == 8:
                k.e("s_bitcmp1_b32 s2, 0")
                k.e("s_cselect_b32 s33, s30, s33")
        for g in range(2):
            k.e(f"buffer_load_dwordx4 v{vL16}, s[20:23], s33 offen offset:{g*1024} lds")
        k.e(f"s_add_u32 m0, s32, {(q % NSLOT)*SLOT}")
        if q:
            k.e("s_add_u32 s34, s34, 12288")
            if q == 8:
                k.e("s_bitcmp1_b32 s2, 0")
                k.e("s_cselect_b32 s34, s31, s34")
        else:
            k.e("s_nop 0")
        for g in range(3):
            k.e(f"buffer_load_dwordx4 v{vL16}, s[20:23], s34 offen offset:{g*1024} lds")
        nout.extend([q] * 5)
    def wait_for(q):
        last = max(i for i, t in enumerate(nout) if t <= q)
        k.e(f"s_waitcnt vmcnt({len(nout) - 1 - last})")
        k.tick()
    pf = [f"s_load_dword s48, s[46:47], {i*128}" for i in range(19)] if ACTPF else []
    ST = acc[0][0]; CS = acc[0][1]
    def st_issue():
        k.e("s_lshl_b32 s27, s25, 2")
        k.e("s_add_u32 s27, s27, s24")
        k.e("s_lshl_b32 s27, s27, 12")
        k.e(f"s_add_u32 s27, s27, {hex(WS_ST)}")
        for q in range(4):
            k.e(f"buffer_load_dwordx4 {vr(ST+4*q,4)}, v{vL16}, s[20:23], s27 offen offset:{q*1024}")
        k.e("s_mul_i32 s27, s26, 3")
        k.e("s_min_u32 s28, s24, 2")
        k.e("s_add_u32 s27, s27, s28")
        k.e("s_lshl_b32 s27, s27, 12")
        k.e(f"s_add_u32 s27, s27, {hex(WS_CS)}")
        for q in range(4):
            k.e(f"buffer_load_dwordx4 {vr(CS+4*q,4)}, v{vL16}, s[20:23], s27 offen offset:{q*1024}")
    def st_proc():
        s = ST; t2 = T; t3 = T + 1; C = CC[0]; RS = T + 2
        for i in range(2, 16, 2):
            k.e(f"v_add_f32 v{s}, v{s}, v{s+i}")
            k.e(f"v_add_f32 v{s+1}, v{s+1}, v{s+i+1}")
        k.e(f"v_mov_b32 v{s+2}, v{s}")
        k.e(f"v_mov_b32 v{s+3}, v{s+1}")
        k.e("s_nop 1")
        k.e(f"v_permlane32_swap_b32 v{s}, v{s+2}")
        k.e(f"v_permlane32_swap_b32 v{s+1}, v{s+3}")
        k.e(f"v_add_f32 v{s}, v{s}, v{s+2}")
        k.e(f"v_add_f32 v{s+1}, v{s+1}, v{s+3}")
        ln_finish(k, s, s + 1, C, RS, t2, t3)
        A_ = -2.0 * 1.4426950408889634 * 0.7978845608028654
        k.e(f"v_mul_f32 v{C+3}, v{t2}, v{t2}")
        k.e(f"v_mul_f32 v{C+1}, {f32(A_)}, v{RS}")
        k.e(f"v_mul_f32 v{C+2}, v{RS}, v{RS}")
        k.e(f"v_mul_f32 v{C+2}, v{C+2}, v{C+1}")
        k.e(f"v_mul_f32 v{C+2}, {f32(0.044715)}, v{C+2}")
        k.e(f"v_and_b32 v{vt0}, 0x1ff, v{vL16}")
        k.e("s_lshl_b32 s27, s24, 9")
        k.e(f"s_add_u32 s27, s27, {MISC}")
        k.e(f"v_add_u32 v{vt0}, s27, v{vt0}")
        k.e(f"ds_write_b128 v{vt0}, {vr(C,4)}")
        for u in range(2):
            c = CS + 8 * u
            for i in range(1, 8):
                k.e(f"v_add_f32 v{c}, v{c}, v{c+i}")
        k.e("s_nop 1")
        k.e(f"v_permlane32_swap_b32 v{CS}, v{CS+8}")
        k.e(f"v_add_f32 v{CS}, v{CS}, v{CS+8}")
        split2(k, CS, CS + 1, t2)
        k.e("s_lshl_b32 s27, s28, 8")
        k.e(f"s_add_u32 s27, s27, {MISC2}")
        k.e(f"v_lshl_add_u32 v{vt0}, v0, 2, s27")
        k.e(f"ds_write_b32 v{vt0}, v{CS+1}")
        k.e("s_waitcnt lgkmcnt(0)")
    issue(0); issue(1)
    k.e("s_add_u32 s46, s8, s27")
    k.e("s_addc_u32 s47, s9, 0")
    for x in pf[:14]: k.e(x)
    issue(2)
    k.stamp(2)
    wait_for(0); k.e("s_barrier"); k.tick()
    issue(3)
    wait_for(1); k.e("s_barrier"); k.tick()
    issue(4); issue(5)
    for x in pf[14:]: k.e(x)
    for s in range(1, 8):
        wait_for(2*s + 1); k.e("s_barrier"); k.tick()
        if 2*s + 4 < 16:
            issue(2*s + 4); issue(2*s + 5)
        if s == 6:
            st_proc()
        if s == 4:
            st_issue()
            nout.extend([13] * 8)
        if s == 5:
            k.stamp(3)
    k.stamp(4)
    k.tick_flush(4)
    k.e(f"s_branch {k.L('fin')}")
    k.label("cons")
    k.e("s_and_b32 s33, s24, 1")
    k.e("s_bfe_u32 s34, s24, 0x10001")
    k.e("s_lshl_b32 s27, s33, 11")
    k.e(f"v_add_u32 v{vXb}, s27, v{vL16}")
    k.e("s_mul_i32 s27, s34, 3072")
    k.e("s_add_u32 s27, s27, 8192")
    k.e(f"v_add_u32 v{vWb}, s27, v{vL16}")
    k.e("s_mov_b32 s38, 0")
    for r in BP + AP:
        for i in (0, 1, 2, 3):
            k.e(f"v_mov_b32 v{r+i}, 0")
    k.e("s_nop 1")
    for b in range(2):
        for u in range(3):
            mfma32(k, acc[b][u], BP[0], BP[0], "0")
    k.e("s_mul_i32 s42, s26, 6")
    k.e("s_mul_i32 s43, s34, 3")
    k.e("s_add_u32 s42, s42, s43")
    k.e("s_lshl_b32 s27, s25, 1")
    k.e("s_add_u32 s27, s27, s33")
    k.e("s_mul_i32 s27, s27, 86")
    k.e("s_add_u32 s27, s27, s42")
    k.e("s_lshl_b32 s27, s27, 11")
    k.e(f"s_add_u32 s45, s27, {hex(WS_A)}")
    k.e("v_cmp_gt_u32 vcc, 32, v0")
    k.e(f"v_and_b32 v{vt0}, 0x1ff, v{vL16}")
    k.e("s_lshl_b32 s27, s33, 10")
    k.e(f"s_add_u32 s27, s27, {MISC}")
    k.e(f"v_add_u32 v{vt0}, s27, v{vt0}")
    k.e(f"v_and_b32 v{vt1}, 31, v0")
    k.e("s_mul_i32 s27, s34, 384")
    k.e(f"s_add_u32 s27, s27, {MISC2}")
    k.e(f"v_lshl_add_u32 v{vt1}, v{vt1}, 2, s27")
    k.e("s_waitcnt lgkmcnt(0)")
    k.stamp(1)
    srd(k, 20, 8, WS_END)
    def pre_stage(h):
        return [f"v_add_u32 v{vX}, s38, v{vXb}", f"v_add_u32 v{vW}, s38, v{vWb}"] + adv(k, 38, SLOT, NSLOT*SLOT)
    def mf(i):
        S = sets[i]
        r = []
        for kk in range(2):
            for u in range(3):
                for b in range(2):
                    r.append(f"v_mfma_f32_32x32x16_bf16 {vr(acc[b][u],16)}, {vr(S['W'][kk][u],4)}, {vr(S['X'][kk][b],4)}, {vr(acc[b][u],16)}")
        return r
    def reads(i):
        S = sets[i]
        rd = []
        for kk in range(2):
            for b in range(2):
                rd.append(f"ds_read_b128 {vr(S['X'][kk][b],4)}, v{vX} offset:{kk*4096+b*1024}")
            for u in range(3):
                rd.append(f"ds_read_b128 {vr(S['W'][kk][u],4)}, v{vW} offset:{kk*6144+u*1024}")
        return rd
    consumer_loop_m(k, 16, pre_stage, reads, mf, 2, barA=False)
    for b in range(2):
        k.e(f"ds_read_b128 {vr(CC[b],4)}, v{vt0} offset:{b*512}")
    for u in range(3):
        k.e(f"ds_read_b32 v{AP[u]}, v{vt1} offset:{u*128}")
    m = mf(1)
    for x in m[:6]: k.e(x)
    k.e("s_waitcnt lgkmcnt(0)")
    for b in range(2):
        k.e(f"v_cndmask_b32 v{BP[b]}, 0, v{CC[b]}, vcc")
    j = 6
    for u in range(3):
        for b in range(2):
            k.e(m[j]); j += 1
            mfma32(k, acc[b][u], AP[u], BP[b])
    for u in range(3):
        k.e("s_cmp_lt_u32 s42, 86")
        k.e(f"s_cselect_b32 s28, s45, {hex(OOB)}")
        k.e("s_add_u32 s42, s42, 1")
        k.e("s_add_u32 s45, s45, 2048")
        for b in range(2):
            a = acc[b][u]; C = CC[b]
            for i in range(0, 8, 2):
                k.e(f"v_pk_mul_f32 {vr(T+i,2)}, {vr(a+i,2)}, {vr(a+i,2)}")
            for i in range(0, 8, 2):
                k.e(f"v_pk_fma_f32 {vr(T+i,2)}, {vr(T+i,2)}, {vr(C+2,2)}, {vr(C,2)} op_sel:[0,0,1] op_sel_hi:[1,0,1]")
            for i in range(0, 8, 2):
                k.e(f"v_pk_mul_f32 {vr(T+i,2)}, {vr(T+i,2)}, {vr(a+i,2)}")
            for i in range(8):
                k.e(f"v_exp_f32 v{T+i}, v{T+i}")
            for i in range(0, 8, 2):
                k.e(f"v_pk_mul_f32 {vr(a+i,2)}, {vr(a+i,2)}, {vr(a+8+i,2)}")
            for i in range(0, 8, 2):
                k.e(f"v_pk_fma_f32 {vr(T+i,2)}, {vr(T+i,2)}, {vr(C+2,2)}, {vr(C+2,2)} op_sel:[0,1,1]")
            for i in range(8):
                k.e(f"v_rcp_f32 v{T+i}, v{T+i}")
            for i in range(0, 8, 2):
                k.e(f"v_pk_mul_f32 {vr(a+i,2)}, {vr(a+i,2)}, {vr(T+i,2)}")
            for i in range(4):
                k.e(f"v_cvt_pk_bf16_f32 v{a+i}, v{a+2*i}, v{a+2*i+1}")
            k.e(f"buffer_store_dwordx4 {vr(a,4)}, v{vL16}, s[20:23], s28 offen offset:{b*1024}")
    k.label("fin")
    k.stamp_flush(4)
    k.label("end")
    k.e("s_endpgm")
    return k

def build():
    ks = [(gen_k1(), 768), (gen_k2(), 512),
          (gen_gemm64("k3_wo_kernel", 32, WS_O, WS_WO, "wo"), 512),
          (gen_k4(), 512),
          (gen_gemm64("k5_down_kernel", 86, WS_A, WS_WD, "down"), 512)]
    ref = open(f"cdna_kernels/{NAME}.s.ref").read().splitlines()
    head = [l for l in ref if l.startswith(";") and "@launch" not in l and "Override" not in l and "grid=ceil" not in l]
    out = "\n".join(head) + "\n"
    for k, blk in ks:
        out += f"; @launch kernel={k.name} grid=(256,1,1) block=({blk},1,1) lds={k.lds}\n"
    out += '.amdgcn_target "amdgcn-amd-amdhsa--gfx950"\n'
    for k, blk in ks:
        out += k.text()
    return out

if __name__ == "__main__":
    if len(sys.argv) > 2 and sys.argv[2] == "stamp":
        STAMP = True
    out = build()
    path = sys.argv[1] if len(sys.argv) > 1 else f"cdna_kernels/{NAME}.s"
    open(path, "w").write(out)
    bad = hazard.check(out)
    print("hazards:", len(bad))
```

```python
import sys, struct
sys.path.insert(0, "gen")
import hazard

NAME = "sequential_preLN__softmax_full_mha__geglu_ffn__prompt"

WS_Q   = 0x000000
WS_KV  = 0x200000
WS_O   = 0x600000
WS_H   = 0x800000
WS_ST  = 0xA00000
WS_CS  = 0xA40000
WS_WO  = 0xB00000
WS_WD  = 0xC00000
WS_WGU = 0xE00000
WS_A   = 0x1200000
WS_END = 0x1800000
OOB    = 0x7FFF0000
WS_DBG = 0x2000000
STAMP = False
import os
NODMA = int(os.environ.get('NODMA', '0'))
TICK = int(os.environ.get('TICK', '0'))

def f32(x):
    return "0x%08x" % struct.unpack("<I", struct.pack("<f", x))[0]

class K:
    def __init__(self, name):
        self.name = name
        self.lines = []
        self.nv = 0
        self.maxs = 0
    def e(self, s):
        if NODMA and (s.endswith(" lds") or s.startswith("s_load_dword s48")) and not self.name.startswith("k2"):
            s = "s_nop 0"
        self.lines.append("    " + s)
    def c(self, s):
        self.lines.append("    ; " + s)
    def label(self, l):
        self.lines.append(f"{self.name}_{l}:")
    def L(self, l):
        return f"{self.name}_{l}"
    def v(self, n=1, align=None):
        if align is None:
            align = 1 if n == 1 else (2 if n == 2 else 4)
        self.nv = (self.nv + align - 1) // align * align
        r = self.nv
        self.nv += n
        return r
    def stamp(self, idx):
        if not STAMP:
            return
        self.e(f"s_memtime s[{64+2*idx}:{65+2*idx}]")
        if idx in (3, 4):
            self.e(f"s_memrealtime s[{80+2*idx}:{81+2*idx}]")
        self.nstamp = max(getattr(self, "nstamp", 0), idx + 1)
    def tick(self):
        if not TICK:
            return
        n = getattr(self, "ntick", 0)
        self.e(f"s_memtime s[{52+2*n}:{53+2*n}]")
        self.ntick = n + 1
    def tick_flush(self, kidx):
        if not TICK:
            return
        n = self.ntick
        self.e("s_waitcnt vmcnt(0) lgkmcnt(0)")
        self.e(f"s_add_u32 s44, s8, {hex(WS_DBG + kidx*0x40000)}")
        self.e("s_addc_u32 s45, s9, 0")
        self.e("s_mov_b32 s46, 0x40000")
        self.e("s_mov_b32 s47, 0x00020000")
        self.e("s_lshl_b32 s48, s2, 3")
        self.e("s_add_u32 s48, s48, s24")
        self.e("s_lshl_b32 s48, s48, 7")
        self.e("v_mov_b32 v2, 0")
        for i in range(n):
            self.e(f"v_mov_b32 v0, s{52+2*i}")
            self.e(f"buffer_store_dword v0, v2, s[44:47], s48 offen offset:{i*4}")
        self.e("s_endpgm")
    def stamp_flush(self, kidx):
        if not STAMP:
            return
        n = self.nstamp
        self.e("s_waitcnt vmcnt(0) lgkmcnt(0)")
        self.stamp(n)
        self.e("s_memrealtime s[62:63]")
        n += 1
        self.e("s_waitcnt lgkmcnt(0)")
        self.e(f"s_add_u32 s56, s8, {hex(WS_DBG + kidx*0x40000)}")
        self.e("s_addc_u32 s57, s9, 0")
        self.e("s_mov_b32 s58, 0x40000")
        self.e("s_mov_b32 s59, 0x00020000")
        self.e("s_lshl_b32 s60, s2, 3")
        self.e("s_add_u32 s60, s60, s24")
        self.e("s_lshl_b32 s60, s60, 7")
        self.e("v_mov_b32 v2, 0")
        for i in range(n):
            self.e(f"v_mov_b32 v0, s{64+2*i}")
            self.e(f"v_mov_b32 v1, s{80+2*i if i in (3, 4) else 62}")
            self.e(f"buffer_store_dwordx2 v[0:1], v2, s[56:59], s60 offen offset:{i*8}")
    def text(self, nsgpr=102):
        nv = max(self.nv, 8)
        acc = (nv + 3) // 4 * 4
        head = f""".text
.globl {self.name}
.p2align 8
.type {self.name},@function
{self.name}:
"""
        tail = f"""
.section .rodata,"a"
.p2align 6
.amdhsa_kernel {self.name}
  .amdhsa_next_free_vgpr {nv}
  .amdhsa_next_free_sgpr {nsgpr}
  .amdhsa_accum_offset {acc}
  .amdhsa_group_segment_fixed_size 0
  .amdhsa_kernarg_size 80
  .amdhsa_user_sgpr_count 2
  .amdhsa_user_sgpr_kernarg_segment_ptr 1
  .amdhsa_system_sgpr_workgroup_id_x 1
.end_amdhsa_kernel
"""
        return head + "\n".join(self.lines) + f"\n{self.name}_codeend:" + tail

def vr(b, n):
    return f"v[{b}:{b+n-1}]" if n > 1 else f"v{b}"
def sr(b, n):
    return f"s[{b}:{b+n-1}]" if n > 1 else f"s{b}"

def srd(k, d, base, nbytes):
    k.e(f"s_mov_b32 s{d}, s{base}")
    k.e(f"s_mov_b32 s{d+1}, s{base+1}")
    k.e(f"s_mov_b32 s{d+2}, {hex(nbytes)}")
    k.e(f"s_mov_b32 s{d+3}, 0x00020000")

def mfma32(k, d, a, b, c=None):
    cs = vr(d, 16) if c is None else (c if isinstance(c, str) else vr(c, 16))
    k.e(f"v_mfma_f32_32x32x16_bf16 {vr(d,16)}, {vr(a,4)}, {vr(b,4)}, {cs}")
def mfma16(k, d, a, b):
    k.e(f"v_mfma_f32_16x16x32_bf16 {vr(d,4)}, {vr(a,4)}, {vr(b,4)}, {vr(d,4)}")

def interleave(k, mains, fillers, per):
    fi = 0
    for m in mains:
        k.e(m)
        for _ in range(per):
            if fi < len(fillers):
                k.e(fillers[fi]); fi += 1
    while fi < len(fillers):
        k.e(fillers[fi]); fi += 1

def tile_map_32x8(k, s_tm, s_tn, t0, t1):
    k.e(f"s_and_b32 s{s_tm}, s2, 6")
    k.e(f"s_lshl_b32 s{s_tm}, s{s_tm}, 2")
    k.e(f"s_bfe_u32 s{t0}, s2, 0x30003")
    k.e(f"s_add_u32 s{s_tm}, s{s_tm}, s{t0}")
    k.e(f"s_and_b32 s{s_tn}, s2, 1")
    k.e(f"s_lshl_b32 s{s_tn}, s{s_tn}, 2")
    k.e(f"s_lshr_b32 s{t1}, s2, 6")
    k.e(f"s_add_u32 s{s_tn}, s{s_tn}, s{t1}")

def ln_finish(k, vS, vQ, vNegM, vRstd, t0, t1):
    k.e(f"v_mul_f32 v{vS}, {f32(1.0/512)}, v{vS}")
    k.e(f"v_mul_f32 v{vQ}, {f32(1.0/512)}, v{vQ}")
    k.e(f"v_fma_f32 v{vQ}, -v{vS}, v{vS}, v{vQ}")
    k.e(f"v_max_f32 v{vQ}, 0, v{vQ}")
    k.e(f"v_cvt_pk_bf16_f32 v{vNegM}, -v{vS}, -v{vS}")
    k.e(f"v_cvt_pk_bf16_f32 v{t0}, v{vQ}, v{vQ}")
    k.e(f"v_lshlrev_b32 v{t0}, 16, v{t0}")
    k.e(f"v_add_f32 v{t0}, {f32(1e-5)}, v{t0}")
    k.e(f"v_cvt_pk_bf16_f32 v{t0}, v{t0}, v{t0}")
    k.e(f"v_lshlrev_b32 v{t0}, 16, v{t0}")
    k.e(f"v_sqrt_f32 v{t0}, v{t0}")
    k.e("s_nop 0")
    k.e(f"v_cvt_pk_bf16_f32 v{t0}, v{t0}, v{t0}")
    k.e(f"v_lshlrev_b32 v{t0}, 16, v{t0}")
    k.e(f"v_rcp_f32 v{vRstd}, v{t0}")
    k.e("s_nop 0")

def split2(k, vcs, vdst, t0):
    k.e(f"v_cvt_pk_bf16_f32 v{t0}, v{vcs}, v{vcs}")
    k.e(f"v_lshlrev_b32 v{t0}, 16, v{t0}")
    k.e(f"v_sub_f32 v{t0}, v{vcs}, v{t0}")
    k.e(f"v_cvt_pk_bf16_f32 v{vdst}, v{vcs}, v{t0}")

import os
ROT = int(os.environ.get("ROT", "0"))
PREFETCH = int(os.environ.get("PREFETCH", "1"))
PREP_ST = os.environ.get("PREP_ST", "sc1")
ZROWS = int(os.environ.get("ZROWS", "1"))
G64_NSLOT = int(os.environ.get("G64_NSLOT", "6"))
G64_D = int(os.environ.get("G64_D", "4"))
K1MAP = int(os.environ.get("K1MAP", "0"))
ROWMAP = int(os.environ.get("ROWMAP", "1"))
WDPF = int(os.environ.get("WDPF", "2"))
SPF = int(os.environ.get("SPF", "128"))
WNT = os.environ.get("WNT", "")
K1_D = int(os.environ.get("K1_D", "4"))
K1_SPF = int(os.environ.get("K1_SPF", "0"))
K1_PER = int(os.environ.get("K1_PER", "3"))
K1_CODEPF = int(os.environ.get("K1_CODEPF", "44"))
ACTPF = int(os.environ.get("ACTPF", "0"))
K1_NOSTAT = int(os.environ.get("K1_NOSTAT", "0"))
K1_PRIO = int(os.environ.get("K1_PRIO", "0"))
NCP = int(os.environ.get("NCP", "1"))
def wave_setup(k, vt):
    k.e(f"v_lshrrev_b32 v{vt}, 6, v0")
    k.e("v_and_b32 v0, 63, v0")
    k.e(f"v_readfirstlane_b32 s24, v{vt}")

def adv(k, sreg, step, wrap):
    return [f"s_add_u32 s{sreg}, s{sreg}, {step}", f"s_cmp_eq_u32 s{sreg}, {wrap}", f"s_cselect_b32 s{sreg}, 0, s{sreg}"]

def spread(k, mains, reads, others, rper, oper):
    ri = oi = 0
    for m in mains:
        k.e(m)
        n = 0
        while ri < len(reads) and n < rper:
            k.e(reads[ri]); ri += 1; n += 1
        if ri >= len(reads):
            while oi < len(others) and n < oper:
                k.e(others[oi]); oi += 1; n += 1
    for x in reads[ri:] + others[oi:]:
        k.e(x)

def consumer_loop_m(k, nhalf, pre_stage, reads, mfmas, per, cnt=40, barA=True):
    for x in pre_stage(0): k.e(x)
    k.e(f"s_mov_b32 s{cnt}, {nhalf//2}")
    k.stamp(2)
    k.e("s_barrier")
    k.stamp(3)
    for x in reads(0): k.e(x)
    for x in pre_stage(1): k.e(x)
    k.e("s_waitcnt lgkmcnt(0)")
    if not barA:
        k.e("s_barrier")
    k.e(f"s_branch {k.L('cin')}")
    m0, m1 = mfmas(0), mfmas(1)
    k.label("cloop")
    k.e("s_waitcnt lgkmcnt(0)")
    k.e(m1[-1])
    k.label("cin")
    if barA:
        k.e("s_barrier")
    spread(k, m0[:-1], reads(1), pre_stage(0) + [f"s_sub_u32 s{cnt}, s{cnt}, 1", f"s_cmp_eq_u32 s{cnt}, 0"], per, 5)
    k.e("s_waitcnt lgkmcnt(0)")
    k.e(m0[-1])
    k.e(f"s_cbranch_scc1 {k.L('cpost')}")
    k.e("s_barrier")
    spread(k, m1[:-1], reads(0), pre_stage(1), per, 5)
    k.e(f"s_branch {k.L('cloop')}")
    k.label("cpost")
    k.stamp(4)

def consumer_loop_s(k, nst, pre_stage, reads, mfmas, cnt=40):
    nr = len(reads(0))
    for x in pre_stage(): k.e(x)
    k.e(f"s_mov_b32 s{cnt}, {nst//2}")
    k.stamp(2)
    k.e("s_barrier")
    k.stamp(3)
    for x in reads(0): k.e(x)
    for x in pre_stage(): k.e(x)
    k.label("cloop")
    k.e("s_barrier")
    for x in reads(1): k.e(x)
    k.e(f"s_waitcnt lgkmcnt({nr})")
    interleave(k, mfmas(0), pre_stage() + [f"s_sub_u32 s{cnt}, s{cnt}, 1", f"s_cmp_eq_u32 s{cnt}, 0"], 3)
    k.e(f"s_cbranch_scc1 {k.L('cpost')}")
    k.e("s_barrier")
    for x in reads(0): k.e(x)
    k.e(f"s_waitcnt lgkmcnt({nr})")
    interleave(k, mfmas(1), pre_stage(), 3)
    k.e(f"s_branch {k.L('cloop')}")
    k.label("cpost")
    k.stamp(4)

def loader_loop(k, nst, D, n, issue, cnt=40, hooks=(), split_first=False):
    k.e(f"s_mov_b32 s{cnt}, 0")
    k.label("lloop")
    k.e(f"s_cmp_lt_u32 s{cnt}, {D}")
    k.e(f"s_cbranch_scc1 {k.L('lskip')}")
    if STAMP or split_first:
        k.e(f"s_cmp_eq_u32 s{cnt}, {D}")
        k.e(f"s_cbranch_scc0 {k.L('lst')}")
        k.stamp(2)
        if split_first:
            k.e(f"s_waitcnt vmcnt({n*(D-1) + n//2})")
            k.e("s_barrier")
        k.label("lst")
    k.e(f"s_waitcnt vmcnt({n*(D-1)})")
    k.e("s_barrier")
    k.label("lskip")
    issue()
    for hi, (at, fn) in enumerate(hooks):
        k.e(f"s_cmp_eq_u32 s{cnt}, {at}")
        k.e(f"s_cbranch_scc0 {k.L('lh%d' % hi)}")
        fn()
        k.label("lh%d" % hi)
    k.e(f"s_add_u32 s{cnt}, s{cnt}, 1")
    k.e(f"s_cmp_lt_u32 s{cnt}, {nst}")
    k.e(f"s_cbranch_scc1 {k.L('lloop')}")
    k.stamp(3)
    for i in range(D):
        k.e(f"s_waitcnt vmcnt({n*(D-1-i)})")
        k.e("s_barrier")
    k.stamp(4)

def pkmul_bcast(k, d, s):
    if s % 2 == 0:
        k.e(f"v_pk_mul_f32 {vr(d,2)}, {vr(d,2)}, {vr(s,2)} op_sel_hi:[1,0]")
    else:
        k.e(f"v_pk_mul_f32 {vr(d,2)}, {vr(d,2)}, {vr(s-1,2)} op_sel:[0,1]")

def code_prefetch(k, sp, swave, nlines):
    if not nlines:
        return
    k.e(f"s_getpc_b64 s[{sp}:{sp+1}]")
    k.e(f"s_and_b32 s{sp+2}, s24, 3")
    k.e(f"s_lshl_b32 s{sp+2}, s{sp+2}, 7")
    k.e(f"s_add_u32 s{sp}, s{sp}, s{sp+2}")
    k.e(f"s_addc_u32 s{sp+1}, s{sp+1}, 0")
    for i in range(0, nlines, 4):
        k.e(f"s_load_dword s{sp+2}, s[{sp}:{sp+1}], {i*128}")
    k.e("s_waitcnt lgkmcnt(0)")

def next_code_prefetch(k, sp, first, last, tag="ncp"):
    if not NCP:
        return
    k.e(f"s_lshr_b32 s{sp+2}, s2, 3")
    k.e(f"s_lshl_b32 s{sp+2}, s{sp+2}, 2")
    k.e(f"s_and_b32 s{sp+3}, s24, 3")
    k.e(f"s_add_u32 s{sp+2}, s{sp+2}, s{sp+3}")
    k.e(f"s_lshl_b32 s{sp+2}, s{sp+2}, 7")
    k.e(f"s_min_u32 s{sp+2}, s{sp+2}, {last}_codeend-{first}-4")
    k.e(f"s_getpc_b64 s[{sp}:{sp+1}]")
    k.label(tag)
    k.e(f"s_add_u32 s{sp+2}, s{sp+2}, {first}-{k.L(tag)}")
    k.e(f"s_add_u32 s{sp}, s{sp}, s{sp+2}")
    k.e(f"s_addc_u32 s{sp+1}, s{sp+1}, 0")
    k.e(f"s_load_dword s{sp+2}, s[{sp}:{sp+1}], 0")

def gen_k1():
    k = K("k1_qkv_kernel")
    XP = 1040
    XH = 32 * XP
    WBASE = 2 * XH
    NSLOT = 7
    D = K1_D
    SLOT = 12288
    MISC = WBASE + NSLOT * SLOT
    MISC2 = MISC + 1024
    k.lds = MISC2 + 4096
    assert MISC2 % 2048 == 0
    vl = k.v(); vt0 = k.v(); vt1 = k.v(); vt2 = k.v()
    vL16 = k.v()
    vXp = [k.v(), k.v()]; vXm = [k.v(), k.v()]
    vW0 = [k.v(), k.v()]; vW1 = [k.v(), k.v()]
    vR = k.v(2); vR2 = vR + 1
    sel = k.v(4)
    cs = [k.v(4) for _ in range(3)]
    acc = [k.v(16) for _ in range(3)]
    sets = [dict(XA=k.v(4), XB=k.v(4), WA=[k.v(4) for _ in range(3)], WB=[k.v(4) for _ in range(3)]) for _ in range(2)]
    BP = k.v(4); AP = [k.v(4) for _ in range(3)]
    RR = sets[0]['WA'][0]
    assert k.nv <= 168
    k.e("s_cmp_ge_u32 s2, 256")
    k.e(f"s_cbranch_scc1 {k.L('end')}")
    k.stamp(0)
    k.tick()
    k.e("s_load_dwordx4 s[4:7], s[0:1], 0")
    k.e("s_load_dwordx2 s[8:9], s[0:1], 72")
    wave_setup(k, vt0)
    tile_map_32x8(k, 25, 26, 27, 28)
    k.e(f"v_lshrrev_b32 v{vt1}, 5, v0")
    k.e("s_cmp_ge_u32 s24, 4")
    k.e(f"s_cbranch_scc1 {k.L('cons')}")
    vWg = vXp[0]; vXg = vXp[1]
    k.e(f"v_lshrrev_b32 v{vt0}, 3, v0")
    k.e(f"v_mul_u32_u24 v{vWg}, 3072, v{vt0}")
    k.e(f"v_lshrrev_b32 v{vt0}, 2, v0")
    k.e(f"v_and_b32 v{vt0}, 4, v{vt0}")
    k.e(f"v_xor_b32 v{vt0}, v{vt0}, v0")
    k.e(f"v_and_b32 v{vt0}, 7, v{vt0}")
    k.e(f"v_lshl_add_u32 v{vWg}, v{vt0}, 4, v{vWg}")
    k.e(f"v_lshlrev_b32 v{vt0}, 3, v{vt1}")
    k.e(f"v_xor_b32 v{vt0}, v{vt0}, v0")
    k.e(f"v_lshl_add_u32 v{vt0}, s27, 2, v{vt0}")
    k.e(f"v_and_b32 v{vt0}, 31, v{vt0}")
    k.e(f"v_lshlrev_b32 v{vXg}, 10, v{vt1}")
    k.e(f"v_lshl_add_u32 v{vXg}, v{vt0}, 4, v{vXg}")
    k.e("s_lshl_b32 s31, s25, 16")
    k.e("s_lshl_b32 s36, s24, 11")
    k.e("s_add_u32 s31, s31, s36")
    k.e(f"s_mul_i32 s29, s24, {XP}")
    for g in range(4):
        k.e(f"s_add_u32 s36, s28, {g}")
        k.e("s_and_b32 s36, s36, 3")
        k.e(f"s_mul_i32 s{44+g}, s36, {8*XP}")
        k.e(f"s_add_u32 s{44+g}, s{44+g}, s29")
        k.e("s_lshl_b32 s36, s36, 14")
        k.e(f"s_add_u32 s{48+g}, s36, s31")
    k.e(f"s_mul_i32 s32, s24, {8*3072}")
    k.e("s_lshl_b32 s33, s26, 7")
    k.e("s_add_u32 s32, s32, s33")
    k.e(f"s_mul_i32 s33, s27, {32*3072}")
    k.e("s_add_u32 s33, s33, s32")
    k.e(f"s_add_u32 s35, s32, {256*3072}")
    k.e("s_mul_i32 s34, s24, 3072")
    k.e(f"s_add_u32 s34, s34, {WBASE}")
    k.e(f"s_mov_b32 s14, {2048*1024}")
    k.e("s_mov_b32 s15, 0x00020000")
    k.e(f"s_mov_b32 s18, {512*3072}")
    k.e("s_mov_b32 s19, 0x00020000")
    k.e("s_mov_b32 m0, s44")
    k.e("s_waitcnt lgkmcnt(0)")
    k.stamp(1)
    k.e("s_mov_b64 s[12:13], s[4:5]")
    k.e("s_mov_b64 s[16:17], s[6:7]")
    first = [True]
    nout = []
    def xgrp(g, half):
        if not first[0]:
            k.e(f"s_add_u32 m0, s{44+g}, {half*(XH-512)}")
            k.e(f"s_add_u32 s36, s{48+g}, 8192")
        else:
            k.e(f"s_add_u32 s36, s{48+g}, 8192")
        first[0] = False
        k.e(f"buffer_load_dwordx4 v{vXg}, s[12:15], s{48+g} offen offset:{half*512} lds")
        k.e(f"s_add_u32 m0, s{44+g}, {half*(XH-512) + 4*XP}")
        k.e("s_nop 0")
        k.e(f"buffer_load_dwordx4 v{vXg}, s[12:15], s36 offen offset:{half*512} lds")
        nout.extend([("x", half)] * 2)
    def wstage(q):
        k.e(f"s_add_u32 m0, s34, {(q % NSLOT)*SLOT}")
        k.e(f"s_add_u32 s36, s33, {32*3072}")
        for g in range(3):
            k.e(f"buffer_load_dwordx4 v{vWg}, s[16:19], s33 offen offset:{g*1024} lds")
        if q == 7:
            k.e("s_cmp_eq_u32 s36, s35")
            k.e("s_cselect_b32 s33, s32, s36")
            k.e(f"s_add_u32 s33, s33, {256*3072}")
            k.e("s_mov_b32 s32, s35")
            k.e(f"s_add_u32 s35, s35, {256*3072}")
        elif q < 15:
            k.e("s_cmp_eq_u32 s36, s35")
            k.e("s_cselect_b32 s33, s32, s36")
        nout.extend([("w", q)] * 3)
    def wait_for(s):
        need = lambda t: (t[0] == "w" and t[1] <= s) or (t[0] == "x" and t[1] <= (1 if s >= 5 else 0))
        last = max(i for i, t in enumerate(nout) if need(t))
        k.e(f"s_waitcnt vmcnt({len(nout) - 1 - last})")
        k.e("s_barrier")
        k.tick()
    xgrp(0, 0); wstage(0)
    for g in (1, 2, 3): xgrp(g, 0)
    for q in range(1, D): wstage(q)
    k.stamp(2)
    for s in range(16):
        wait_for(s)
        if s < 2:
            xgrp(2*s, 1); xgrp(2*s+1, 1)
        if s + D < 16:
            wstage(s + D)
        if s == 15 - D:
            k.stamp(3)
        if s == 6:
            next_code_prefetch(k, 40, "k2_attn_kernel", "k2_attn_kernel")
    k.stamp(4)
    k.tick_flush(1)
    k.e(f"s_branch {k.L('fin')}")
    k.label("cons")
    k.e("s_cmp_ge_u32 s24, 8")
    k.e(f"s_cbranch_scc1 {k.L('stat')}")
    if K1_PRIO: k.e(f"s_setprio {K1_PRIO}")
    k.e(f"v_lshlrev_b32 v{vL16}, 4, v0")
    k.e("s_and_b32 s33, s24, 1")
    k.e("s_bfe_u32 s34, s24, 0x10001")
    k.e("s_xor_b32 s35, s33, s34")
    k.e(f"v_bfe_u32 v{vt0}, v0, 1, 4")
    k.e(f"v_mul_u32_u24 v{vt2}, {XP}, v{vt0}")
    k.e(f"v_lshl_add_u32 v{vt2}, v{vt1}, 4, v{vt2}")
    k.e(f"v_and_b32 v{vt0}, 1, v0")
    k.e(f"v_mul_u32_u24 v{vXp[0]}, {512+128}, v{vt0}")
    k.e(f"v_mul_u32_u24 v{vXm[0]}, {512-128}, v{vt0}")
    k.e(f"s_mul_i32 s36, s33, {16*XP}")
    k.e("s_lshl_b32 s37, s35, 5")
    k.e("s_add_u32 s38, s36, s37")
    k.e("s_xor_b32 s37, s37, 32")
    k.e("s_add_u32 s39, s36, s37")
    k.e(f"v_add3_u32 v{vXp[1]}, v{vXp[0]}, v{vt2}, s39")
    k.e(f"v_add3_u32 v{vXm[1]}, v{vXm[0]}, v{vt2}, s39")
    k.e(f"v_add3_u32 v{vXp[0]}, v{vXp[0]}, v{vt2}, s38")
    k.e(f"v_add3_u32 v{vXm[0]}, v{vXm[0]}, v{vt2}, s38")
    w = vW1[1]
    k.e(f"v_mul_u32_u24 v{w}, 3072, v{vt1}")
    k.e(f"v_bfe_u32 v{vt0}, v0, 2, 2")
    k.e(f"v_lshl_add_u32 v{w}, v{vt0}, 7, v{w}")
    k.e(f"v_bfe_u32 v{vt0}, v0, 3, 1")
    k.e(f"v_xor_b32 v{vt0}, s34, v{vt0}")
    k.e(f"v_lshl_add_u32 v{w}, v{vt0}, 6, v{w}")
    k.e(f"v_bfe_u32 v{vt0}, v0, 4, 1")
    k.e(f"v_lshl_add_u32 v{w}, v{vt0}, 5, v{w}")
    k.e(f"v_and_b32 v{vt2}, 3, v0")
    k.e(f"v_lshl_add_u32 v{w}, v{vt2}, 3, v{w}")
    k.e("s_mul_i32 s28, s35, 6144")
    k.e(f"s_add_u32 s36, s28, {WBASE}")
    k.e(f"s_sub_u32 s37, {WBASE+6144}, s28")
    k.e(f"v_add_u32 v{vW0[0]}, s36, v{w}")
    k.e(f"v_add_u32 v{vW0[1]}, s37, v{w}")
    k.e(f"v_add_u32 v{vW1[0]}, {4*SLOT}, v{vW0[0]}")
    k.e(f"v_add_u32 v{vW1[1]}, {4*SLOT}, v{vW0[1]}")
    k.e(f"v_bfe_u32 v{vt2}, v0, 2, 1")
    k.e(f"v_cmp_eq_u32 vcc, v{vt0}, v{vt2}")
    k.e(f"v_mov_b32 v{vt2}, 0x3f803f80")
    k.e("s_nop 0")
    k.e(f"v_cndmask_b32 v{sel}, 0, v{vt2}, vcc")
    for i in range(1, 4):
        k.e(f"v_mov_b32 v{sel+i}, v{sel}")
    for z in list(range(BP, BP + 16)):
        k.e(f"v_mov_b32 v{z}, 0")
    k.e("s_lshl_b32 s27, s26, 2")
    k.e("s_lshl_b32 s28, s34, 1")
    k.e("s_add_u32 s27, s27, s28")
    k.e("s_lshl_b32 s27, s27, 6")
    k.e("s_lshl_b32 s28, s25, 1")
    k.e("s_add_u32 s27, s27, s28")
    k.e("s_add_u32 s27, s27, s33")
    k.e("s_lshl_b32 s42, s27, 10")
    k.e("s_add_u32 s43, s42, 0x10000")
    k.e("s_lshl_b32 s44, s27, 11")
    k.e(f"s_add_u32 s44, s44, {hex(WS_KV)}")
    k.e("s_add_u32 s45, s44, 0x20000")
    k.e("s_waitcnt lgkmcnt(0)")
    k.stamp(1)
    srd(k, 20, 8, WS_END)
    code_prefetch(k, 46, 33, K1_CODEPF)
    def big(S, first=False):
        r = []
        for n, (X, W) in enumerate(((S['XA'], S['WA']), (S['XB'], S['WB']))):
            c = lambda a: "0" if (first and n == 0) else vr(a, 16)
            r.append(f"v_mfma_f32_32x32x16_bf16 {vr(acc[0],16)}, {vr(W[0],4)}, {vr(X,4)}, {c(acc[0])}")
            r.append(f"v_mfma_f32_32x32x16_bf16 {vr(acc[1],16)}, {vr(W[1],4)}, {vr(X,4)}, {c(acc[1])}")
            r.append(f"v_mfma_f32_32x32x16_bf16 {vr(acc[2],16)}, {vr(X,4)}, {vr(W[2],4)}, {c(acc[2])}")
        return r
    def small(S, first=False):
        return [f"v_mfma_f32_16x16x32_bf16 {vr(cs[g],4)}, {vr(sel,4)}, {vr(S['WA'][g],4)}, {'0' if first else vr(cs[g],4)}" for g in range(3)]
    def reads(q):
        S = sets[q & 1]
        koff = (q & 7) * 64
        xb = vXm if (koff & 128) else vXp
        xo = (q >> 3) * XH + koff
        sl = q % NSLOT
        wb, wo = (vW0, sl * SLOT) if sl < 4 else (vW1, (sl - 4) * SLOT)
        r = []
        for n, (X, W) in enumerate((('XA', 'WA'), ('XB', 'WB'))):
            r.append(f"ds_read_b128 {vr(S[X],4)}, v{xb[n]} offset:{xo}")
            for g in range(3):
                r.append(f"ds_read_b64_tr_b16 {vr(S[W][g],2)}, v{wb[n]} offset:{wo+g*1024}")
                r.append(f"ds_read_b64_tr_b16 {vr(S[W][g]+2,2)}, v{wb[n]} offset:{wo+g*1024+512}")
        return r
    k.stamp(2)
    k.e("s_barrier")
    k.stamp(3)
    for x in reads(0): k.e(x)
    k.e("s_waitcnt lgkmcnt(0)")
    for q in range(15):
        k.e("s_barrier")
        b = big(sets[q & 1], q == 0); s = small(sets[q & 1], q == 0)
        m = b[:5] + s + b[5:]
        spread(k, m[:-1], reads(q + 1), [], K1_PER, 5)
        k.e("s_waitcnt lgkmcnt(0)")
        k.e(m[-1])
    k.stamp(4)
    for m in small(sets[1]): k.e(m)
    k.e(f"v_and_b32 v{vt0}, 31, v0")
    k.e("s_lshl_b32 s27, s33, 7")
    k.e(f"s_add_u32 s27, s27, {MISC}")
    k.e(f"v_lshl_add_u32 v{vt0}, v{vt0}, 2, s27")
    k.e(f"v_lshl_add_u32 v{vt1}, v{vt1}, 4, s27")
    bg = big(sets[1])
    k.e(bg[0])
    k.e(f"ds_read_b32 v{BP}, v{vt0}")
    k.e(f"ds_read_b32 v{vR}, v{vt0} offset:256")
    for j in range(4):
        k.e(f"ds_read_b128 {vr(RR+4*j,4)}, v{vt1} offset:{256+j*32}")
    T = sets[0]['XA']; B = sets[0]['XB']
    k.e(bg[1])
    k.e("s_and_b32 s27, s24, 3")
    k.e("s_lshl_b32 s27, s27, 10")
    k.e(f"s_add_u32 s27, s27, {MISC2}")
    k.e(f"v_add_u32 v{vt1}, s27, v{vL16}")
    for g in range(3):
        k.e(f"v_mov_b32 v{T+g}, v{cs[g]}")
    k.e(f"ds_write_b128 v{vt1}, {vr(T,4)}")
    k.e(bg[2])
    k.e(f"v_xor_b32 v{vt1}, 1024, v{vt1}")
    k.e("v_cmp_gt_u32 vcc, 32, v0")
    k.e("s_waitcnt lgkmcnt(0)")
    k.e(bg[3])
    k.e("s_barrier")
    k.e(f"ds_read_b128 {vr(B,4)}, v{vt1}")
    k.e(bg[4])
    k.e(f"v_cndmask_b32 v{BP}, 0, v{BP}, vcc")
    k.e(f"v_mul_f32 v{vR2}, {f32(0.25*1.4426950408889634)}, v{vR}")
    k.e(f"v_bfe_u32 v{vt0}, v0, 4, 1")
    k.e(f"v_lshlrev_b32 v{vt0}, 17, v{vt0}")
    k.e(f"v_lshrrev_b32 v{vt1}, 5, v0")
    k.e(bg[5])
    k.e(f"v_lshl_add_u32 v{vt0}, v{vt1}, 8, v{vt0}")
    k.e(f"v_and_b32 v{vt1}, 15, v0")
    k.e(f"v_lshl_add_u32 v{vt0}, v{vt1}, 4, v{vt0}")
    k.e("s_waitcnt lgkmcnt(0)")
    for g in range(3):
        k.e(f"v_add_f32 v{T+g}, v{T+g}, v{B+g}")
        split2(k, T + g, AP[g], vt2)
        if g == 1: mfma32(k, acc[0], AP[0], BP)
        if g == 2: mfma32(k, acc[1], AP[1], BP)
    k.e("s_nop 0")
    mfma32(k, acc[2], BP, AP[2])
    k.e("s_nop 4")
    for b, (sc, soffs) in enumerate(((vR2, (42, 43)), (vR, (44, 45)))):
        for i in range(0, 16, 2):
            if b == 0 and i < 8:
                k.e(f"v_mul_f32 v{acc[b]+i}, v{sc}, v{acc[b]+i}")
                k.e(f"v_mul_f32 v{acc[b]+i+1}, v{sc}, v{acc[b]+i+1}")
            else:
                pkmul_bcast(k, acc[b] + i, sc)
        for i in range(8):
            k.e(f"v_cvt_pk_bf16_f32 v{acc[b]+i}, v{acc[b]+2*i}, v{acc[b]+2*i+1}")
        k.e(f"buffer_store_dwordx4 {vr(acc[b],4)}, v{vL16}, s[20:23], s{soffs[0]} offen")
        k.e(f"buffer_store_dwordx4 {vr(acc[b]+4,4)}, v{vL16}, s[20:23], s{soffs[1]} offen")
    a = acc[2]
    for i in range(0, 16, 2):
        k.e(f"v_pk_mul_f32 {vr(a+i,2)}, {vr(a+i,2)}, {vr(RR+i,2)}")
    for i in range(8):
        k.e(f"v_cvt_pk_bf16_f32 v{a+i}, v{a+2*i}, v{a+2*i+1}")
    k.e(f"v_permlane32_swap_b32 v{a}, v{a+2}")
    k.e(f"v_permlane32_swap_b32 v{a+1}, v{a+3}")
    k.e(f"buffer_store_dwordx4 {vr(a,4)}, v{vt0}, s[20:23], s44 offen offset:1024")
    k.e(f"v_permlane32_swap_b32 v{a+4}, v{a+6}")
    k.e(f"v_permlane32_swap_b32 v{a+5}, v{a+7}")
    k.e(f"buffer_store_dwordx4 {vr(a+4,4)}, v{vt0}, s[20:23], s44 offen offset:1536")
    k.label("fin")
    k.stamp_flush(1)
    k.label("end")
    k.e("s_endpgm")
    k.label("stat")
    if K1_NOSTAT:
        k.e("s_endpgm")
    k.e("s_setprio 3")
    vSum = vXp[0]; vSq = vXp[1]; vSum2 = vXm[0]; vSq2 = vXm[1]; vXs = vW0[0]
    k.e("s_and_b32 s29, s24, 3")
    k.e("s_add_u32 s30, s27, 8")
    k.e("s_lshl_b32 s30, s30, 5")
    k.e("s_lshl_b32 s31, s29, 3")
    k.e("s_add_u32 s30, s30, s31")
    k.e("s_mul_i32 s30, s30, 3072")
    k.e("s_lshl_b32 s31, s26, 7")
    k.e("s_add_u32 s30, s30, s31")
    k.e("s_lshl_b32 s31, s25, 6")
    k.e("s_lshl_b32 s32, s28, 4")
    k.e("s_add_u32 s31, s31, s32")
    k.e("s_lshl_b32 s32, s29, 2")
    k.e("s_add_u32 s31, s31, s32")
    k.e("s_lshl_b32 s31, s31, 10")
    k.e("s_add_u32 s31, s31, 512")
    k.e(f"v_and_b32 v{vt0}, 15, v0")
    k.e(f"v_lshrrev_b32 v{vt2}, 1, v{vt0}")
    k.e(f"v_mul_u32_u24 v{vXs}, {XP}, v{vt2}")
    k.e(f"v_and_b32 v{vt2}, 1, v0")
    k.e(f"v_lshl_add_u32 v{vXs}, v{vt2}, 9, v{vXs}")
    k.e(f"v_lshrrev_b32 v{vt1}, 4, v0")
    k.e(f"v_xor_b32 v{vt1}, v{vt1}, v{vt2}")
    k.e(f"v_lshl_add_u32 v{vXs}, v{vt1}, 7, v{vXs}")
    k.e(f"s_mul_i32 s36, s29, {8*XP}")
    k.e(f"v_add_u32 v{vXs}, s36, v{vXs}")
    for z in (vSum, vSq, vSum2, vSq2):
        k.e(f"v_mov_b32 v{z}, 0")
    k.e("s_mov_b32 s41, 0xffff0000")
    k.e("s_mov_b32 s40, 4")
    k.e("s_waitcnt lgkmcnt(0)")
    k.e("s_add_u32 s32, s6, s30")
    k.e("s_addc_u32 s33, s7, 0")
    k.e("s_add_u32 s34, s4, s31")
    k.e("s_addc_u32 s35, s5, 0")
    if K1_SPF:
        pf = [f"s_load_dword s48, s[34:35], {r*1024 + c*128}" for r in range(4) for c in range(4)]
        pf += [f"s_load_dword s48, s[32:33], {r*1024}" for r in range(24)]
        for x in pf[:K1_SPF]: k.e(x)
    XS = [sets[0]['XA'], sets[0]['XB']]
    tl = [sets[1]['XA'] + i for i in range(4)]
    def proc(X):
        for i in range(4):
            a, b = tl[(2*i) % 4], tl[(2*i+1) % 4]
            x = X + i
            for ln in [f"v_lshlrev_b32 v{a}, 16, v{x}", f"v_and_b32 v{b}, s41, v{x}",
                       f"v_fmac_f32 v{vSq}, v{a}, v{a}", f"v_fmac_f32 v{vSq2}, v{b}, v{b}",
                       f"v_add_f32 v{vSum}, v{vSum}, v{a}", f"v_add_f32 v{vSum2}, v{vSum2}, v{b}"]:
                k.e(ln)
    k.e("s_mov_b32 s40, 0")
    k.e("s_barrier")
    k.e(f"ds_read_b128 {vr(XS[0],4)}, v{vXs}")
    k.label("sloop")
    k.e("s_waitcnt lgkmcnt(0)")
    k.e(f"ds_read_b128 {vr(XS[1],4)}, v{vXs} offset:16")
    k.e("s_cmp_eq_u32 s40, 3")
    k.e(f"s_cselect_b32 s36, {XH-96}, 32")
    k.e(f"v_add_u32 v{vXs}, s36, v{vXs}")
    k.e("s_cmp_lt_u32 s40, 2")
    proc(XS[0])
    k.e(f"s_cbranch_scc1 {k.L('snb')}")
    k.e("s_barrier")
    k.label("snb")
    k.e("s_waitcnt lgkmcnt(0)")
    k.e(f"ds_read_b128 {vr(XS[0],4)}, v{vXs}")
    k.e("s_add_u32 s40, s40, 1")
    k.e("s_cmp_lt_u32 s40, 8")
    proc(XS[1])
    k.e("s_barrier")
    k.e(f"s_cbranch_scc1 {k.L('sloop')}")
    k.e(f"v_add_f32 v{vSum}, v{vSum}, v{vSum2}")
    k.e(f"v_add_f32 v{vSq}, v{vSq}, v{vSq2}")
    k.e("s_nop 1")
    k.e(f"v_permlane32_swap_b32 v{vSum}, v{vSq}")
    k.e(f"v_add_f32 v{vSum}, v{vSum}, v{vSq}")
    k.e(f"v_mov_b32 v{vSq}, v{vSum}")
    k.e("s_nop 1")
    k.e(f"v_permlane16_swap_b32 v{vSum}, v{vSq}")
    k.e(f"v_add_f32 v{vSum}, v{vSum}, v{vSq}")
    k.e(f"v_mov_b32 v{vSq}, v{vSum}")
    k.e("s_nop 1")
    k.e(f"v_permlane32_swap_b32 v{vSum}, v{vSq}")
    ln_finish(k, vSum, vSq, vSum2, vSq2, vt2, vt1)
    k.e("s_lshl_b32 s36, s29, 6")
    k.e(f"s_add_u32 s36, s36, {MISC}")
    k.e(f"v_lshl_add_u32 v{vt0}, v{vt0}, 2, s36")
    k.e(f"ds_write2_b32 v{vt0}, v{vSum2}, v{vSq2} offset0:0 offset1:64")
    k.e("s_waitcnt lgkmcnt(0)")
    k.e("s_barrier")
    k.e("s_endpgm")
    return k

def gen_k2():
    k = K("k2_attn_kernel")
    STG = 131072
    k.lds = STG + 32768
    vl = k.v(); vt0 = k.v(); vt1 = k.v(); vL16 = k.v(); vK = k.v(); vV = k.v(); vSrc = k.v(); vDst = k.v()
    vIdx = k.v(); vCs = k.v(); vt2 = k.v(); vt3 = k.v()
    Q = k.v(4); KA = k.v(4); KB = k.v(4)
    VA = [k.v(4), k.v(4)]; VB = [k.v(4), k.v(4)]
    PR = [k.v(4) for _ in range(4)]
    NM = k.v(16); SA = k.v(16); SB = k.v(16); O = k.v(16)
    k.e("s_cmp_ge_u32 s2, 256")
    k.e(f"s_cbranch_scc1 {k.L('end')}")
    k.stamp(0)
    k.e("s_load_dwordx2 s[8:9], s[0:1], 72")
    k.e("s_load_dwordx2 s[4:5], s[0:1], 16")
    k.e("s_load_dwordx4 s[12:15], s[0:1], 32")
    k.e("s_load_dwordx2 s[6:7], s[0:1], 48")
    wave_setup(k, vt0)
    k.e(f"v_lshlrev_b32 v{vL16}, 4, v0")
    k.e("s_and_b32 s25, s2, 1")
    k.e("s_lshl_b32 s25, s25, 4")
    k.e("s_bfe_u32 s27, s2, 0x40003")
    k.e("s_add_u32 s25, s25, s27")
    k.e("s_and_b32 s40, s2, 6")
    k.e("s_lshr_b32 s26, s2, 7")
    k.e("s_add_u32 s26, s26, s40")
    k.e("s_lshl_b32 s40, s40, 14")
    k.e("s_lshl_b32 s26, s26, 3")
    k.e("s_add_u32 s26, s26, s24")
    k.e("s_lshl_b32 s27, s25, 6")
    k.e("s_add_u32 s27, s27, s26")
    k.e("s_lshl_b32 s28, s27, 10")
    k.e("s_lshl_b32 s29, s25, 17")
    k.e(f"s_add_u32 s29, s29, {hex(WS_KV)}")
    k.e("s_lshl_b32 m0, s24, 11")
    k.e("s_add_u32 s27, s29, m0")
    k.e("s_add_u32 s27, s27, s40")
    k.e("s_waitcnt lgkmcnt(0)")
    k.stamp(1)
    srd(k, 20, 8, WS_END)
    k.e(f"buffer_load_dwordx4 v{vL16}, s[20:23], s27 offen lds")
    k.e(f"buffer_load_dwordx4 {vr(Q,4)}, v{vL16}, s[20:23], s28 offen")
    k.e(f"buffer_load_dwordx4 v{vL16}, s[20:23], s27 offen offset:1024 lds")
    k.e("s_and_b32 s30, s24, 3")
    k.e("s_lshl_b32 s30, s30, 12")
    k.e("s_cmp_ge_u32 s24, 4")
    k.e("s_cselect_b32 s31, 0x10000, 0x4000" if False else "s_cselect_b32 s31, 4, 1")
    k.e("s_lshl_b32 s31, s31, 14")
    k.e("s_add_u32 s30, s30, s31")
    def bulk(nch, tag):
        k.e(f"s_mov_b32 s31, {nch}")
        k.label(tag)
        k.e("s_mov_b32 m0, s30")
        k.e("s_add_u32 s27, s30, s40")
        k.e("s_and_b32 s27, s27, 0x1ffff")
        k.e("s_add_u32 s27, s27, s29")
        for g in range(4):
            k.e(f"buffer_load_dwordx4 v{vL16}, s[20:23], s27 offen offset:{g*1024} lds")
        k.e("s_add_u32 s30, s30, 16384")
        k.e("s_sub_u32 s31, s31, 1")
        k.e("s_cmp_lg_u32 s31, 0")
        k.e(f"s_cbranch_scc1 {k.L(tag)}")
    k.e(f"v_lshrrev_b32 v{vt1}, 5, v0")
    k.e(f"v_mov_b32 v{vK}, v{vL16}")
    k.e(f"v_lshlrev_b32 v{vV}, 8, v{vt1}")
    k.e(f"v_and_b32 v{vt0}, 15, v0")
    k.e(f"v_lshl_add_u32 v{vV}, v{vt0}, 4, v{vV}")
    k.e(f"v_mov_b32 v{vt0}, 0x3f803f80")
    if ZROWS:
        k.e(f"v_and_b32 v{vt2}, 11, v0")
        k.e(f"v_cmp_eq_u32 vcc, 0, v{vt2}")
        k.e("s_nop 1")
        k.e(f"v_cndmask_b32 v{vt0}, 0, v{vt0}, vcc")
    for r in VA + VB:
        for i in range(4):
            k.e(f"v_mov_b32 v{r+i}, v{vt0}")
    k.e(f"v_mov_b32 v{vIdx}, 0xdddddddd")
    k.e("s_mov_b32 s42, 0x0000ffff")
    k.e("s_mov_b32 s43, 0x0000ffff")
    k.e("s_mov_b32 s44, 0")
    k.e("s_mov_b32 s45, 0")
    k.stamp(2)
    k.e("s_waitcnt vmcnt(0)")
    k.e("s_barrier")
    k.e(f"ds_read_b128 {vr(KA,4)}, v{vK}")
    k.e("s_cmp_ge_u32 s24, 4")
    k.e(f"s_cbranch_scc1 {k.L('nob1')}")
    bulk(3, "bulk1")
    k.label("nob1")
    k.e(f"s_branch {k.L('prep1')}")
    k.label("prep1r")
    k.e("s_waitcnt lgkmcnt(0)")
    mfma32(k, SA, KA, Q, "0")
    k.e("s_nop 7")
    k.e("s_nop 3")
    k.e(f"v_max3_f32 v{vt0}, v{SA}, v{SA+1}, v{SA+2}")
    for i in range(3, 15, 2):
        k.e(f"v_max3_f32 v{vt0}, v{vt0}, v{SA+i}, v{SA+i+1}")
    k.e(f"v_max_f32 v{vt0}, v{vt0}, v{SA+15}")
    k.label("setm")
    k.e(f"ds_read_b128 {vr(KB,4)}, v{vK} offset:2048")
    k.e("s_mov_b64 exec, s[42:43]")
    k.e(f"ds_read_b128 {vr(VA[0],4)}, v{vV} offset:1024")
    k.e(f"ds_read_b128 {vr(VA[1],4)}, v{vV} offset:1536")
    k.e("s_mov_b64 exec, -1")
    k.e(f"v_mov_b32 v{vt1}, v{vt0}")
    k.e("s_nop 1")
    k.e(f"v_permlane32_swap_b32 v{vt0}, v{vt1}")
    k.e(f"v_max_f32 v{vt0}, v{vt0}, v{vt1}")
    for i in range(16):
        k.e(f"v_sub_f32 v{NM+i}, 0, v{vt0}")
    k.e("s_nop 1")
    mfma32(k, SA, KA, Q, NM)
    for i in range(16):
        k.e(f"v_mov_b32 v{O+i}, 0")
    for i in range(8, 16):
        k.e(f"v_mov_b32 v{SB+i}, 0")
    k.e("s_mov_b32 s41, 0")
    k.stamp(3)
    def smf(a, b):
        k.e(f"v_smfmac_f32_32x32x32_bf16 {vr(O,16)}, {vr(a,4)}, {vr(b,8)}, v{vIdx}")
    k.label("loop")
    for t in range(8):
        half = t & 1
        S, Sn = (SA, SB) if half == 0 else (SB, SA)
        Kn, Knn = (KB, KA) if half == 0 else (KA, KB)
        Vc, Vp = (VA, VB) if half == 0 else (VB, VA)
        base = t * 2048
        if half == 0:
            k.e(f"s_setprio {3 - t//2}")
        if t == 6:
            k.e("s_cmp_eq_u32 s41, s44")
            k.e(f"s_cbranch_scc1 {k.L('chk')}")
            k.label("back")
        for i in range(0, 3):
            k.e(f"v_exp_f32 v{S+i}, v{S+i}")
        smf(Vp[1], Sn + 8)
        for i in range(3, 8):
            k.e(f"v_exp_f32 v{S+i}, v{S+i}")
        k.e("s_waitcnt lgkmcnt(2)")
        mfma32(k, Sn, Kn, Q, NM)
        k.e(f"ds_read_b128 {vr(Knn,4)}, v{vK} offset:{base+4096}")
        for i in range(8, 13):
            k.e(f"v_exp_f32 v{S+i}, v{S+i}")
        k.e("s_waitcnt lgkmcnt(1)")
        smf(Vc[0], S)
        k.e("s_mov_b64 exec, s[42:43]")
        k.e(f"ds_read_b128 {vr(Vp[0],4)}, v{vV} offset:{base+2048+1024}")
        k.e(f"ds_read_b128 {vr(Vp[1],4)}, v{vV} offset:{base+2048+1536}")
        k.e("s_mov_b64 exec, -1")
        if t == 7:
            k.e(f"v_add_u32 v{vK}, 0x4000, v{vK}")
            k.e(f"v_add_u32 v{vV}, 0x4000, v{vV}")
            k.e("s_add_u32 s41, s41, 1")
            k.e("s_cmp_lt_u32 s41, 8")
        for i in range(13, 16):
            k.e(f"v_exp_f32 v{S+i}, v{S+i}")
    k.e(f"s_cbranch_scc1 {k.L('loop')}")
    k.stamp(4)
    k.e("s_nop 0")
    smf(VB[1], SB + 8)
    k.e("s_lshr_b32 s27, s26, 1")
    k.e("s_lshl_b32 s27, s27, 5")
    k.e("s_add_u32 s27, s27, s25")
    k.e("s_lshl_b32 s27, s27, 1")
    k.e("s_and_b32 s28, s26, 1")
    k.e("s_add_u32 s27, s27, s28")
    k.e("s_lshl_b32 s27, s27, 10")
    k.e(f"s_add_u32 s27, s27, {hex(WS_O)}")
    k.e("s_waitcnt lgkmcnt(0)")
    k.e(f"v_mov_b32 v{vt1}, {f32(2.0**60)}")
    k.e("s_nop 1")
    k.e(f"v_cmp_nlt_f32 vcc, v{O+8}, v{vt1}")
    k.e(f"v_rcp_f32 v{vt0}, v{O+8}")
    k.e(f"s_cbranch_vccnz {k.L('fb')}")
    k.label("fin")
    for i in range(8):
        k.e(f"v_mul_f32 v{O+i}, v{vt0}, v{O+i}")
    for i in range(4):
        k.e(f"v_cvt_pk_bf16_f32 v{O+i}, v{O+2*i}, v{O+2*i+1}")
    k.e(f"buffer_store_dwordx4 {vr(O,4)}, v{vL16}, s[20:23], s27 offen")
    k.stamp_flush(2)
    k.label("end")
    k.e("s_endpgm")
    k.label("fb")
    k.e("s_cmp_eq_u32 s45, 0")
    k.e(f"s_cbranch_scc0 {k.L('fin')}")
    k.e("s_mov_b32 s45, 1")
    k.e(f"v_mov_b32 v{vK}, v{vL16}")
    k.e(f"v_subrev_u32 v{vV}, 0x20000, v{vV}")
    k.e(f"v_mov_b32 v{vt0}, 0xff800000")
    k.e("s_mov_b32 s41, 0")
    k.label("fbloop")
    k.e(f"ds_read_b128 {vr(KA,4)}, v{vK}")
    k.e(f"v_add_u32 v{vK}, 2048, v{vK}")
    k.e("s_waitcnt lgkmcnt(0)")
    mfma32(k, SA, KA, Q, "0")
    k.e("s_add_u32 s41, s41, 1")
    k.e("s_cmp_lt_u32 s41, 64")
    k.e("s_nop 7")
    k.e("s_nop 3")
    for i in range(0, 16, 2):
        k.e(f"v_max3_f32 v{vt0}, v{vt0}, v{SA+i}, v{SA+i+1}")
    k.e(f"s_cbranch_scc1 {k.L('fbloop')}")
    k.e(f"v_mov_b32 v{vK}, v{vL16}")
    k.e(f"ds_read_b128 {vr(KA,4)}, v{vK}")
    k.e("s_waitcnt lgkmcnt(0)")
    k.e(f"s_branch {k.L('setm')}")
    k.label("chk")
    k.e("s_add_u32 s44, s44, 1")
    k.e("s_cmp_eq_u32 s41, 1")
    k.e(f"s_cbranch_scc1 {k.L('prep2')}")
    k.e("s_cmp_eq_u32 s41, 3")
    k.e(f"s_cbranch_scc1 {k.L('b2')}")
    k.e("s_cmp_lt_u32 s24, 4")
    k.e(f"s_cbranch_scc1 {k.L('b1a')}")
    k.e("s_barrier")
    bulk(4, "bulk2")
    k.e(f"s_branch {k.L('back')}")
    k.label("b1a")
    k.e("s_waitcnt vmcnt(4)")
    k.e("s_cmp_eq_u32 s46, 0")
    k.e(f"s_cbranch_scc0 {k.L('b1b')}")
    k.e("s_waitcnt vmcnt(0)")
    k.label("b1b")
    k.e("s_barrier")
    k.e(f"s_branch {k.L('back')}")
    k.label("prep1")
    k.e("s_sub_u32 s27, 7, s24")
    k.e("s_lshl_b32 s27, s27, 8")
    k.e("s_add_u32 s27, s27, s2")
    k.e("s_mov_b32 s46, 0")
    k.e("s_cmp_ge_u32 s27, 1176")
    k.e(f"s_cbranch_scc1 {k.L('prep1r')}")
    k.e("s_mov_b32 s46, 1")
    k.e(f"v_lshrrev_b32 v{vt1}, 5, v0")
    k.e(f"v_and_b32 v{vt0}, 31, v0")
    k.e("s_cmp_lt_u32 s27, 704")
    k.e(f"s_cbranch_scc0 {k.L('prepB')}")
    k.e("s_cmp_ge_u32 s27, 352")
    k.e("s_cselect_b32 s47, 256, 0")
    k.e("s_cselect_b32 s16, s14, s12")
    k.e("s_cselect_b32 s17, s15, s13")
    k.e("s_cselect_b32 s28, 352, 0")
    k.e("s_sub_u32 s27, s27, s28")
    k.e("s_and_b32 s34, s27, 15")
    k.e("s_lshr_b32 s32, s27, 4")
    k.e(f"s_mov_b32 s18, {512*2752}")
    k.e("s_mov_b32 s33, 2752")
    for p in range(2):
        k.e("s_lshl_b32 s27, s32, 1")
        if p: k.e("s_add_u32 s27, s27, 1")
        k.e("s_mul_i32 s28, s27, 43691")
        k.e("s_lshr_b32 s28, s28, 17")
        k.e("s_mul_i32 s35, s28, 186")
        k.e("s_lshl_b32 s28, s27, 1")
        k.e("s_add_u32 s35, s35, s28")
        k.e("s_mul_i32 s28, s34, 12")
        k.e("s_add_u32 s35, s35, s28")
        k.e("s_lshl_b32 s35, s35, 10")
        k.e(f"s_add_u32 s{36+p}, s35, {hex(WS_WGU)}")
    k.e("s_cmp_eq_u32 s32, 21")
    k.e(f"s_cselect_b32 s37, {hex(OOB)}, s37")
    k.e("s_mov_b32 s38, 6144")
    k.e(f"v_lshrrev_b32 v{vt2}, 4, v{vt0}")
    k.e(f"v_and_b32 v{vt3}, 15, v0")
    k.e(f"v_lshlrev_b32 v{vt3}, 4, v{vt3}")
    k.e(f"v_add_u32 v{vt3}, s47, v{vt3}")
    k.e(f"v_lshl_add_u32 v{vDst}, v{vt2}, 10, v{vt3}")
    k.e(f"v_lshl_add_u32 v{vDst}, v{vt1}, 9, v{vDst}")
    k.e(f"v_lshl_add_u32 v{vCs}, v{vt2}, 11, v{vt3}")
    k.e(f"v_lshl_add_u32 v{vCs}, v{vt1}, 12, v{vCs}")
    k.e("s_lshl_b32 s39, s32, 13")
    k.e("s_lshr_b32 s27, s34, 2")
    k.e("s_lshl_b32 s27, s27, 9")
    k.e("s_add_u32 s39, s39, s27")
    k.e("s_and_b32 s27, s34, 3")
    k.e("s_lshl_b32 s27, s27, 2")
    k.e("s_add_u32 s39, s39, s27")
    k.e(f"s_add_u32 s39, s39, {hex(WS_CS)}")
    k.e(f"s_branch {k.L('prepC')}")
    k.label("prepB")
    k.e("s_cmp_lt_u32 s27, 1048")
    k.e("s_cselect_b32 s16, s6, s4")
    k.e("s_cselect_b32 s17, s7, s5")
    k.e(f"s_mov_b32 s18, {512*1024}")
    k.e(f"s_cselect_b32 s18, {1376*1024}, s18")
    k.e("s_cselect_b32 s35, 86, 32")
    k.e("s_movk_i32 s28, 1048")
    k.e("s_cselect_b32 s28, 704, s28")
    k.e(f"s_mov_b32 s36, {hex(WS_WO)}")
    k.e(f"s_cselect_b32 s36, {hex(WS_WD)}, s36")
    k.e("s_sub_u32 s27, s27, s28")
    k.e("s_and_b32 s32, s27, 7")
    k.e("s_lshr_b32 s34, s27, 3")
    k.e("s_mov_b32 s33, 1024")
    k.e("s_mul_i32 s27, s32, s35")
    k.e("s_lshl_b32 s28, s34, 1")
    k.e("s_add_u32 s27, s27, s28")
    k.e("s_lshl_b32 s27, s27, 11")
    k.e("s_add_u32 s36, s36, s27")
    k.e("s_add_u32 s37, s36, 1024")
    k.e("s_mov_b32 s38, 2048")
    k.e(f"v_mov_b32 v{vDst}, v{vL16}")
    k.e(f"v_mov_b32 v{vCs}, 0")
    k.e(f"s_mov_b32 s39, {hex(OOB)}")
    k.label("prepC")
    k.e("s_mov_b32 s19, 0x00020000")
    k.e(f"v_lshrrev_b32 v{vt2}, 3, v0")
    k.e(f"v_mul_u32_u24 v{vSrc}, s33, v{vt2}")
    k.e(f"v_lshrrev_b32 v{vt2}, 2, v0")
    k.e(f"v_and_b32 v{vt2}, 4, v{vt2}")
    k.e(f"v_xor_b32 v{vt2}, v{vt2}, v0")
    k.e(f"v_and_b32 v{vt2}, 7, v{vt2}")
    k.e(f"v_lshl_add_u32 v{vSrc}, v{vt2}, 4, v{vSrc}")
    k.e("s_lshl_b32 s27, s34, 5")
    k.e("s_mul_i32 s27, s27, s33")
    k.e("s_lshl_b32 s28, s32, 7")
    k.e("s_add_u32 s27, s27, s28")
    k.e("s_lshl_b32 s33, s33, 3")
    k.e("s_lshl_b32 s28, s24, 12")
    k.e(f"s_add_u32 s28, s28, {STG}")
    for rb in range(4):
        k.e(f"s_add_u32 m0, s28, {rb*1024}")
        k.e("s_nop 0")
        k.e(f"buffer_load_dwordx4 v{vSrc}, s[16:19], s27 offen lds")
        k.e("s_add_u32 s27, s27, s33")
    k.e(f"v_and_b32 v{vt2}, 3, v0")
    k.e(f"v_lshlrev_b32 v{vSrc}, 3, v{vt2}")
    k.e(f"v_lshl_add_u32 v{vSrc}, v{vt1}, 9, v{vSrc}")
    k.e(f"v_bfe_u32 v{vt2}, v0, 2, 2")
    k.e(f"v_lshl_add_u32 v{vSrc}, v{vt2}, 7, v{vSrc}")
    k.e(f"v_bfe_u32 v{vt2}, v0, 3, 1")
    k.e(f"v_lshl_add_u32 v{vSrc}, v{vt2}, 6, v{vSrc}")
    k.e(f"v_bfe_u32 v{vt2}, v0, 4, 1")
    k.e(f"v_lshl_add_u32 v{vSrc}, v{vt2}, 5, v{vSrc}")
    k.e(f"v_add_u32 v{vSrc}, s28, v{vSrc}")
    k.e(f"s_branch {k.L('prep1r')}")
    k.label("prep2")
    k.e("s_mov_b32 s44, 3")
    k.e("s_cmp_eq_u32 s46, 0")
    k.e(f"s_cbranch_scc1 {k.L('back')}")
    k.e(f"v_xor_b32 v{vt2}, 64, v{vSrc}")
    k.e("s_waitcnt vmcnt(0)")
    for ksl in range(2):
        for p in range(2):
            r = PR[ksl*2+p]
            a = vSrc if p == 0 else vt2
            k.e(f"ds_read_b64_tr_b16 {vr(r,2)}, v{a} offset:{ksl*2048}")
            k.e(f"ds_read_b64_tr_b16 {vr(r+2,2)}, v{a} offset:{ksl*2048+1024}")
    k.e(f"v_mov_b32 v{vt0}, 0")
    k.e(f"v_mov_b32 v{vt1}, 0")
    k.e("s_mov_b32 s27, 0x3f803f80")
    k.e("s_waitcnt lgkmcnt(0)")
    for ksl in range(2):
        for p in range(2):
            r = PR[ksl*2+p]
            k.e(f"buffer_store_dwordx4 {vr(r,4)}, v{vDst}, s[20:23], s{36+p} offen {PREP_ST}")
            if ksl == 0:
                k.e(f"s_add_u32 s{36+p}, s{36+p}, s38")
            for i in range(4):
                k.e(f"v_dot2c_f32_bf16 v{vt0 if p == 0 else vt1}, s27, v{r+i}")
    k.e("s_nop 2")
    k.e(f"v_permlane32_swap_b32 v{vt0}, v{vt1}")
    k.e(f"v_add_f32 v{vt0}, v{vt0}, v{vt1}")
    k.e(f"buffer_store_dword v{vt0}, v{vCs}, s[20:23], s39 offen")
    k.e(f"s_branch {k.L('back')}")
    k.label("b2")
    k.e("s_waitcnt vmcnt(0)")
    k.e("s_barrier")
    k.e("s_mov_b32 s44, 99")
    next_code_prefetch(k, 48, "k3_wo_kernel", "k5_down_kernel")
    if PREFETCH:
        k.e("s_lshr_b32 s27, s2, 3")
        k.e("s_lshl_b32 s27, s27, 3")
        k.e("s_add_u32 s27, s27, s24")
        k.e("s_and_b32 s28, s2, 1")
        for (base, half, per, reg) in ((WS_WO, 0x40000, 1024, PR[0]), (WS_WGU, 8*32*6144, 6144, PR[0]+1), (WS_WD, 4*86*2048, 2752, PR[0]+2)):
            nl = (per + 127) // 128
            k.e(f"s_mul_i32 s32, s28, {half}")
            k.e(f"s_mul_i32 s33, s27, {per}")
            k.e("s_add_u32 s32, s32, s33")
            k.e(f"s_add_u32 s32, s32, {hex(base)}")
            k.e(f"v_min_u32 v{vt0}, {nl-1 if per % 128 == 0 else nl}, v0")
            k.e(f"v_lshlrev_b32 v{vt0}, 7, v{vt0}")
            k.e(f"buffer_load_dword v{reg}, v{vt0}, s[20:23], s32 offen")
    k.e(f"s_branch {k.L('back')}")
    return k

def gen_gemm64(name, nks, act_off, w_off, mode):
    k = K(name)
    NSLOT = G64_NSLOT
    D = G64_D
    SLOT = 16384
    RES = NSLOT * SLOT
    k.lds = RES + 8192
    nst = (nks + 3) // 4
    assert nst % 2 == 0
    vl = k.v(); vt0 = k.v(); vt1 = k.v(); vL16 = k.v(); vAb = k.v(); vWb = k.v(); vA = k.v(); vW = k.v()
    vS = k.v(); vQ = k.v(); vO = k.v(); vt2 = k.v()
    vRa = k.v(4)
    R = k.v(8)
    acc = k.v(16)
    T = k.v(16)
    sets = [dict(A=[k.v(4) for _ in range(4)], W=[k.v(4) for _ in range(4)]) for _ in range(2)]
    k.e("s_cmp_ge_u32 s2, 256")
    k.e(f"s_cbranch_scc1 {k.L('end')}")
    k.stamp(0)
    k.tick()
    k.e("s_load_dwordx2 s[8:9], s[0:1], 72")
    k.e(f"s_load_dwordx2 s[4:5], s[0:1], {0 if mode == 'wo' else 56}")
    wave_setup(k, vt0)
    tile_map_32x8(k, 25, 26, 27, 28)
    k.e(f"v_lshlrev_b32 v{vL16}, 4, v0")
    k.e("s_and_b32 s33, s24, 1")
    k.e("s_bfe_u32 s34, s24, 0x10001")
    def hf_offset():
        k.e("s_lshr_b32 s35, s25, 1")
        k.e("s_lshl_b32 s35, s35, 5")
        k.e("s_lshl_b32 s30, s26, 2")
        k.e("s_add_u32 s35, s35, s30")
        k.e("s_lshl_b32 s30, s34, 1")
        k.e("s_add_u32 s35, s35, s30")
        k.e("s_lshl_b32 s35, s35, 2")
        k.e("s_and_b32 s30, s25, 1")
        k.e("s_lshl_b32 s30, s30, 1")
        k.e("s_add_u32 s35, s35, s30")
        k.e("s_add_u32 s35, s35, s33")
        k.e("s_lshl_b32 s35, s35, 10")
        k.e(f"s_add_u32 s35, s35, {hex(WS_H)}")
    k.e("s_cmp_ge_u32 s24, 4")
    k.e(f"s_cbranch_scc1 {k.L('cons')}")
    split = 4 if mode == "wo" else 12
    k.e(f"s_mul_i32 s27, s25, {nks*2048}")
    k.e(f"s_add_u32 s27, s27, {hex(act_off)}")
    k.e(f"s_mul_i32 s30, s26, {nks*2048}")
    k.e(f"s_add_u32 s30, s30, {hex(w_off)}")
    k.e("s_cmp_eq_u32 s34, 0")
    k.e("s_cselect_b32 s30, s27, s30")
    k.e("s_lshl_b32 s29, s33, 12")
    k.e("s_lshl_b32 s32, s24, 12")
    k.e("s_bitcmp1_b32 s2, 0")
    k.e(f"s_cselect_b32 s31, {split*8192}, 0")
    k.e(f"s_cselect_b32 s36, 0, {split*8192}")
    k.e("s_add_u32 s31, s31, s29")
    nl = 16 if mode == "wo" else 48
    k.e("s_lshl_b32 s28, s28, 2")
    k.e("s_add_u32 s28, s28, s24")
    k.e(f"s_mul_i32 s28, s28, {nl*128}")
    k.e("s_add_u32 s27, s27, s28")
    k.e("s_add_u32 s27, s27, s36")
    k.e(f"s_mov_b32 s18, {nks*2048}")
    k.e("s_mov_b32 s19, 0x00020000")
    k.e("s_mov_b32 m0, s32")
    k.e("s_waitcnt lgkmcnt(0)")
    k.stamp(1)
    k.e("s_add_u32 s16, s8, s30")
    k.e("s_addc_u32 s17, s9, 0")
    nout = []
    def issue(q):
        if q:
            k.e(f"s_add_u32 m0, s32, {(q % NSLOT)*SLOT}")
            if q == nst - split:
                k.e("s_add_u32 s31, s31, 8192")
                k.e("s_bitcmp1_b32 s2, 0")
                k.e("s_cselect_b32 s31, s29, s31")
            else:
                k.e("s_add_u32 s31, s31, 8192")
        for g in range(4):
            k.e(f"buffer_load_dwordx4 v{vL16}, s[16:19], s31 offen offset:{g*1024} lds")
        nout.extend([q] * 4)
    pf = [f"s_load_dword s48, s[46:47], {i*128}" for i in range(nl)] if ACTPF else []
    def resid():
        k.e("s_lshl_b32 s27, s24, 11")
        k.e(f"s_add_u32 m0, s27, {RES}")
        if mode == "wo":
            srd(k, 12, 4, 2048 * 1024)
            k.e(f"v_lshrrev_b32 v{vt0}, 3, v0")
            k.e(f"v_xor_b32 v{vt1}, v{vt0}, v0")
            k.e(f"v_and_b32 v{vt1}, 7, v{vt1}")
            k.e(f"v_lshlrev_b32 v{vt0}, 10, v{vt0}")
            k.e(f"v_lshl_add_u32 v{vt0}, v{vt1}, 4, v{vt0}")
            k.e("s_lshl_b32 s27, s25, 16")
            k.e("s_lshl_b32 s28, s24, 14")
            k.e("s_add_u32 s27, s27, s28")
            k.e("s_lshl_b32 s28, s26, 7")
            k.e("s_add_u32 s27, s27, s28")
            k.e(f"buffer_load_dwordx4 v{vt0}, s[12:15], s27 offen lds")
            k.e(f"s_add_u32 s27, s27, {8192-1024}")
            k.e(f"buffer_load_dwordx4 v{vt0}, s[12:15], s27 offen offset:1024 lds")
        else:
            srd(k, 20, 8, WS_END)
            hf_offset()
            k.e(f"buffer_load_dwordx4 v{vL16}, s[20:23], s35 offen lds")
            k.e(f"s_add_u32 s35, s35, {4096-1024}")
            k.e(f"buffer_load_dwordx4 v{vL16}, s[20:23], s35 offen offset:1024 lds")
    for q in range(D):
        issue(q)
        if q == 1:
            k.e("s_add_u32 s46, s8, s27")
            k.e("s_addc_u32 s47, s9, 0")
            for x in pf[:14]: k.e(x)
    k.stamp(2)
    pi = 14
    for s in range(nst):
        last = max(i for i, t in enumerate(nout) if t <= s)
        k.e(f"s_waitcnt vmcnt({len(nout) - 1 - last})")
        k.e("s_barrier")
        k.tick()
        if s + D < nst:
            issue(s + D)
            if s == 0:
                resid()
                nout.extend([nst - 1] * 2)
            if s + D == nst - 1:
                k.stamp(3)
        if s == 1 and mode == "wo" and NCP >= 2:
            next_code_prefetch(k, 40, "k4_gu_kernel", "k4_gu_kernel")
        if s >= 1:
            for x in pf[pi:pi+6]: k.e(x)
            pi += 6
    k.stamp(4)
    k.tick_flush(int(name[1]))
    k.e(f"s_branch {k.L('fin')}")
    k.label("cons")
    k.e("s_lshl_b32 s27, s33, 10")
    k.e(f"v_add_u32 v{vAb}, s27, v{vL16}")
    k.e("s_lshl_b32 s27, s34, 10")
    k.e("s_add_u32 s27, s27, 8192")
    k.e(f"v_add_u32 v{vWb}, s27, v{vL16}")
    for z in range(acc, acc + 16):
        k.e(f"v_mov_b32 v{z}, 0")
    k.e("s_mov_b32 s38, 0")
    k.e("s_mov_b32 s41, 0xffff0000")
    k.e(f"v_and_b32 v{vt0}, 31, v0")
    k.e(f"v_lshrrev_b32 v{vt1}, 5, v0")
    if mode == "wo":
        hf_offset()
        k.e("s_add_u32 s36, s35, 4096")
        k.e("s_lshl_b32 s37, s25, 1")
        k.e("s_add_u32 s37, s37, s33")
        k.e("s_lshl_b32 s37, s37, 12")
        k.e("s_lshl_b32 s28, s26, 9")
        k.e("s_add_u32 s37, s37, s28")
        k.e("s_lshl_b32 s28, s34, 3")
        k.e("s_add_u32 s37, s37, s28")
        k.e(f"s_add_u32 s37, s37, {hex(WS_ST)}")
        k.e(f"v_and_b32 v{vt2}, 7, v0")
        k.e("s_lshl_b32 s27, s34, 2")
        k.e(f"v_xor_b32 v{vt2}, s27, v{vt2}")
        k.e(f"v_lshlrev_b32 v{vt2}, 4, v{vt2}")
        k.e(f"v_lshl_add_u32 v{vt2}, v{vt0}, 7, v{vt2}")
        k.e(f"v_lshl_add_u32 v{vt2}, v{vt1}, 3, v{vt2}")
        k.e("s_lshl_b32 s27, s33, 12")
        k.e(f"s_add_u32 s27, s27, {RES}")
        k.e(f"v_add_u32 v{vRa}, s27, v{vt2}")
        for j in range(1, 4):
            k.e(f"v_xor_b32 v{vRa+j}, {j*16}, v{vRa}")
        k.e(f"v_lshlrev_b32 v{vt0}, 4, v{vt0}")
        k.e(f"v_lshl_add_u32 v{vt0}, v{vt1}, 2, v{vt0}")
        k.e(f"v_mov_b32 v{vS}, 0")
        k.e(f"v_mov_b32 v{vQ}, 0")
        k.e("s_mov_b32 s42, 0x3f803f80")
        k.e("s_waitcnt lgkmcnt(0)")
        k.stamp(1)
        srd(k, 20, 8, WS_END)
    else:
        k.e(f"v_lshlrev_b32 v{vO}, 10, v{vt0}")
        k.e(f"v_lshl_add_u32 v{vO}, v{vt1}, 4, v{vO}")
        k.e("s_lshl_b32 s29, s25, 16")
        k.e("s_lshl_b32 s30, s33, 15")
        k.e("s_add_u32 s29, s29, s30")
        k.e("s_lshl_b32 s30, s26, 7")
        k.e("s_add_u32 s29, s29, s30")
        k.e("s_lshl_b32 s30, s34, 6")
        k.e("s_add_u32 s29, s29, s30")
        k.e("s_and_b32 s27, s24, 3")
        k.e("s_lshl_b32 s27, s27, 11")
        k.e(f"s_add_u32 s27, s27, {RES}")
        k.e(f"v_add_u32 v{vRa}, s27, v{vL16}")
        k.e("s_waitcnt lgkmcnt(0)")
        k.stamp(1)
        srd(k, 12, 4, 2048 * 1024)
    def pre_stage():
        return [f"v_add_u32 v{vA}, s38, v{vAb}", f"v_add_u32 v{vW}, s38, v{vWb}"] + adv(k, 38, SLOT, NSLOT*SLOT)
    def mf(i):
        S = sets[i]
        return [f"v_mfma_f32_32x32x16_bf16 {vr(acc,16)}, {vr(S['W'][j],4)}, {vr(S['A'][j],4)}, {vr(acc,16)}" for j in range(4)]
    def reads(i):
        S = sets[i]
        rd = []
        for j in range(4):
            rd.append(f"ds_read_b128 {vr(S['A'][j],4)}, v{vA} offset:{j*2048}")
            rd.append(f"ds_read_b128 {vr(S['W'][j],4)}, v{vW} offset:{j*2048}")
        return rd
    assert D <= NSLOT - 2
    consumer_loop_s(k, nst, pre_stage, reads, mf)
    if mode == "wo":
        for j in range(4):
            k.e(f"ds_read_b64 {vr(R+2*j,2)}, v{vRa+j}")
        nr = 4
    else:
        k.e(f"ds_read_b128 {vr(R,4)}, v{vRa}")
        k.e(f"ds_read_b128 {vr(R+4,4)}, v{vRa} offset:1024")
        nr = 2
    m = mf(1)
    for j in range(4):
        k.e(f"s_waitcnt lgkmcnt({6-2*j+nr})")
        k.e(m[j])
    k.e("s_waitcnt lgkmcnt(0)")
    for i in range(8):
        k.e(f"v_lshlrev_b32 v{T+2*i}, 16, v{R+i}")
        k.e(f"v_and_b32 v{T+2*i+1}, s41, v{R+i}")
    for i in range(8):
        k.e(f"v_cvt_pk_bf16_f32 v{R+i}, v{acc+2*i}, v{acc+2*i+1}")
    for i in range(8):
        k.e(f"v_lshlrev_b32 v{acc+2*i}, 16, v{R+i}")
        k.e(f"v_and_b32 v{acc+2*i+1}, s41, v{R+i}")
    for i in range(0, 16, 2):
        k.e(f"v_pk_add_f32 {vr(acc+i,2)}, {vr(acc+i,2)}, {vr(T+i,2)}")
    for i in range(8):
        k.e(f"v_cvt_pk_bf16_f32 v{R+i}, v{acc+2*i}, v{acc+2*i+1}")
    if mode == "wo":
        k.e(f"buffer_store_dwordx4 {vr(R,4)}, v{vL16}, s[20:23], s35 offen")
        k.e(f"buffer_store_dwordx4 {vr(R+4,4)}, v{vL16}, s[20:23], s36 offen")
        for i in range(8):
            k.e(f"v_dot2c_f32_bf16 v{vS}, s42, v{R+i}")
            k.e(f"v_dot2c_f32_bf16 v{vQ}, v{R+i}, v{R+i}")
        k.e("s_nop 2")
        k.e(f"v_permlane32_swap_b32 v{vS}, v{vQ}")
        k.e(f"v_add_f32 v{vS}, v{vS}, v{vQ}")
        k.e(f"buffer_store_dword v{vS}, v{vt0}, s[20:23], s37 offen")
    else:
        k.e(f"v_permlane32_swap_b32 v{R}, v{R+2}")
        k.e(f"v_permlane32_swap_b32 v{R+1}, v{R+3}")
        k.e(f"buffer_store_dwordx4 {vr(R,4)}, v{vO}, s[12:15], s29 offen")
        k.e(f"v_permlane32_swap_b32 v{R+4}, v{R+6}")
        k.e(f"v_permlane32_swap_b32 v{R+5}, v{R+7}")
        k.e(f"buffer_store_dwordx4 {vr(R+4,4)}, v{vO}, s[12:15], s29 offen offset:32")
    k.label("fin")
    k.stamp_flush(int(name[1]))
    k.label("end")
    k.e("s_endpgm")
    return k

def gen_k4():
    k = K("k4_gu_kernel")
    NSLOT = 6
    D = 2
    SLOT = 20480
    MISC = NSLOT * SLOT
    MISC2 = MISC + 2048
    k.lds = MISC2 + 2048
    vl = k.v(); vt0 = k.v(); vt1 = k.v(); vL16 = k.v(); vXb = k.v(); vWb = k.v(); vX = k.v(); vW = k.v()
    CC = [k.v(4), k.v(4)]
    T = k.v(8)
    BP = [k.v(4), k.v(4)]; AP = [k.v(4) for _ in range(3)]
    acc = [[k.v(16) for _ in range(3)] for _ in range(2)]
    sets = [dict(X=[[k.v(4) for _ in range(2)] for _ in range(2)], W=[[k.v(4) for _ in range(3)] for _ in range(2)]) for _ in range(2)]
    k.e("s_cmp_ge_u32 s2, 256")
    k.e(f"s_cbranch_scc1 {k.L('end')}")
    k.e("s_and_b32 s26, s2, 1")
    k.e("s_lshl_b32 s26, s26, 3")
    k.e("s_lshr_b32 s28, s2, 5")
    k.e("s_add_u32 s26, s26, s28")
    k.e("s_cmp_ge_u32 s26, 15")
    k.e(f"s_cbranch_scc1 {k.L('end')}")
    k.stamp(0)
    k.tick()
    k.e("s_load_dwordx2 s[8:9], s[0:1], 72")
    wave_setup(k, vt0)
    k.e("s_and_b32 s25, s2, 6")
    k.e("s_lshl_b32 s25, s25, 1")
    k.e("s_bfe_u32 s27, s2, 0x20003")
    k.e("s_add_u32 s25, s25, s27")
    k.e(f"v_lshlrev_b32 v{vL16}, 4, v0")
    k.e("s_cmp_ge_u32 s24, 4")
    k.e(f"s_cbranch_scc1 {k.L('cons')}")
    k.e("s_lshl_b32 s27, s25, 17")
    k.e(f"s_add_u32 s27, s27, {hex(WS_H)}")
    k.e(f"s_mul_i32 s31, s26, {32*6144}")
    k.e(f"s_add_u32 s31, s31, {hex(WS_WGU)}")
    k.e("s_lshl_b32 s29, s24, 11")
    k.e("s_mul_i32 s32, s24, 3072")
    k.e("s_add_u32 s30, s27, s29")
    k.e("s_add_u32 s31, s31, s32")
    k.e("s_add_u32 s32, s32, 8192")
    k.e("s_bitcmp1_b32 s2, 0")
    k.e("s_cselect_b32 s33, 0x10000, 0")
    k.e(f"s_cselect_b32 s34, {8*12288}, 0")
    k.e("s_cselect_b32 s36, 0, 0x10000")
    k.e("s_add_u32 s33, s33, s30")
    k.e("s_add_u32 s34, s34, s31")
    k.e("s_min_u32 s28, s28, 6")
    k.e("s_lshl_b32 s28, s28, 2")
    k.e("s_add_u32 s28, s28, s24")
    k.e(f"s_mul_i32 s28, s28, {19*128}")
    k.e("s_add_u32 s27, s27, s28")
    k.e("s_add_u32 s27, s27, s36")
    k.e(f"s_mov_b32 s22, {hex(WS_END)}")
    k.e("s_mov_b32 s23, 0x00020000")
    k.e("s_mov_b32 m0, s29")
    k.e("s_waitcnt lgkmcnt(0)")
    k.stamp(1)
    k.e("s_mov_b64 s[20:21], s[8:9]")
    nout = []
    def issue(q):
        if q:
            k.e(f"s_add_u32 m0, s29, {(q % NSLOT)*SLOT}")
            k.e("s_add_u32 s33, s33, 8192")
            if q == 8:
                k.e("s_bitcmp1_b32 s2, 0")
                k.e("s_cselect_b32 s33, s30, s33")
        for g in range(2):
            k.e(f"buffer_load_dwordx4 v{vL16}, s[20:23], s33 offen offset:{g*1024} lds")
        k.e(f"s_add_u32 m0, s32, {(q % NSLOT)*SLOT}")
        if q:
            k.e("s_add_u32 s34, s34, 12288")
            if q == 8:
                k.e("s_bitcmp1_b32 s2, 0")
                k.e("s_cselect_b32 s34, s31, s34")
        else:
            k.e("s_nop 0")
        for g in range(3):
            k.e(f"buffer_load_dwordx4 v{vL16}, s[20:23], s34 offen offset:{g*1024} lds")
        nout.extend([q] * 5)
    def wait_for(q):
        last = max(i for i, t in enumerate(nout) if t <= q)
        k.e(f"s_waitcnt vmcnt({len(nout) - 1 - last})")
        k.tick()
    pf = [f"s_load_dword s48, s[46:47], {i*128}" for i in range(19)] if ACTPF else []
    ST = acc[0][0]; CS = acc[0][1]
    def st_issue():
        k.e("s_lshl_b32 s27, s25, 2")
        k.e("s_add_u32 s27, s27, s24")
        k.e("s_lshl_b32 s27, s27, 12")
        k.e(f"s_add_u32 s27, s27, {hex(WS_ST)}")
        for q in range(4):
            k.e(f"buffer_load_dwordx4 {vr(ST+4*q,4)}, v{vL16}, s[20:23], s27 offen offset:{q*1024}")
        k.e("s_mul_i32 s27, s26, 3")
        k.e("s_min_u32 s28, s24, 2")
        k.e("s_add_u32 s27, s27, s28")
        k.e("s_lshl_b32 s27, s27, 12")
        k.e(f"s_add_u32 s27, s27, {hex(WS_CS)}")
        for q in range(4):
            k.e(f"buffer_load_dwordx4 {vr(CS+4*q,4)}, v{vL16}, s[20:23], s27 offen offset:{q*1024}")
    def st_proc():
        s = ST; t2 = T; t3 = T + 1; C = CC[0]; RS = T + 2
        for i in range(2, 16, 2):
            k.e(f"v_add_f32 v{s}, v{s}, v{s+i}")
            k.e(f"v_add_f32 v{s+1}, v{s+1}, v{s+i+1}")
        k.e(f"v_mov_b32 v{s+2}, v{s}")
        k.e(f"v_mov_b32 v{s+3}, v{s+1}")
        k.e("s_nop 1")
        k.e(f"v_permlane32_swap_b32 v{s}, v{s+2}")
        k.e(f"v_permlane32_swap_b32 v{s+1}, v{s+3}")
        k.e(f"v_add_f32 v{s}, v{s}, v{s+2}")
        k.e(f"v_add_f32 v{s+1}, v{s+1}, v{s+3}")
        ln_finish(k, s, s + 1, C, RS, t2, t3)
        A_ = -2.0 * 1.4426950408889634 * 0.7978845608028654
        k.e(f"v_mul_f32 v{C+3}, v{t2}, v{t2}")
        k.e(f"v_mul_f32 v{C+1}, {f32(A_)}, v{RS}")
        k.e(f"v_mul_f32 v{C+2}, v{RS}, v{RS}")
        k.e(f"v_mul_f32 v{C+2}, v{C+2}, v{C+1}")
        k.e(f"v_mul_f32 v{C+2}, {f32(0.044715)}, v{C+2}")
        k.e(f"v_and_b32 v{vt0}, 0x1ff, v{vL16}")
        k.e("s_lshl_b32 s27, s24, 9")
        k.e(f"s_add_u32 s27, s27, {MISC}")
        k.e(f"v_add_u32 v{vt0}, s27, v{vt0}")
        k.e(f"ds_write_b128 v{vt0}, {vr(C,4)}")
        for u in range(2):
            c = CS + 8 * u
            for i in range(1, 8):
                k.e(f"v_add_f32 v{c}, v{c}, v{c+i}")
        k.e("s_nop 1")
        k.e(f"v_permlane32_swap_b32 v{CS}, v{CS+8}")
        k.e(f"v_add_f32 v{CS}, v{CS}, v{CS+8}")
        split2(k, CS, CS + 1, t2)
        k.e("s_lshl_b32 s27, s28, 8")
        k.e(f"s_add_u32 s27, s27, {MISC2}")
        k.e(f"v_lshl_add_u32 v{vt0}, v0, 2, s27")
        k.e(f"ds_write_b32 v{vt0}, v{CS+1}")
        k.e("s_waitcnt lgkmcnt(0)")
    issue(0); issue(1)
    k.e("s_add_u32 s46, s8, s27")
    k.e("s_addc_u32 s47, s9, 0")
    for x in pf[:14]: k.e(x)
    issue(2)
    k.stamp(2)
    wait_for(0); k.e("s_barrier"); k.tick()
    issue(3)
    wait_for(1); k.e("s_barrier"); k.tick()
    issue(4); issue(5)
    for x in pf[14:]: k.e(x)
    for s in range(1, 8):
        wait_for(2*s + 1); k.e("s_barrier"); k.tick()
        if 2*s + 4 < 16:
            issue(2*s + 4); issue(2*s + 5)
        if s == 2 and NCP >= 2:
            next_code_prefetch(k, 40, "k5_down_kernel", "k5_down_kernel")
        if s == 6:
            st_proc()
        if s == 4:
            st_issue()
            nout.extend([13] * 8)
        if s == 5:
            k.stamp(3)
    k.stamp(4)
    k.tick_flush(4)
    k.e(f"s_branch {k.L('fin')}")
    k.label("cons")
    k.e("s_and_b32 s33, s24, 1")
    k.e("s_bfe_u32 s34, s24, 0x10001")
    k.e("s_lshl_b32 s27, s33, 11")
    k.e(f"v_add_u32 v{vXb}, s27, v{vL16}")
    k.e("s_mul_i32 s27, s34, 3072")
    k.e("s_add_u32 s27, s27, 8192")
    k.e(f"v_add_u32 v{vWb}, s27, v{vL16}")
    k.e("s_mov_b32 s38, 0")
    for r in BP + AP:
        for i in (0, 1, 2, 3):
            k.e(f"v_mov_b32 v{r+i}, 0")
    k.e("s_nop 1")
    for b in range(2):
        for u in range(3):
            mfma32(k, acc[b][u], BP[0], BP[0], "0")
    k.e("s_mul_i32 s42, s26, 6")
    k.e("s_mul_i32 s43, s34, 3")
    k.e("s_add_u32 s42, s42, s43")
    k.e("s_lshl_b32 s27, s25, 1")
    k.e("s_add_u32 s27, s27, s33")
    k.e("s_mul_i32 s27, s27, 86")
    k.e("s_add_u32 s27, s27, s42")
    k.e("s_lshl_b32 s27, s27, 11")
    k.e(f"s_add_u32 s45, s27, {hex(WS_A)}")
    k.e("v_cmp_gt_u32 vcc, 32, v0")
    k.e(f"v_and_b32 v{vt0}, 0x1ff, v{vL16}")
    k.e("s_lshl_b32 s27, s33, 10")
    k.e(f"s_add_u32 s27, s27, {MISC}")
    k.e(f"v_add_u32 v{vt0}, s27, v{vt0}")
    k.e(f"v_and_b32 v{vt1}, 31, v0")
    k.e("s_mul_i32 s27, s34, 384")
    k.e(f"s_add_u32 s27, s27, {MISC2}")
    k.e(f"v_lshl_add_u32 v{vt1}, v{vt1}, 2, s27")
    k.e("s_waitcnt lgkmcnt(0)")
    k.stamp(1)
    srd(k, 20, 8, WS_END)
    def pre_stage(h):
        return [f"v_add_u32 v{vX}, s38, v{vXb}", f"v_add_u32 v{vW}, s38, v{vWb}"] + adv(k, 38, SLOT, NSLOT*SLOT)
    def mf(i):
        S = sets[i]
        r = []
        for kk in range(2):
            for u in range(3):
                for b in range(2):
                    r.append(f"v_mfma_f32_32x32x16_bf16 {vr(acc[b][u],16)}, {vr(S['W'][kk][u],4)}, {vr(S['X'][kk][b],4)}, {vr(acc[b][u],16)}")
        return r
    def reads(i):
        S = sets[i]
        rd = []
        for kk in range(2):
            for b in range(2):
                rd.append(f"ds_read_b128 {vr(S['X'][kk][b],4)}, v{vX} offset:{kk*4096+b*1024}")
            for u in range(3):
                rd.append(f"ds_read_b128 {vr(S['W'][kk][u],4)}, v{vW} offset:{kk*6144+u*1024}")
        return rd
    consumer_loop_m(k, 16, pre_stage, reads, mf, 2, barA=False)
    for b in range(2):
        k.e(f"ds_read_b128 {vr(CC[b],4)}, v{vt0} offset:{b*512}")
    for u in range(3):
        k.e(f"ds_read_b32 v{AP[u]}, v{vt1} offset:{u*128}")
    m = mf(1)
    for x in m[:6]: k.e(x)
    k.e("s_waitcnt lgkmcnt(0)")
    for b in range(2):
        k.e(f"v_cndmask_b32 v{BP[b]}, 0, v{CC[b]}, vcc")
    j = 6
    for u in range(3):
        for b in range(2):
            k.e(m[j]); j += 1
            mfma32(k, acc[b][u], AP[u], BP[b])
    for u in range(3):
        k.e("s_cmp_lt_u32 s42, 86")
        k.e(f"s_cselect_b32 s28, s45, {hex(OOB)}")
        k.e("s_add_u32 s42, s42, 1")
        k.e("s_add_u32 s45, s45, 2048")
        for b in range(2):
            a = acc[b][u]; C = CC[b]
            for i in range(0, 8, 2):
                k.e(f"v_pk_mul_f32 {vr(T+i,2)}, {vr(a+i,2)}, {vr(a+i,2)}")
            for i in range(0, 8, 2):
                k.e(f"v_pk_fma_f32 {vr(T+i,2)}, {vr(T+i,2)}, {vr(C+2,2)}, {vr(C,2)} op_sel:[0,0,1] op_sel_hi:[1,0,1]")
            for i in range(0, 8, 2):
                k.e(f"v_pk_mul_f32 {vr(T+i,2)}, {vr(T+i,2)}, {vr(a+i,2)}")
            for i in range(8):
                k.e(f"v_exp_f32 v{T+i}, v{T+i}")
            for i in range(0, 8, 2):
                k.e(f"v_pk_mul_f32 {vr(a+i,2)}, {vr(a+i,2)}, {vr(a+8+i,2)}")
            for i in range(0, 8, 2):
                k.e(f"v_pk_fma_f32 {vr(T+i,2)}, {vr(T+i,2)}, {vr(C+2,2)}, {vr(C+2,2)} op_sel:[0,1,1]")
            for i in range(8):
                k.e(f"v_rcp_f32 v{T+i}, v{T+i}")
            for i in range(0, 8, 2):
                k.e(f"v_pk_mul_f32 {vr(a+i,2)}, {vr(a+i,2)}, {vr(T+i,2)}")
            for i in range(4):
                k.e(f"v_cvt_pk_bf16_f32 v{a+i}, v{a+2*i}, v{a+2*i+1}")
            k.e(f"buffer_store_dwordx4 {vr(a,4)}, v{vL16}, s[20:23], s28 offen offset:{b*1024}")
    k.label("fin")
    k.stamp_flush(4)
    k.label("end")
    k.e("s_endpgm")
    return k

def build():
    ks = [(gen_k1(), 768), (gen_k2(), 512),
          (gen_gemm64("k3_wo_kernel", 32, WS_O, WS_WO, "wo"), 512),
          (gen_k4(), 512),
          (gen_gemm64("k5_down_kernel", 86, WS_A, WS_WD, "down"), 512)]
    ref = open(f"cdna_kernels/{NAME}.s.ref").read().splitlines()
    head = [l for l in ref if l.startswith(";") and "@launch" not in l and "Override" not in l and "grid=ceil" not in l]
    out = "\n".join(head) + "\n"
    for k, blk in ks:
        out += f"; @launch kernel={k.name} grid=(256,1,1) block=({blk},1,1) lds={k.lds}\n"
    out += '.amdgcn_target "amdgcn-amd-amdhsa--gfx950"\n'
    for k, blk in ks:
        out += k.text()
    return out

if __name__ == "__main__":
    if len(sys.argv) > 2 and sys.argv[2] == "stamp":
        STAMP = True
    out = build()
    path = sys.argv[1] if len(sys.argv) > 1 else f"cdna_kernels/{NAME}.s"
    open(path, "w").write(out)
    bad = hazard.check(out)
    print("hazards:", len(bad))
```

```python
import sys, struct
sys.path.insert(0, "gen")
import hazard

NAME = "sequential_preLN__softmax_full_mha__geglu_ffn__prompt"

WS_Q   = 0x000000
WS_KV  = 0x200000
WS_O   = 0x600000
WS_H   = 0x800000
WS_ST  = 0xA00000
WS_CS  = 0xA40000
WS_MAP = 0xAF0000
WS_WO  = 0xB00000
WS_WD  = 0xC00000
WS_WGU = 0xE00000
WS_A   = 0x1200000
WS_END = 0x1800000
OOB    = 0x7FFF0000
WS_DBG = 0x2000000
STAMP = False
import os
NODMA = int(os.environ.get('NODMA', '0'))
TICK = int(os.environ.get('TICK', '0'))

def f32(x):
    return "0x%08x" % struct.unpack("<I", struct.pack("<f", x))[0]

class K:
    def __init__(self, name):
        self.name = name
        self.lines = []
        self.nv = 0
        self.maxs = 0
    def e(self, s):
        if NODMA and (s.endswith(" lds") or s.startswith("s_load_dword s48")) and not self.name.startswith("k2"):
            s = "s_nop 0"
        self.lines.append("    " + s)
    def c(self, s):
        self.lines.append("    ; " + s)
    def label(self, l):
        self.lines.append(f"{self.name}_{l}:")
    def L(self, l):
        return f"{self.name}_{l}"
    def v(self, n=1, align=None):
        if align is None:
            align = 1 if n == 1 else (2 if n == 2 else 4)
        self.nv = (self.nv + align - 1) // align * align
        r = self.nv
        self.nv += n
        return r
    def stamp(self, idx):
        if not STAMP:
            return
        self.e(f"s_memtime s[{64+2*idx}:{65+2*idx}]")
        if idx in (3, 4):
            self.e(f"s_memrealtime s[{80+2*idx}:{81+2*idx}]")
        self.nstamp = max(getattr(self, "nstamp", 0), idx + 1)
    def tick(self):
        if not TICK:
            return
        n = getattr(self, "ntick", 0)
        assert n < 22
        self.e(f"s_memtime s[{52+2*n}:{53+2*n}]")
        self.ntick = n + 1
    def tick_flush(self, kidx):
        if not TICK:
            return
        n = self.ntick
        self.e("s_waitcnt vmcnt(0) lgkmcnt(0)")
        self.e(f"s_add_u32 s44, s8, {hex(WS_DBG + kidx*0x40000)}")
        self.e("s_addc_u32 s45, s9, 0")
        self.e("s_mov_b32 s46, 0x40000")
        self.e("s_mov_b32 s47, 0x00020000")
        self.e("s_lshl_b32 s48, s2, 3")
        self.e("s_add_u32 s48, s48, s24")
        self.e("s_lshl_b32 s48, s48, 7")
        self.e("v_mov_b32 v2, 0")
        for i in range(n):
            self.e(f"v_mov_b32 v0, s{52+2*i}")
            self.e(f"buffer_store_dword v0, v2, s[44:47], s48 offen offset:{i*4}")
        self.e("s_endpgm")
    def stamp_flush(self, kidx):
        if not STAMP:
            return
        n = self.nstamp
        self.e("s_waitcnt vmcnt(0) lgkmcnt(0)")
        self.stamp(n)
        self.e("s_memrealtime s[62:63]")
        n += 1
        self.e("s_waitcnt lgkmcnt(0)")
        self.e(f"s_add_u32 s56, s8, {hex(WS_DBG + kidx*0x40000)}")
        self.e("s_addc_u32 s57, s9, 0")
        self.e("s_mov_b32 s58, 0x40000")
        self.e("s_mov_b32 s59, 0x00020000")
        self.e("s_lshl_b32 s60, s2, 3")
        self.e("s_add_u32 s60, s60, s24")
        self.e("s_lshl_b32 s60, s60, 7")
        self.e("v_mov_b32 v2, 0")
        for i in range(n):
            self.e(f"v_mov_b32 v0, s{64+2*i}")
            self.e(f"v_mov_b32 v1, s{80+2*i if i in (3, 4) else 62}")
            self.e(f"buffer_store_dwordx2 v[0:1], v2, s[56:59], s60 offen offset:{i*8}")
    def text(self, nsgpr=102):
        nv = max(self.nv, 8)
        acc = (nv + 3) // 4 * 4
        head = f""".text
.globl {self.name}
.p2align 8
.type {self.name},@function
{self.name}:
"""
        tail = f"""
.section .rodata,"a"
.p2align 6
.amdhsa_kernel {self.name}
  .amdhsa_next_free_vgpr {nv}
  .amdhsa_next_free_sgpr {nsgpr}
  .amdhsa_accum_offset {acc}
  .amdhsa_group_segment_fixed_size 0
  .amdhsa_kernarg_size 80
  .amdhsa_user_sgpr_count 2
  .amdhsa_user_sgpr_kernarg_segment_ptr 1
  .amdhsa_system_sgpr_workgroup_id_x 1
.end_amdhsa_kernel
"""
        return head + "\n".join(self.lines) + f"\n{self.name}_codeend:" + tail

def vr(b, n):
    return f"v[{b}:{b+n-1}]" if n > 1 else f"v{b}"
def sr(b, n):
    return f"s[{b}:{b+n-1}]" if n > 1 else f"s{b}"

def srd(k, d, base, nbytes):
    k.e(f"s_mov_b32 s{d}, s{base}")
    k.e(f"s_mov_b32 s{d+1}, s{base+1}")
    k.e(f"s_mov_b32 s{d+2}, {hex(nbytes)}")
    k.e(f"s_mov_b32 s{d+3}, 0x00020000")

def mfma32(k, d, a, b, c=None):
    cs = vr(d, 16) if c is None else (c if isinstance(c, str) else vr(c, 16))
    k.e(f"v_mfma_f32_32x32x16_bf16 {vr(d,16)}, {vr(a,4)}, {vr(b,4)}, {cs}")
def mfma16(k, d, a, b):
    k.e(f"v_mfma_f32_16x16x32_bf16 {vr(d,4)}, {vr(a,4)}, {vr(b,4)}, {vr(d,4)}")

def interleave(k, mains, fillers, per):
    fi = 0
    for m in mains:
        k.e(m)
        for _ in range(per):
            if fi < len(fillers):
                k.e(fillers[fi]); fi += 1
    while fi < len(fillers):
        k.e(fillers[fi]); fi += 1

def tile_map_32x8(k, s_tm, s_tn, t0, t1):
    k.e(f"s_and_b32 s{s_tm}, s2, 6")
    k.e(f"s_lshl_b32 s{s_tm}, s{s_tm}, 2")
    k.e(f"s_bfe_u32 s{t0}, s2, 0x30003")
    k.e(f"s_add_u32 s{s_tm}, s{s_tm}, s{t0}")
    k.e(f"s_and_b32 s{s_tn}, s2, 1")
    k.e(f"s_lshl_b32 s{s_tn}, s{s_tn}, 2")
    k.e(f"s_lshr_b32 s{t1}, s2, 6")
    k.e(f"s_add_u32 s{s_tn}, s{s_tn}, s{t1}")

def ln_finish(k, vS, vQ, vNegM, vRstd, t0, t1):
    k.e(f"v_mul_f32 v{vS}, {f32(1.0/512)}, v{vS}")
    k.e(f"v_mul_f32 v{vQ}, {f32(1.0/512)}, v{vQ}")
    k.e(f"v_fma_f32 v{vQ}, -v{vS}, v{vS}, v{vQ}")
    k.e(f"v_max_f32 v{vQ}, 0, v{vQ}")
    k.e(f"v_cvt_pk_bf16_f32 v{vNegM}, -v{vS}, -v{vS}")
    k.e(f"v_cvt_pk_bf16_f32 v{t0}, v{vQ}, v{vQ}")
    k.e(f"v_lshlrev_b32 v{t0}, 16, v{t0}")
    k.e(f"v_add_f32 v{t0}, {f32(1e-5)}, v{t0}")
    k.e(f"v_cvt_pk_bf16_f32 v{t0}, v{t0}, v{t0}")
    k.e(f"v_lshlrev_b32 v{t0}, 16, v{t0}")
    k.e(f"v_sqrt_f32 v{t0}, v{t0}")
    k.e("s_nop 0")
    k.e(f"v_cvt_pk_bf16_f32 v{t0}, v{t0}, v{t0}")
    k.e(f"v_lshlrev_b32 v{t0}, 16, v{t0}")
    k.e(f"v_rcp_f32 v{vRstd}, v{t0}")
    k.e("s_nop 0")

def split2(k, vcs, vdst, t0):
    k.e(f"v_cvt_pk_bf16_f32 v{t0}, v{vcs}, v{vcs}")
    k.e(f"v_lshlrev_b32 v{t0}, 16, v{t0}")
    k.e(f"v_sub_f32 v{t0}, v{vcs}, v{t0}")
    k.e(f"v_cvt_pk_bf16_f32 v{vdst}, v{vcs}, v{t0}")

import os
ROT = int(os.environ.get("ROT", "0"))
PREFETCH = int(os.environ.get("PREFETCH", "1"))
PREP_ST = os.environ.get("PREP_ST", "sc1")
ZROWS = int(os.environ.get("ZROWS", "1"))
G64_NSLOT = int(os.environ.get("G64_NSLOT", "6"))
G64_D = int(os.environ.get("G64_D", "4"))
K1MAP = int(os.environ.get("K1MAP", "0"))
ROWMAP = int(os.environ.get("ROWMAP", "1"))
WDPF = int(os.environ.get("WDPF", "2"))
SPF = int(os.environ.get("SPF", "128"))
WNT = os.environ.get("WNT", "")
K1_D = int(os.environ.get("K1_D", "4"))
K1_SPF = int(os.environ.get("K1_SPF", "0"))
K1_PER = int(os.environ.get("K1_PER", "3"))
K1_CODEPF = int(os.environ.get("K1_CODEPF", "44"))
ACTPF = int(os.environ.get("ACTPF", "0"))
K1_NOSTAT = int(os.environ.get("K1_NOSTAT", "0"))
K1_PRIO = int(os.environ.get("K1_PRIO", "0"))
NCP = int(os.environ.get("NCP", "1"))
CLAIM = int(os.environ.get("CLAIM", "1"))
def wave_setup(k, vt):
    k.e(f"v_lshrrev_b32 v{vt}, 6, v0")
    k.e("v_and_b32 v0, 63, v0")
    k.e(f"v_readfirstlane_b32 s24, v{vt}")

def adv(k, sreg, step, wrap):
    return [f"s_add_u32 s{sreg}, s{sreg}, {step}", f"s_cmp_eq_u32 s{sreg}, {wrap}", f"s_cselect_b32 s{sreg}, 0, s{sreg}"]

def spread(k, mains, reads, others, rper, oper):
    ri = oi = 0
    for m in mains:
        k.e(m)
        n = 0
        while ri < len(reads) and n < rper:
            k.e(reads[ri]); ri += 1; n += 1
        if ri >= len(reads):
            while oi < len(others) and n < oper:
                k.e(others[oi]); oi += 1; n += 1
    for x in reads[ri:] + others[oi:]:
        k.e(x)

def consumer_loop_m(k, nhalf, pre_stage, reads, mfmas, per, cnt=40, barA=True):
    for x in pre_stage(0): k.e(x)
    k.e(f"s_mov_b32 s{cnt}, {nhalf//2}")
    k.stamp(2)
    k.e("s_barrier")
    k.stamp(3)
    for x in reads(0): k.e(x)
    for x in pre_stage(1): k.e(x)
    k.e("s_waitcnt lgkmcnt(0)")
    if not barA:
        k.e("s_barrier")
    k.e(f"s_branch {k.L('cin')}")
    m0, m1 = mfmas(0), mfmas(1)
    k.label("cloop")
    k.e("s_waitcnt lgkmcnt(0)")
    k.e(m1[-1])
    k.label("cin")
    if barA:
        k.e("s_barrier")
    spread(k, m0[:-1], reads(1), pre_stage(0) + [f"s_sub_u32 s{cnt}, s{cnt}, 1", f"s_cmp_eq_u32 s{cnt}, 0"], per, 5)
    k.e("s_waitcnt lgkmcnt(0)")
    k.e(m0[-1])
    k.e(f"s_cbranch_scc1 {k.L('cpost')}")
    k.e("s_barrier")
    spread(k, m1[:-1], reads(0), pre_stage(1), per, 5)
    k.e(f"s_branch {k.L('cloop')}")
    k.label("cpost")
    k.stamp(4)

def consumer_loop_s(k, nst, pre_stage, reads, mfmas, cnt=40):
    nr = len(reads(0))
    for x in pre_stage(): k.e(x)
    k.e(f"s_mov_b32 s{cnt}, {nst//2}")
    k.stamp(2)
    k.e("s_barrier")
    k.stamp(3)
    for x in reads(0): k.e(x)
    for x in pre_stage(): k.e(x)
    k.label("cloop")
    k.e("s_barrier")
    for x in reads(1): k.e(x)
    k.e(f"s_waitcnt lgkmcnt({nr})")
    interleave(k, mfmas(0), pre_stage() + [f"s_sub_u32 s{cnt}, s{cnt}, 1", f"s_cmp_eq_u32 s{cnt}, 0"], 3)
    k.e(f"s_cbranch_scc1 {k.L('cpost')}")
    k.e("s_barrier")
    for x in reads(0): k.e(x)
    k.e(f"s_waitcnt lgkmcnt({nr})")
    interleave(k, mfmas(1), pre_stage(), 3)
    k.e(f"s_branch {k.L('cloop')}")
    k.label("cpost")
    k.stamp(4)

def loader_loop(k, nst, D, n, issue, cnt=40, hooks=(), split_first=False):
    k.e(f"s_mov_b32 s{cnt}, 0")
    k.label("lloop")
    k.e(f"s_cmp_lt_u32 s{cnt}, {D}")
    k.e(f"s_cbranch_scc1 {k.L('lskip')}")
    if STAMP or split_first:
        k.e(f"s_cmp_eq_u32 s{cnt}, {D}")
        k.e(f"s_cbranch_scc0 {k.L('lst')}")
        k.stamp(2)
        if split_first:
            k.e(f"s_waitcnt vmcnt({n*(D-1) + n//2})")
            k.e("s_barrier")
        k.label("lst")
    k.e(f"s_waitcnt vmcnt({n*(D-1)})")
    k.e("s_barrier")
    k.label("lskip")
    issue()
    for hi, (at, fn) in enumerate(hooks):
        k.e(f"s_cmp_eq_u32 s{cnt}, {at}")
        k.e(f"s_cbranch_scc0 {k.L('lh%d' % hi)}")
        fn()
        k.label("lh%d" % hi)
    k.e(f"s_add_u32 s{cnt}, s{cnt}, 1")
    k.e(f"s_cmp_lt_u32 s{cnt}, {nst}")
    k.e(f"s_cbranch_scc1 {k.L('lloop')}")
    k.stamp(3)
    for i in range(D):
        k.e(f"s_waitcnt vmcnt({n*(D-1-i)})")
        k.e("s_barrier")
    k.stamp(4)

def pkmul_bcast(k, d, s):
    if s % 2 == 0:
        k.e(f"v_pk_mul_f32 {vr(d,2)}, {vr(d,2)}, {vr(s,2)} op_sel_hi:[1,0]")
    else:
        k.e(f"v_pk_mul_f32 {vr(d,2)}, {vr(d,2)}, {vr(s-1,2)} op_sel:[0,1]")

def code_prefetch(k, sp, swave, nlines):
    if not nlines:
        return
    k.e(f"s_getpc_b64 s[{sp}:{sp+1}]")
    k.e(f"s_and_b32 s{sp+2}, s24, 3")
    k.e(f"s_lshl_b32 s{sp+2}, s{sp+2}, 7")
    k.e(f"s_add_u32 s{sp}, s{sp}, s{sp+2}")
    k.e(f"s_addc_u32 s{sp+1}, s{sp+1}, 0")
    for i in range(0, nlines, 4):
        k.e(f"s_load_dword s{sp+2}, s[{sp}:{sp+1}], {i*128}")
    k.e("s_waitcnt lgkmcnt(0)")

def next_code_prefetch(k, sp, first, last, tag="ncp"):
    if not NCP:
        return
    k.e(f"s_lshr_b32 s{sp+2}, s2, 3")
    k.e(f"s_lshl_b32 s{sp+2}, s{sp+2}, 2")
    k.e(f"s_and_b32 s{sp+3}, s24, 3")
    k.e(f"s_add_u32 s{sp+2}, s{sp+2}, s{sp+3}")
    k.e(f"s_lshl_b32 s{sp+2}, s{sp+2}, 7")
    k.e(f"s_min_u32 s{sp+2}, s{sp+2}, {last}_codeend-{first}-4")
    k.e(f"s_getpc_b64 s[{sp}:{sp+1}]")
    k.label(tag)
    k.e(f"s_add_u32 s{sp+2}, s{sp+2}, {first}-{k.L(tag)}")
    k.e(f"s_add_u32 s{sp}, s{sp}, s{sp+2}")
    k.e(f"s_addc_u32 s{sp+1}, s{sp+1}, 0")
    k.e(f"s_load_dword s{sp+2}, s[{sp}:{sp+1}], 0")

def claim_begin(k):
    k.e("s_load_dwordx2 s[10:11], s[0:1], 64")
    k.e("s_mov_b32 s3, s2")
    k.e("s_mov_b32 s98, 0")
    k.e("s_mov_b32 s97, 0")
    if not CLAIM:
        return
    k.e("s_getreg_b32 s99, hwreg(HW_REG_XCC_ID, 0, 3)")
    k.e("s_getreg_b32 s100, hwreg(HW_REG_HW_ID, 8, 4)")
    k.e("s_getreg_b32 s101, hwreg(HW_REG_HW_ID, 13, 2)")
    if CLAIM == 3:
        k.e("s_cmp_ge_u32 s100, 3")
        k.e("s_cselect_b32 s97, 1, 0")
        k.e("s_andn2_b32 s97, s97, s101")
        k.e("s_add_u32 s100, s100, s97")
    k.e("s_lshr_b32 s97, s100, 3")
    k.e("s_and_b32 s100, s100, 7")
    k.e("s_lshl_b32 s100, s100, 3")
    k.e("s_lshl_b32 s101, s101, 6")
    k.e("s_or_b32 s2, s99, s100")
    k.e("s_or_b32 s2, s2, s101")
    if CLAIM == 2:
        k.e("s_and_b32 s2, s2, 0xf5")
    if not k.name.startswith("k1"):
        map_addr(k, 100)

def map_addr(k, sd):
    k.e(f"s_and_b32 s{sd}, s2, 7")
    k.e(f"s_lshl_b32 s{sd}, s{sd}, 7")
    k.e("s_lshr_b32 s101, s2, 6")
    k.e("s_lshl_b32 s101, s101, 2")
    k.e(f"s_add_u32 s{sd}, s{sd}, s101")
    k.e(f"s_add_u32 s{sd}, s{sd}, {hex(WS_MAP)}")

def hint_load(k, tag):
    k.e("s_cmp_eq_u32 s97, 0")
    k.e(f"s_cbranch_scc1 {k.L('hl_' + tag)}")
    k.e("s_load_dword s99, s[8:9], s100")
    k.label("hl_" + tag)

def hint_check(k, tag):
    k.e("s_cmp_eq_u32 s97, 0")
    k.e(f"s_cbranch_scc1 {k.L('hc_' + tag)}")
    k.e("s_mov_b32 s97, 0")
    k.e("s_waitcnt lgkmcnt(0)")
    k.e("s_and_b32 s99, s99, 0x38")
    k.e("s_or_b32 s2, s2, s99")
    k.e("s_cmp_lg_u32 s99, 0")
    k.e(f"s_cbranch_scc1 {k.L('restart')}")
    k.label("hc_" + tag)

def claim_issue(k):
    k.e("s_cmp_lg_u32 s98, 0")
    k.e(f"s_cbranch_scc1 {k.L('clm_skip')}")
    k.e("s_lshr_b32 s101, s2, 3")
    k.e("s_lshl_b32 s99, 1, s101")
    k.e("s_and_b32 s100, s2, 7")
    k.e("s_lshl_b32 s100, s100, 5")
    k.e("s_atomic_or s99, s[10:11], s100 glc")
    k.label("clm_skip")

def claim_verdict(k, vt, vt2, lds):
    k.e("s_mov_b32 s96, 0")
    k.e("s_cmp_lg_u32 s98, 0")
    k.e(f"s_cbranch_scc1 {k.L('clm_done')}")
    k.e("s_lshr_b32 s101, s2, 3")
    k.e("s_waitcnt lgkmcnt(0)")
    k.e("s_bitcmp1_b32 s99, s101")
    k.e(f"s_cbranch_scc0 {k.L('clm_done')}")
    k.e("s_movk_i32 s98, 600")
    k.label("clm_try")
    k.e("s_sub_u32 s98, s98, 1")
    k.e("s_cmp_eq_u32 s98, 0")
    k.e(f"s_cbranch_scc1 {k.L('clm_done')}")
    k.e("s_ff0_i32_b32 s101, s99")
    k.e("s_cmp_eq_i32 s101, -1")
    k.e(f"s_cbranch_scc0 {k.L('clm_bit')}")
    k.e("s_add_u32 s100, s100, 32")
    k.e("s_and_b32 s100, s100, 0xe0")
    k.e("s_mov_b32 s101, 0")
    k.label("clm_bit")
    k.e("s_lshl_b32 s99, 1, s101")
    k.e("s_atomic_or s99, s[10:11], s100 glc")
    k.e("s_waitcnt lgkmcnt(0)")
    k.e("s_bitcmp1_b32 s99, s101")
    k.e(f"s_cbranch_scc1 {k.L('clm_try')}")
    k.e("s_lshl_b32 s96, s101, 3")
    k.e("s_lshr_b32 s100, s100, 5")
    k.e("s_add_u32 s96, s96, s100")
    k.e("s_add_u32 s96, s96, 256")
    k.label("clm_done")
    k.e(f"v_mov_b32 v{vt}, {lds}")
    k.e(f"v_mov_b32 v{vt2}, s96")
    k.e(f"ds_write_b32 v{vt}, v{vt2}")
    k.e("s_waitcnt lgkmcnt(0)")

def claim_read(k, vd, lds):
    k.e(f"v_mov_b32 v{vd}, {lds}")
    k.e(f"ds_read_b32 v{vd}, v{vd}")

def claim_check(k, vd):
    k.e(f"v_readfirstlane_b32 s99, v{vd}")
    k.e("s_nop 0")
    k.e("s_cmp_lg_u32 s99, 0")
    k.e(f"s_cbranch_scc1 {k.L('clm_redo')}")

def claim_redo(k):
    k.label("clm_early")
    k.e("s_or_b32 s2, s2, s99")
    k.e(f"s_branch {k.L('clm_go')}")
    k.label("clm_redo")
    k.e("s_and_b32 s2, s99, 255")
    k.e("s_mov_b32 s98, 1")
    k.label("clm_go")
    k.e("s_setprio 0")
    k.e("s_waitcnt vmcnt(0) lgkmcnt(0)")
    k.e("s_nop 7")
    k.e("s_nop 7")
    k.e("s_barrier")
    k.e(f"s_branch {k.L('restart')}")

def gen_k1():
    k = K("k1_qkv_kernel")
    XP = 1040
    XH = 32 * XP
    WBASE = 2 * XH
    NSLOT = 7
    D = K1_D
    SLOT = 12288
    MISC = WBASE + NSLOT * SLOT
    MISC2 = MISC + 1024
    k.lds = MISC2 + 4096
    CLM = MISC + 512
    assert MISC2 % 2048 == 0
    vl = k.v(); vt0 = k.v(); vt1 = k.v(); vt2 = k.v()
    vL16 = k.v()
    vXp = [k.v(), k.v()]; vXm = [k.v(), k.v()]
    vW0 = [k.v(), k.v()]; vW1 = [k.v(), k.v()]
    vR = k.v(2); vR2 = vR + 1
    sel = k.v(4)
    cs = [k.v(4) for _ in range(3)]
    acc = [k.v(16) for _ in range(3)]
    sets = [dict(XA=k.v(4), XB=k.v(4), WA=[k.v(4) for _ in range(3)], WB=[k.v(4) for _ in range(3)]) for _ in range(2)]
    BP = k.v(4); AP = [k.v(4) for _ in range(3)]
    RR = sets[0]['WA'][0]
    assert k.nv <= 168
    k.e("s_cmp_ge_u32 s2, 256")
    k.e(f"s_cbranch_scc1 {k.L('end')}")
    k.stamp(0)
    k.tick()
    k.e("s_load_dwordx4 s[4:7], s[0:1], 0")
    k.e("s_load_dwordx2 s[8:9], s[0:1], 72")
    claim_begin(k)
    wave_setup(k, vt0)
    k.label("restart")
    tile_map_32x8(k, 25, 26, 27, 28)
    k.e(f"v_lshrrev_b32 v{vt1}, 5, v0")
    k.e("s_cmp_ge_u32 s24, 4")
    k.e(f"s_cbranch_scc1 {k.L('cons')}")
    vWg = vXp[0]; vXg = vXp[1]
    k.e(f"v_lshrrev_b32 v{vt0}, 3, v0")
    k.e(f"v_mul_u32_u24 v{vWg}, 3072, v{vt0}")
    k.e(f"v_lshrrev_b32 v{vt0}, 2, v0")
    k.e(f"v_and_b32 v{vt0}, 4, v{vt0}")
    k.e(f"v_xor_b32 v{vt0}, v{vt0}, v0")
    k.e(f"v_and_b32 v{vt0}, 7, v{vt0}")
    k.e(f"v_lshl_add_u32 v{vWg}, v{vt0}, 4, v{vWg}")
    k.e(f"v_lshlrev_b32 v{vt0}, 3, v{vt1}")
    k.e(f"v_xor_b32 v{vt0}, v{vt0}, v0")
    k.e(f"v_lshl_add_u32 v{vt0}, s27, 2, v{vt0}")
    k.e(f"v_and_b32 v{vt0}, 31, v{vt0}")
    k.e(f"v_lshlrev_b32 v{vXg}, 10, v{vt1}")
    k.e(f"v_lshl_add_u32 v{vXg}, v{vt0}, 4, v{vXg}")
    k.e("s_lshl_b32 s31, s25, 16")
    k.e("s_lshl_b32 s36, s24, 11")
    k.e("s_add_u32 s31, s31, s36")
    k.e(f"s_mul_i32 s29, s24, {XP}")
    for g in range(4):
        k.e(f"s_add_u32 s36, s28, {g}")
        k.e("s_and_b32 s36, s36, 3")
        k.e(f"s_mul_i32 s{44+g}, s36, {8*XP}")
        k.e(f"s_add_u32 s{44+g}, s{44+g}, s29")
        k.e("s_lshl_b32 s36, s36, 14")
        k.e(f"s_add_u32 s{48+g}, s36, s31")
    k.e(f"s_mul_i32 s32, s24, {8*3072}")
    k.e("s_lshl_b32 s33, s26, 7")
    k.e("s_add_u32 s32, s32, s33")
    k.e(f"s_mul_i32 s33, s27, {32*3072}")
    k.e("s_add_u32 s33, s33, s32")
    k.e(f"s_add_u32 s35, s32, {256*3072}")
    k.e("s_mul_i32 s34, s24, 3072")
    k.e(f"s_add_u32 s34, s34, {WBASE}")
    k.e(f"s_mov_b32 s14, {2048*1024}")
    k.e("s_mov_b32 s15, 0x00020000")
    k.e(f"s_mov_b32 s18, {512*3072}")
    k.e("s_mov_b32 s19, 0x00020000")
    k.e("s_mov_b32 m0, s44")
    k.e("s_waitcnt lgkmcnt(0)")
    k.stamp(1)
    k.e("s_mov_b64 s[12:13], s[4:5]")
    k.e("s_mov_b64 s[16:17], s[6:7]")
    first = [True]
    nout = []
    def xgrp(g, half):
        if not first[0]:
            k.e(f"s_add_u32 m0, s{44+g}, {half*(XH-512)}")
            k.e(f"s_add_u32 s36, s{48+g}, 8192")
        else:
            k.e(f"s_add_u32 s36, s{48+g}, 8192")
        first[0] = False
        k.e(f"buffer_load_dwordx4 v{vXg}, s[12:15], s{48+g} offen offset:{half*512} lds")
        k.e(f"s_add_u32 m0, s{44+g}, {half*(XH-512) + 4*XP}")
        k.e("s_nop 0")
        k.e(f"buffer_load_dwordx4 v{vXg}, s[12:15], s36 offen offset:{half*512} lds")
        nout.extend([("x", half)] * 2)
    def wstage(q):
        k.e(f"s_add_u32 m0, s34, {(q % NSLOT)*SLOT}")
        k.e(f"s_add_u32 s36, s33, {32*3072}")
        for g in range(3):
            k.e(f"buffer_load_dwordx4 v{vWg}, s[16:19], s33 offen offset:{g*1024} lds")
        if q == 7:
            k.e("s_cmp_eq_u32 s36, s35")
            k.e("s_cselect_b32 s33, s32, s36")
            k.e(f"s_add_u32 s33, s33, {256*3072}")
            k.e("s_mov_b32 s32, s35")
            k.e(f"s_add_u32 s35, s35, {256*3072}")
        elif q < 15:
            k.e("s_cmp_eq_u32 s36, s35")
            k.e("s_cselect_b32 s33, s32, s36")
        nout.extend([("w", q)] * 3)
    def wait_for(s):
        need = lambda t: (t[0] == "w" and t[1] <= s) or (t[0] == "x" and t[1] <= (1 if s >= 5 else 0))
        last = max(i for i, t in enumerate(nout) if need(t))
        k.e(f"s_waitcnt vmcnt({len(nout) - 1 - last})")
        k.e("s_barrier")
        k.tick()
    xgrp(0, 0); wstage(0)
    for g in (1, 2, 3): xgrp(g, 0)
    for q in range(1, D): wstage(q)
    k.stamp(2)
    def k1_early(tag, v):
        k.e("s_cmp_eq_u32 s97, 0")
        k.e(f"s_cbranch_scc1 {k.L('ek_' + tag)}")
        claim_read(k, v, CLM + 4)
        k.e("s_mov_b32 s97, 0")
        k.e("s_waitcnt lgkmcnt(0)")
        k.e(f"v_readfirstlane_b32 s99, v{v}")
        k.e("s_nop 0")
        k.e("s_and_b32 s99, s99, 0x38")
        k.e(f"s_cbranch_scc1 {k.L('clm_early')}")
        k.label("ek_" + tag)
    for s in range(16):
        wait_for(s)
        if s == 0:
            k1_early("l", vt0)
        if s < 2:
            xgrp(2*s, 1); xgrp(2*s+1, 1)
        if s + D < 16:
            wstage(s + D)
        if s == 15 - D:
            k.stamp(3)
        if s == 6:
            next_code_prefetch(k, 40, "k2_attn_kernel", "k2_attn_kernel")
    k.stamp(4)
    k.label("chkend")
    claim_read(k, vt0, CLM)
    k.e("s_waitcnt lgkmcnt(0)")
    claim_check(k, vt0)
    k.tick_flush(1)
    k.e(f"s_branch {k.L('fin')}")
    k.label("cons")
    k.e("s_cmp_ge_u32 s24, 8")
    k.e(f"s_cbranch_scc1 {k.L('stat')}")
    if K1_PRIO: k.e(f"s_setprio {K1_PRIO}")
    k.e(f"v_lshlrev_b32 v{vL16}, 4, v0")
    k.e("s_and_b32 s33, s24, 1")
    k.e("s_bfe_u32 s34, s24, 0x10001")
    k.e("s_xor_b32 s35, s33, s34")
    k.e(f"v_bfe_u32 v{vt0}, v0, 1, 4")
    k.e(f"v_mul_u32_u24 v{vt2}, {XP}, v{vt0}")
    k.e(f"v_lshl_add_u32 v{vt2}, v{vt1}, 4, v{vt2}")
    k.e(f"v_and_b32 v{vt0}, 1, v0")
    k.e(f"v_mul_u32_u24 v{vXp[0]}, {512+128}, v{vt0}")
    k.e(f"v_mul_u32_u24 v{vXm[0]}, {512-128}, v{vt0}")
    k.e(f"s_mul_i32 s36, s33, {16*XP}")
    k.e("s_lshl_b32 s37, s35, 5")
    k.e("s_add_u32 s38, s36, s37")
    k.e("s_xor_b32 s37, s37, 32")
    k.e("s_add_u32 s39, s36, s37")
    k.e(f"v_add3_u32 v{vXp[1]}, v{vXp[0]}, v{vt2}, s39")
    k.e(f"v_add3_u32 v{vXm[1]}, v{vXm[0]}, v{vt2}, s39")
    k.e(f"v_add3_u32 v{vXp[0]}, v{vXp[0]}, v{vt2}, s38")
    k.e(f"v_add3_u32 v{vXm[0]}, v{vXm[0]}, v{vt2}, s38")
    w = vW1[1]
    k.e(f"v_mul_u32_u24 v{w}, 3072, v{vt1}")
    k.e(f"v_bfe_u32 v{vt0}, v0, 2, 2")
    k.e(f"v_lshl_add_u32 v{w}, v{vt0}, 7, v{w}")
    k.e(f"v_bfe_u32 v{vt0}, v0, 3, 1")
    k.e(f"v_xor_b32 v{vt0}, s34, v{vt0}")
    k.e(f"v_lshl_add_u32 v{w}, v{vt0}, 6, v{w}")
    k.e(f"v_bfe_u32 v{vt0}, v0, 4, 1")
    k.e(f"v_lshl_add_u32 v{w}, v{vt0}, 5, v{w}")
    k.e(f"v_and_b32 v{vt2}, 3, v0")
    k.e(f"v_lshl_add_u32 v{w}, v{vt2}, 3, v{w}")
    k.e("s_mul_i32 s28, s35, 6144")
    k.e(f"s_add_u32 s36, s28, {WBASE}")
    k.e(f"s_sub_u32 s37, {WBASE+6144}, s28")
    k.e(f"v_add_u32 v{vW0[0]}, s36, v{w}")
    k.e(f"v_add_u32 v{vW0[1]}, s37, v{w}")
    k.e(f"v_add_u32 v{vW1[0]}, {4*SLOT}, v{vW0[0]}")
    k.e(f"v_add_u32 v{vW1[1]}, {4*SLOT}, v{vW0[1]}")
    k.e(f"v_bfe_u32 v{vt2}, v0, 2, 1")
    k.e(f"v_cmp_eq_u32 vcc, v{vt0}, v{vt2}")
    k.e(f"v_mov_b32 v{vt2}, 0x3f803f80")
    k.e("s_nop 0")
    k.e(f"v_cndmask_b32 v{sel}, 0, v{vt2}, vcc")
    for i in range(1, 4):
        k.e(f"v_mov_b32 v{sel+i}, v{sel}")
    for z in list(range(BP, BP + 16)):
        k.e(f"v_mov_b32 v{z}, 0")
    k.e("s_lshl_b32 s27, s26, 2")
    k.e("s_lshl_b32 s28, s34, 1")
    k.e("s_add_u32 s27, s27, s28")
    k.e("s_lshl_b32 s27, s27, 6")
    k.e("s_lshl_b32 s28, s25, 1")
    k.e("s_add_u32 s27, s27, s28")
    k.e("s_add_u32 s27, s27, s33")
    k.e("s_lshl_b32 s42, s27, 10")
    k.e("s_add_u32 s43, s42, 0x10000")
    k.e("s_lshl_b32 s44, s27, 11")
    k.e(f"s_add_u32 s44, s44, {hex(WS_KV)}")
    k.e("s_add_u32 s45, s44, 0x20000")
    k.e("s_waitcnt lgkmcnt(0)")
    k.stamp(1)
    srd(k, 20, 8, WS_END)
    code_prefetch(k, 46, 33, K1_CODEPF)
    def big(S, first=False):
        r = []
        for n, (X, W) in enumerate(((S['XA'], S['WA']), (S['XB'], S['WB']))):
            c = lambda a: "0" if (first and n == 0) else vr(a, 16)
            r.append(f"v_mfma_f32_32x32x16_bf16 {vr(acc[0],16)}, {vr(W[0],4)}, {vr(X,4)}, {c(acc[0])}")
            r.append(f"v_mfma_f32_32x32x16_bf16 {vr(acc[1],16)}, {vr(W[1],4)}, {vr(X,4)}, {c(acc[1])}")
            r.append(f"v_mfma_f32_32x32x16_bf16 {vr(acc[2],16)}, {vr(X,4)}, {vr(W[2],4)}, {c(acc[2])}")
        return r
    def small(S, first=False):
        return [f"v_mfma_f32_16x16x32_bf16 {vr(cs[g],4)}, {vr(sel,4)}, {vr(S['WA'][g],4)}, {'0' if first else vr(cs[g],4)}" for g in range(3)]
    def reads(q):
        S = sets[q & 1]
        koff = (q & 7) * 64
        xb = vXm if (koff & 128) else vXp
        xo = (q >> 3) * XH + koff
        sl = q % NSLOT
        wb, wo = (vW0, sl * SLOT) if sl < 4 else (vW1, (sl - 4) * SLOT)
        r = []
        for n, (X, W) in enumerate((('XA', 'WA'), ('XB', 'WB'))):
            r.append(f"ds_read_b128 {vr(S[X],4)}, v{xb[n]} offset:{xo}")
            for g in range(3):
                r.append(f"ds_read_b64_tr_b16 {vr(S[W][g],2)}, v{wb[n]} offset:{wo+g*1024}")
                r.append(f"ds_read_b64_tr_b16 {vr(S[W][g]+2,2)}, v{wb[n]} offset:{wo+g*1024+512}")
        return r
    k.stamp(2)
    k.e("s_barrier")
    k.stamp(3)
    k1_early("c", vt0)
    for x in reads(0): k.e(x)
    k.e("s_waitcnt lgkmcnt(0)")
    for q in range(15):
        k.e("s_barrier")
        b = big(sets[q & 1], q == 0); s = small(sets[q & 1], q == 0)
        m = b[:5] + s + b[5:]
        spread(k, m[:-1], reads(q + 1), [], K1_PER, 5)
        k.e("s_waitcnt lgkmcnt(0)")
        k.e(m[-1])
    k.stamp(4)
    for m in small(sets[1]): k.e(m)
    k.e(f"v_and_b32 v{vt0}, 31, v0")
    k.e("s_lshl_b32 s27, s33, 7")
    k.e(f"s_add_u32 s27, s27, {MISC}")
    k.e(f"v_lshl_add_u32 v{vt0}, v{vt0}, 2, s27")
    k.e(f"v_lshl_add_u32 v{vt1}, v{vt1}, 4, s27")
    bg = big(sets[1])
    k.e(bg[0])
    k.e(f"ds_read_b32 v{BP}, v{vt0}")
    k.e(f"ds_read_b32 v{vR}, v{vt0} offset:256")
    claim_read(k, vt2, CLM)
    for j in range(4):
        k.e(f"ds_read_b128 {vr(RR+4*j,4)}, v{vt1} offset:{256+j*32}")
    T = sets[0]['XA']; B = sets[0]['XB']
    k.e(bg[1])
    k.e("s_and_b32 s27, s24, 3")
    k.e("s_lshl_b32 s27, s27, 10")
    k.e(f"s_add_u32 s27, s27, {MISC2}")
    k.e(f"v_add_u32 v{vt1}, s27, v{vL16}")
    for g in range(3):
        k.e(f"v_mov_b32 v{T+g}, v{cs[g]}")
    k.e(f"ds_write_b128 v{vt1}, {vr(T,4)}")
    k.e(bg[2])
    k.e(f"v_xor_b32 v{vt1}, 1024, v{vt1}")
    k.e("v_cmp_gt_u32 vcc, 32, v0")
    k.e("s_waitcnt lgkmcnt(0)")
    k.e(bg[3])
    claim_check(k, vt2)
    k.e("s_barrier")
    k.e(f"ds_read_b128 {vr(B,4)}, v{vt1}")
    k.e(bg[4])
    k.e(f"v_cndmask_b32 v{BP}, 0, v{BP}, vcc")
    k.e(f"v_mul_f32 v{vR2}, {f32(0.25*1.4426950408889634)}, v{vR}")
    k.e(f"v_bfe_u32 v{vt0}, v0, 4, 1")
    k.e(f"v_lshlrev_b32 v{vt0}, 17, v{vt0}")
    k.e(f"v_lshrrev_b32 v{vt1}, 5, v0")
    k.e(bg[5])
    k.e(f"v_lshl_add_u32 v{vt0}, v{vt1}, 8, v{vt0}")
    k.e(f"v_and_b32 v{vt1}, 15, v0")
    k.e(f"v_lshl_add_u32 v{vt0}, v{vt1}, 4, v{vt0}")
    k.e("s_waitcnt lgkmcnt(0)")
    for g in range(3):
        k.e(f"v_add_f32 v{T+g}, v{T+g}, v{B+g}")
        split2(k, T + g, AP[g], vt2)
        if g == 1: mfma32(k, acc[0], AP[0], BP)
        if g == 2: mfma32(k, acc[1], AP[1], BP)
    k.e("s_nop 0")
    mfma32(k, acc[2], BP, AP[2])
    k.e("s_nop 4")
    for b, (sc, soffs) in enumerate(((vR2, (42, 43)), (vR, (44, 45)))):
        for i in range(0, 16, 2):
            if b == 0 and i < 8:
                k.e(f"v_mul_f32 v{acc[b]+i}, v{sc}, v{acc[b]+i}")
                k.e(f"v_mul_f32 v{acc[b]+i+1}, v{sc}, v{acc[b]+i+1}")
            else:
                pkmul_bcast(k, acc[b] + i, sc)
        for i in range(8):
            k.e(f"v_cvt_pk_bf16_f32 v{acc[b]+i}, v{acc[b]+2*i}, v{acc[b]+2*i+1}")
        k.e(f"buffer_store_dwordx4 {vr(acc[b],4)}, v{vL16}, s[20:23], s{soffs[0]} offen")
        k.e(f"buffer_store_dwordx4 {vr(acc[b]+4,4)}, v{vL16}, s[20:23], s{soffs[1]} offen")
    a = acc[2]
    for i in range(0, 16, 2):
        k.e(f"v_pk_mul_f32 {vr(a+i,2)}, {vr(a+i,2)}, {vr(RR+i,2)}")
    for i in range(8):
        k.e(f"v_cvt_pk_bf16_f32 v{a+i}, v{a+2*i}, v{a+2*i+1}")
    k.e(f"v_permlane32_swap_b32 v{a}, v{a+2}")
    k.e(f"v_permlane32_swap_b32 v{a+1}, v{a+3}")
    k.e(f"buffer_store_dwordx4 {vr(a,4)}, v{vt0}, s[20:23], s44 offen offset:1024")
    k.e(f"v_permlane32_swap_b32 v{a+4}, v{a+6}")
    k.e(f"v_permlane32_swap_b32 v{a+5}, v{a+7}")
    k.e(f"buffer_store_dwordx4 {vr(a+4,4)}, v{vt0}, s[20:23], s44 offen offset:1536")
    k.label("fin")
    k.stamp_flush(1)
    k.label("end")
    k.e("s_endpgm")
    k.label("stat")
    if K1_NOSTAT:
        k.e("s_endpgm")
    k.e("s_setprio 3")
    vSum = vXp[0]; vSq = vXp[1]; vSum2 = vXm[0]; vSq2 = vXm[1]; vXs = vW0[0]
    k.e("s_and_b32 s29, s24, 3")
    k.e("s_add_u32 s30, s27, 8")
    k.e("s_lshl_b32 s30, s30, 5")
    k.e("s_lshl_b32 s31, s29, 3")
    k.e("s_add_u32 s30, s30, s31")
    k.e("s_mul_i32 s30, s30, 3072")
    k.e("s_lshl_b32 s31, s26, 7")
    k.e("s_add_u32 s30, s30, s31")
    k.e("s_lshl_b32 s31, s25, 6")
    k.e("s_lshl_b32 s32, s28, 4")
    k.e("s_add_u32 s31, s31, s32")
    k.e("s_lshl_b32 s32, s29, 2")
    k.e("s_add_u32 s31, s31, s32")
    k.e("s_lshl_b32 s31, s31, 10")
    k.e("s_add_u32 s31, s31, 512")
    k.e(f"v_and_b32 v{vt0}, 15, v0")
    k.e(f"v_lshrrev_b32 v{vt2}, 1, v{vt0}")
    k.e(f"v_mul_u32_u24 v{vXs}, {XP}, v{vt2}")
    k.e(f"v_and_b32 v{vt2}, 1, v0")
    k.e(f"v_lshl_add_u32 v{vXs}, v{vt2}, 9, v{vXs}")
    k.e(f"v_lshrrev_b32 v{vt1}, 4, v0")
    k.e(f"v_xor_b32 v{vt1}, v{vt1}, v{vt2}")
    k.e(f"v_lshl_add_u32 v{vXs}, v{vt1}, 7, v{vXs}")
    k.e(f"s_mul_i32 s36, s29, {8*XP}")
    k.e(f"v_add_u32 v{vXs}, s36, v{vXs}")
    for z in (vSum, vSq, vSum2, vSq2):
        k.e(f"v_mov_b32 v{z}, 0")
    k.e("s_mov_b32 s41, 0xffff0000")
    k.e("s_mov_b32 s40, 4")
    k.e("s_waitcnt lgkmcnt(0)")
    k.e("s_add_u32 s32, s6, s30")
    k.e("s_addc_u32 s33, s7, 0")
    k.e("s_add_u32 s34, s4, s31")
    k.e("s_addc_u32 s35, s5, 0")
    if K1_SPF:
        pf = [f"s_load_dword s48, s[34:35], {r*1024 + c*128}" for r in range(4) for c in range(4)]
        pf += [f"s_load_dword s48, s[32:33], {r*1024}" for r in range(24)]
        for x in pf[:K1_SPF]: k.e(x)
    XS = [sets[0]['XA'], sets[0]['XB']]
    tl = [sets[1]['XA'] + i for i in range(4)]
    def proc(X):
        for i in range(4):
            a, b = tl[(2*i) % 4], tl[(2*i+1) % 4]
            x = X + i
            for ln in [f"v_lshlrev_b32 v{a}, 16, v{x}", f"v_and_b32 v{b}, s41, v{x}",
                       f"v_fmac_f32 v{vSq}, v{a}, v{a}", f"v_fmac_f32 v{vSq2}, v{b}, v{b}",
                       f"v_add_f32 v{vSum}, v{vSum}, v{a}", f"v_add_f32 v{vSum2}, v{vSum2}, v{b}"]:
                k.e(ln)
    k.e("s_mov_b32 s40, 0")
    k.e("s_cmp_lg_u32 s24, 8")
    k.e(f"s_cbranch_scc1 {k.L('clm_skip')}")
    k.e("s_cmp_eq_u32 s97, 0")
    k.e(f"s_cbranch_scc1 {k.L('clm_iss')}")
    k.e("s_and_b32 s100, s2, 7")
    k.e("s_lshl_b32 s100, s100, 5")
    k.e("s_lshr_b32 s101, s2, 3")
    k.e("s_mov_b32 s96, 12")
    k.label("clm_poll")
    k.e("s_mov_b32 s99, 0")
    k.e("s_atomic_or s99, s[10:11], s100 glc")
    k.e("s_sub_u32 s96, s96, 1")
    k.e("s_waitcnt lgkmcnt(0)")
    k.e("s_lshr_b32 s99, s99, s101")
    k.e("s_and_b32 s99, s99, 0xff")
    k.e("s_cmp_eq_u32 s96, 0")
    k.e(f"s_cbranch_scc1 {k.L('clm_pick')}")
    k.e("s_bcnt1_i32_b32 s36, s99")
    k.e("s_cmp_lt_u32 s36, 7")
    k.e(f"s_cbranch_scc1 {k.L('clm_poll')}")
    k.label("clm_pick")
    k.e("s_ff0_i32_b32 s99, s99")
    k.e("s_and_b32 s99, s99, 7")
    k.e("s_lshl_b32 s99, s99, 3")
    k.e(f"v_mov_b32 v{vt1}, {CLM + 4}")
    k.e(f"v_mov_b32 v{vt2}, s99")
    k.e(f"ds_write_b32 v{vt1}, v{vt2}")
    map_addr(k, 100)
    srd(k, 20, 8, WS_END)
    k.e(f"v_mov_b32 v{vt1}, 0")
    k.e(f"buffer_store_dword v{vt2}, v{vt1}, s[20:23], s100 offen")
    k.e("s_cmp_lg_u32 s99, 0")
    k.e("s_waitcnt lgkmcnt(0)")
    k.e(f"s_cbranch_scc1 {k.L('clm_skip')}")
    k.label("clm_iss")
    claim_issue(k)
    k.e("s_barrier")
    k.e("s_cmp_eq_u32 s97, 0")
    k.e(f"s_cbranch_scc1 {k.L('ek_s')}")
    claim_read(k, vt1, CLM + 4)
    k.e("s_mov_b32 s97, 0")
    k.e("s_waitcnt lgkmcnt(0)")
    k.e(f"v_readfirstlane_b32 s36, v{vt1}")
    k.e("s_nop 0")
    k.e("s_and_b32 s36, s36, 0x38")
    k.e(f"s_cbranch_scc0 {k.L('ek_s')}")
    k.e("s_mov_b32 s99, s36")
    k.e(f"s_branch {k.L('clm_early')}")
    k.label("ek_s")
    k.e(f"ds_read_b128 {vr(XS[0],4)}, v{vXs}")
    k.label("sloop")
    k.e("s_waitcnt lgkmcnt(0)")
    k.e(f"ds_read_b128 {vr(XS[1],4)}, v{vXs} offset:16")
    k.e("s_cmp_eq_u32 s40, 3")
    k.e(f"s_cselect_b32 s36, {XH-96}, 32")
    k.e(f"v_add_u32 v{vXs}, s36, v{vXs}")
    k.e("s_cmp_lt_u32 s40, 2")
    proc(XS[0])
    k.e(f"s_cbranch_scc1 {k.L('snb')}")
    k.e("s_barrier")
    k.label("snb")
    k.e("s_waitcnt lgkmcnt(0)")
    k.e(f"ds_read_b128 {vr(XS[0],4)}, v{vXs}")
    k.e("s_add_u32 s40, s40, 1")
    k.e("s_cmp_lt_u32 s40, 8")
    proc(XS[1])
    k.e("s_barrier")
    k.e(f"s_cbranch_scc1 {k.L('sloop')}")
    k.e(f"v_add_f32 v{vSum}, v{vSum}, v{vSum2}")
    k.e(f"v_add_f32 v{vSq}, v{vSq}, v{vSq2}")
    k.e("s_nop 1")
    k.e(f"v_permlane32_swap_b32 v{vSum}, v{vSq}")
    k.e(f"v_add_f32 v{vSum}, v{vSum}, v{vSq}")
    k.e(f"v_mov_b32 v{vSq}, v{vSum}")
    k.e("s_nop 1")
    k.e(f"v_permlane16_swap_b32 v{vSum}, v{vSq}")
    k.e(f"v_add_f32 v{vSum}, v{vSum}, v{vSq}")
    k.e(f"v_mov_b32 v{vSq}, v{vSum}")
    k.e("s_nop 1")
    k.e(f"v_permlane32_swap_b32 v{vSum}, v{vSq}")
    ln_finish(k, vSum, vSq, vSum2, vSq2, vt2, vt1)
    k.e("s_lshl_b32 s36, s29, 6")
    k.e(f"s_add_u32 s36, s36, {MISC}")
    k.e(f"v_lshl_add_u32 v{vt0}, v{vt0}, 2, s36")
    k.e(f"ds_write2_b32 v{vt0}, v{vSum2}, v{vSq2} offset0:0 offset1:64")
    k.e("s_cmp_lg_u32 s24, 8")
    k.e(f"s_cbranch_scc1 {k.L('clm_nov')}")
    claim_verdict(k, vt1, vt2, CLM)
    k.label("clm_nov")
    k.e("s_waitcnt lgkmcnt(0)")
    k.e("s_barrier")
    claim_read(k, vt0, CLM)
    k.e("s_waitcnt lgkmcnt(0)")
    claim_check(k, vt0)
    k.e("s_endpgm")
    claim_redo(k)
    return k

def gen_k2():
    k = K("k2_attn_kernel")
    STG = 131072
    k.lds = STG + 32768
    vl = k.v(); vt0 = k.v(); vt1 = k.v(); vL16 = k.v(); vK = k.v(); vV = k.v(); vSrc = k.v(); vDst = k.v()
    vIdx = k.v(); vCs = k.v(); vt2 = k.v(); vt3 = k.v()
    Q = k.v(4); KA = k.v(4); KB = k.v(4)
    VA = [k.v(4), k.v(4)]; VB = [k.v(4), k.v(4)]
    PR = [k.v(4) for _ in range(4)]
    NM = k.v(16); SA = k.v(16); SB = k.v(16); O = k.v(16)
    k.e("s_cmp_ge_u32 s2, 256")
    k.e(f"s_cbranch_scc1 {k.L('end')}")
    k.stamp(0)
    k.e("s_load_dwordx2 s[8:9], s[0:1], 72")
    k.e("s_load_dwordx2 s[4:5], s[0:1], 16")
    k.e("s_load_dwordx4 s[12:15], s[0:1], 32")
    k.e("s_load_dwordx2 s[6:7], s[0:1], 48")
    claim_begin(k)
    wave_setup(k, vt0)
    k.label("restart")
    k.e(f"v_lshlrev_b32 v{vL16}, 4, v0")
    k.e("s_and_b32 s25, s2, 1")
    k.e("s_lshl_b32 s25, s25, 4")
    k.e("s_bfe_u32 s27, s2, 0x40003")
    k.e("s_add_u32 s25, s25, s27")
    k.e("s_and_b32 s40, s2, 6")
    k.e("s_lshr_b32 s26, s2, 7")
    k.e("s_add_u32 s26, s26, s40")
    k.e("s_lshl_b32 s40, s40, 14")
    k.e("s_lshl_b32 s26, s26, 3")
    k.e("s_add_u32 s26, s26, s24")
    k.e("s_lshl_b32 s27, s25, 6")
    k.e("s_add_u32 s27, s27, s26")
    k.e("s_lshl_b32 s28, s27, 10")
    k.e("s_lshl_b32 s29, s25, 17")
    k.e(f"s_add_u32 s29, s29, {hex(WS_KV)}")
    k.e("s_lshl_b32 m0, s24, 11")
    k.e("s_add_u32 s27, s29, m0")
    k.e("s_add_u32 s27, s27, s40")
    k.e("s_waitcnt lgkmcnt(0)")
    k.stamp(1)
    hint_load(k, "a")
    srd(k, 20, 8, WS_END)
    k.e(f"buffer_load_dwordx4 v{vL16}, s[20:23], s27 offen lds")
    k.e(f"buffer_load_dwordx4 {vr(Q,4)}, v{vL16}, s[20:23], s28 offen")
    k.e(f"buffer_load_dwordx4 v{vL16}, s[20:23], s27 offen offset:1024 lds")
    k.e("s_and_b32 s30, s24, 3")
    k.e("s_lshl_b32 s30, s30, 12")
    k.e("s_cmp_ge_u32 s24, 4")
    k.e("s_cselect_b32 s31, 0x10000, 0x4000" if False else "s_cselect_b32 s31, 4, 1")
    k.e("s_lshl_b32 s31, s31, 14")
    k.e("s_add_u32 s30, s30, s31")
    def bulk(nch, tag):
        k.e(f"s_mov_b32 s31, {nch}")
        k.label(tag)
        k.e("s_mov_b32 m0, s30")
        k.e("s_add_u32 s27, s30, s40")
        k.e("s_and_b32 s27, s27, 0x1ffff")
        k.e("s_add_u32 s27, s27, s29")
        for g in range(4):
            k.e(f"buffer_load_dwordx4 v{vL16}, s[20:23], s27 offen offset:{g*1024} lds")
        k.e("s_add_u32 s30, s30, 16384")
        k.e("s_sub_u32 s31, s31, 1")
        k.e("s_cmp_lg_u32 s31, 0")
        k.e(f"s_cbranch_scc1 {k.L(tag)}")
    k.e(f"v_lshrrev_b32 v{vt1}, 5, v0")
    k.e(f"v_mov_b32 v{vK}, v{vL16}")
    k.e(f"v_lshlrev_b32 v{vV}, 8, v{vt1}")
    k.e(f"v_and_b32 v{vt0}, 15, v0")
    k.e(f"v_lshl_add_u32 v{vV}, v{vt0}, 4, v{vV}")
    k.e(f"v_mov_b32 v{vt0}, 0x3f803f80")
    if ZROWS:
        k.e(f"v_and_b32 v{vt2}, 11, v0")
        k.e(f"v_cmp_eq_u32 vcc, 0, v{vt2}")
        k.e("s_nop 1")
        k.e(f"v_cndmask_b32 v{vt0}, 0, v{vt0}, vcc")
    for r in VA + VB:
        for i in range(4):
            k.e(f"v_mov_b32 v{r+i}, v{vt0}")
    k.e(f"v_mov_b32 v{vIdx}, 0xdddddddd")
    k.e("s_mov_b32 s42, 0x0000ffff")
    k.e("s_mov_b32 s43, 0x0000ffff")
    k.e("s_mov_b32 s44, 0")
    k.e("s_mov_b32 s45, 0")
    hint_check(k, "a")
    k.stamp(2)
    k.e("s_waitcnt vmcnt(0)")
    k.e("s_barrier")
    k.e(f"ds_read_b128 {vr(KA,4)}, v{vK}")
    k.e("s_cmp_ge_u32 s24, 4")
    k.e(f"s_cbranch_scc1 {k.L('nob1')}")
    bulk(3, "bulk1")
    k.label("nob1")
    k.e(f"s_branch {k.L('prep1')}")
    k.label("prep1r")
    k.e("s_waitcnt lgkmcnt(0)")
    mfma32(k, SA, KA, Q, "0")
    k.e("s_nop 7")
    k.e("s_nop 3")
    k.e(f"v_max3_f32 v{vt0}, v{SA}, v{SA+1}, v{SA+2}")
    for i in range(3, 15, 2):
        k.e(f"v_max3_f32 v{vt0}, v{vt0}, v{SA+i}, v{SA+i+1}")
    k.e(f"v_max_f32 v{vt0}, v{vt0}, v{SA+15}")
    k.label("setm")
    k.e(f"ds_read_b128 {vr(KB,4)}, v{vK} offset:2048")
    k.e("s_mov_b64 exec, s[42:43]")
    k.e(f"ds_read_b128 {vr(VA[0],4)}, v{vV} offset:1024")
    k.e(f"ds_read_b128 {vr(VA[1],4)}, v{vV} offset:1536")
    k.e("s_mov_b64 exec, -1")
    k.e(f"v_mov_b32 v{vt1}, v{vt0}")
    k.e("s_nop 1")
    k.e(f"v_permlane32_swap_b32 v{vt0}, v{vt1}")
    k.e(f"v_max_f32 v{vt0}, v{vt0}, v{vt1}")
    for i in range(16):
        k.e(f"v_sub_f32 v{NM+i}, 0, v{vt0}")
    k.e("s_nop 1")
    mfma32(k, SA, KA, Q, NM)
    for i in range(16):
        k.e(f"v_mov_b32 v{O+i}, 0")
    for i in range(8, 16):
        k.e(f"v_mov_b32 v{SB+i}, 0")
    k.e("s_mov_b32 s41, 0")
    k.stamp(3)
    def smf(a, b):
        k.e(f"v_smfmac_f32_32x32x32_bf16 {vr(O,16)}, {vr(a,4)}, {vr(b,8)}, v{vIdx}")
    k.label("loop")
    for t in range(8):
        half = t & 1
        S, Sn = (SA, SB) if half == 0 else (SB, SA)
        Kn, Knn = (KB, KA) if half == 0 else (KA, KB)
        Vc, Vp = (VA, VB) if half == 0 else (VB, VA)
        base = t * 2048
        if half == 0:
            k.e(f"s_setprio {3 - t//2}")
        if t == 6:
            k.e("s_cmp_eq_u32 s41, s44")
            k.e(f"s_cbranch_scc1 {k.L('chk')}")
            k.label("back")
        for i in range(0, 3):
            k.e(f"v_exp_f32 v{S+i}, v{S+i}")
        smf(Vp[1], Sn + 8)
        for i in range(3, 8):
            k.e(f"v_exp_f32 v{S+i}, v{S+i}")
        k.e("s_waitcnt lgkmcnt(2)")
        mfma32(k, Sn, Kn, Q, NM)
        k.e(f"ds_read_b128 {vr(Knn,4)}, v{vK} offset:{base+4096}")
        for i in range(8, 13):
            k.e(f"v_exp_f32 v{S+i}, v{S+i}")
        k.e("s_waitcnt lgkmcnt(1)")
        smf(Vc[0], S)
        k.e("s_mov_b64 exec, s[42:43]")
        k.e(f"ds_read_b128 {vr(Vp[0],4)}, v{vV} offset:{base+2048+1024}")
        k.e(f"ds_read_b128 {vr(Vp[1],4)}, v{vV} offset:{base+2048+1536}")
        k.e("s_mov_b64 exec, -1")
        if t == 7:
            k.e(f"v_add_u32 v{vK}, 0x4000, v{vK}")
            k.e(f"v_add_u32 v{vV}, 0x4000, v{vV}")
            k.e("s_add_u32 s41, s41, 1")
            k.e("s_cmp_lt_u32 s41, 8")
        for i in range(13, 16):
            k.e(f"v_exp_f32 v{S+i}, v{S+i}")
    k.e(f"s_cbranch_scc1 {k.L('loop')}")
    k.stamp(4)
    k.e("s_nop 0")
    smf(VB[1], SB + 8)
    k.e("s_lshr_b32 s27, s26, 1")
    k.e("s_lshl_b32 s27, s27, 5")
    k.e("s_add_u32 s27, s27, s25")
    k.e("s_lshl_b32 s27, s27, 1")
    k.e("s_and_b32 s28, s26, 1")
    k.e("s_add_u32 s27, s27, s28")
    k.e("s_lshl_b32 s27, s27, 10")
    k.e(f"s_add_u32 s27, s27, {hex(WS_O)}")
    k.e("s_waitcnt lgkmcnt(0)")
    k.e(f"v_mov_b32 v{vt1}, {f32(2.0**60)}")
    k.e("s_nop 1")
    k.e(f"v_cmp_nlt_f32 vcc, v{O+8}, v{vt1}")
    k.e(f"v_rcp_f32 v{vt0}, v{O+8}")
    k.e(f"s_cbranch_vccnz {k.L('fb')}")
    k.label("fin")
    for i in range(8):
        k.e(f"v_mul_f32 v{O+i}, v{vt0}, v{O+i}")
    for i in range(4):
        k.e(f"v_cvt_pk_bf16_f32 v{O+i}, v{O+2*i}, v{O+2*i+1}")
    k.e(f"buffer_store_dwordx4 {vr(O,4)}, v{vL16}, s[20:23], s27 offen")
    k.stamp_flush(2)
    k.label("end")
    k.e("s_endpgm")
    k.label("fb")
    k.e("s_cmp_eq_u32 s45, 0")
    k.e(f"s_cbranch_scc0 {k.L('fin')}")
    k.e("s_mov_b32 s45, 1")
    k.e(f"v_mov_b32 v{vK}, v{vL16}")
    k.e(f"v_subrev_u32 v{vV}, 0x20000, v{vV}")
    k.e(f"v_mov_b32 v{vt0}, 0xff800000")
    k.e("s_mov_b32 s41, 0")
    k.label("fbloop")
    k.e(f"ds_read_b128 {vr(KA,4)}, v{vK}")
    k.e(f"v_add_u32 v{vK}, 2048, v{vK}")
    k.e("s_waitcnt lgkmcnt(0)")
    mfma32(k, SA, KA, Q, "0")
    k.e("s_add_u32 s41, s41, 1")
    k.e("s_cmp_lt_u32 s41, 64")
    k.e("s_nop 7")
    k.e("s_nop 3")
    for i in range(0, 16, 2):
        k.e(f"v_max3_f32 v{vt0}, v{vt0}, v{SA+i}, v{SA+i+1}")
    k.e(f"s_cbranch_scc1 {k.L('fbloop')}")
    k.e(f"v_mov_b32 v{vK}, v{vL16}")
    k.e(f"ds_read_b128 {vr(KA,4)}, v{vK}")
    k.e("s_waitcnt lgkmcnt(0)")
    k.e(f"s_branch {k.L('setm')}")
    k.label("chk")
    k.e("s_add_u32 s44, s44, 1")
    k.e("s_cmp_eq_u32 s41, 1")
    k.e(f"s_cbranch_scc1 {k.L('prep2')}")
    k.e("s_cmp_eq_u32 s41, 3")
    k.e(f"s_cbranch_scc1 {k.L('b2')}")
    k.e("s_cmp_lt_u32 s24, 4")
    k.e(f"s_cbranch_scc1 {k.L('b1a')}")
    k.e("s_barrier")
    bulk(4, "bulk2")
    k.e(f"s_branch {k.L('back')}")
    k.label("b1a")
    k.e("s_cmp_lg_u32 s24, 0")
    k.e(f"s_cbranch_scc1 {k.L('clm_skip')}")
    claim_issue(k)
    k.e("s_waitcnt vmcnt(4)")
    k.e("s_cmp_eq_u32 s46, 0")
    k.e(f"s_cbranch_scc0 {k.L('b1b')}")
    k.e("s_waitcnt vmcnt(0)")
    k.label("b1b")
    k.e("s_barrier")
    k.e(f"s_branch {k.L('back')}")
    k.label("prep1")
    k.e("s_sub_u32 s27, 7, s24")
    k.e("s_lshl_b32 s27, s27, 8")
    k.e("s_add_u32 s27, s27, s3")
    k.e("s_mov_b32 s46, 0")
    k.e("s_cmp_ge_u32 s27, 1176")
    k.e(f"s_cbranch_scc1 {k.L('prep1r')}")
    k.e("s_mov_b32 s46, 1")
    k.e(f"v_lshrrev_b32 v{vt1}, 5, v0")
    k.e(f"v_and_b32 v{vt0}, 31, v0")
    k.e("s_cmp_lt_u32 s27, 704")
    k.e(f"s_cbranch_scc0 {k.L('prepB')}")
    k.e("s_cmp_ge_u32 s27, 352")
    k.e("s_cselect_b32 s47, 256, 0")
    k.e("s_cselect_b32 s16, s14, s12")
    k.e("s_cselect_b32 s17, s15, s13")
    k.e("s_cselect_b32 s28, 352, 0")
    k.e("s_sub_u32 s27, s27, s28")
    k.e("s_and_b32 s34, s27, 15")
    k.e("s_lshr_b32 s32, s27, 4")
    k.e(f"s_mov_b32 s18, {512*2752}")
    k.e("s_mov_b32 s33, 2752")
    for p in range(2):
        k.e("s_lshl_b32 s27, s32, 1")
        if p: k.e("s_add_u32 s27, s27, 1")
        k.e("s_mul_i32 s28, s27, 43691")
        k.e("s_lshr_b32 s28, s28, 17")
        k.e("s_mul_i32 s35, s28, 186")
        k.e("s_lshl_b32 s28, s27, 1")
        k.e("s_add_u32 s35, s35, s28")
        k.e("s_mul_i32 s28, s34, 12")
        k.e("s_add_u32 s35, s35, s28")
        k.e("s_lshl_b32 s35, s35, 10")
        k.e(f"s_add_u32 s{36+p}, s35, {hex(WS_WGU)}")
    k.e("s_cmp_eq_u32 s32, 21")
    k.e(f"s_cselect_b32 s37, {hex(OOB)}, s37")
    k.e("s_mov_b32 s38, 6144")
    k.e(f"v_lshrrev_b32 v{vt2}, 4, v{vt0}")
    k.e(f"v_and_b32 v{vt3}, 15, v0")
    k.e(f"v_lshlrev_b32 v{vt3}, 4, v{vt3}")
    k.e(f"v_add_u32 v{vt3}, s47, v{vt3}")
    k.e(f"v_lshl_add_u32 v{vDst}, v{vt2}, 10, v{vt3}")
    k.e(f"v_lshl_add_u32 v{vDst}, v{vt1}, 9, v{vDst}")
    k.e(f"v_lshl_add_u32 v{vCs}, v{vt2}, 11, v{vt3}")
    k.e(f"v_lshl_add_u32 v{vCs}, v{vt1}, 12, v{vCs}")
    k.e("s_lshl_b32 s39, s32, 13")
    k.e("s_lshr_b32 s27, s34, 2")
    k.e("s_lshl_b32 s27, s27, 9")
    k.e("s_add_u32 s39, s39, s27")
    k.e("s_and_b32 s27, s34, 3")
    k.e("s_lshl_b32 s27, s27, 2")
    k.e("s_add_u32 s39, s39, s27")
    k.e(f"s_add_u32 s39, s39, {hex(WS_CS)}")
    k.e(f"s_branch {k.L('prepC')}")
    k.label("prepB")
    k.e("s_cmp_lt_u32 s27, 1048")
    k.e("s_cselect_b32 s16, s6, s4")
    k.e("s_cselect_b32 s17, s7, s5")
    k.e(f"s_mov_b32 s18, {512*1024}")
    k.e(f"s_cselect_b32 s18, {1376*1024}, s18")
    k.e("s_cselect_b32 s35, 86, 32")
    k.e("s_movk_i32 s28, 1048")
    k.e("s_cselect_b32 s28, 704, s28")
    k.e(f"s_mov_b32 s36, {hex(WS_WO)}")
    k.e(f"s_cselect_b32 s36, {hex(WS_WD)}, s36")
    k.e("s_sub_u32 s27, s27, s28")
    k.e("s_and_b32 s32, s27, 7")
    k.e("s_lshr_b32 s34, s27, 3")
    k.e("s_mov_b32 s33, 1024")
    k.e("s_mul_i32 s27, s32, s35")
    k.e("s_lshl_b32 s28, s34, 1")
    k.e("s_add_u32 s27, s27, s28")
    k.e("s_lshl_b32 s27, s27, 11")
    k.e("s_add_u32 s36, s36, s27")
    k.e("s_add_u32 s37, s36, 1024")
    k.e("s_mov_b32 s38, 2048")
    k.e(f"v_mov_b32 v{vDst}, v{vL16}")
    k.e(f"v_mov_b32 v{vCs}, 0")
    k.e(f"s_mov_b32 s39, {hex(OOB)}")
    k.label("prepC")
    k.e("s_mov_b32 s19, 0x00020000")
    k.e(f"v_lshrrev_b32 v{vt2}, 3, v0")
    k.e(f"v_mul_u32_u24 v{vSrc}, s33, v{vt2}")
    k.e(f"v_lshrrev_b32 v{vt2}, 2, v0")
    k.e(f"v_and_b32 v{vt2}, 4, v{vt2}")
    k.e(f"v_xor_b32 v{vt2}, v{vt2}, v0")
    k.e(f"v_and_b32 v{vt2}, 7, v{vt2}")
    k.e(f"v_lshl_add_u32 v{vSrc}, v{vt2}, 4, v{vSrc}")
    k.e("s_lshl_b32 s27, s34, 5")
    k.e("s_mul_i32 s27, s27, s33")
    k.e("s_lshl_b32 s28, s32, 7")
    k.e("s_add_u32 s27, s27, s28")
    k.e("s_lshl_b32 s33, s33, 3")
    k.e("s_lshl_b32 s28, s24, 12")
    k.e(f"s_add_u32 s28, s28, {STG}")
    for rb in range(4):
        k.e(f"s_add_u32 m0, s28, {rb*1024}")
        k.e("s_nop 0")
        k.e(f"buffer_load_dwordx4 v{vSrc}, s[16:19], s27 offen lds")
        k.e("s_add_u32 s27, s27, s33")
    k.e(f"v_and_b32 v{vt2}, 3, v0")
    k.e(f"v_lshlrev_b32 v{vSrc}, 3, v{vt2}")
    k.e(f"v_lshl_add_u32 v{vSrc}, v{vt1}, 9, v{vSrc}")
    k.e(f"v_bfe_u32 v{vt2}, v0, 2, 2")
    k.e(f"v_lshl_add_u32 v{vSrc}, v{vt2}, 7, v{vSrc}")
    k.e(f"v_bfe_u32 v{vt2}, v0, 3, 1")
    k.e(f"v_lshl_add_u32 v{vSrc}, v{vt2}, 6, v{vSrc}")
    k.e(f"v_bfe_u32 v{vt2}, v0, 4, 1")
    k.e(f"v_lshl_add_u32 v{vSrc}, v{vt2}, 5, v{vSrc}")
    k.e(f"v_add_u32 v{vSrc}, s28, v{vSrc}")
    k.e(f"s_branch {k.L('prep1r')}")
    k.label("prep2")
    k.e("s_mov_b32 s44, 3")
    k.e("s_cmp_eq_u32 s46, 0")
    k.e(f"s_cbranch_scc1 {k.L('back')}")
    k.e(f"v_xor_b32 v{vt2}, 64, v{vSrc}")
    k.e("s_waitcnt vmcnt(0)")
    for ksl in range(2):
        for p in range(2):
            r = PR[ksl*2+p]
            a = vSrc if p == 0 else vt2
            k.e(f"ds_read_b64_tr_b16 {vr(r,2)}, v{a} offset:{ksl*2048}")
            k.e(f"ds_read_b64_tr_b16 {vr(r+2,2)}, v{a} offset:{ksl*2048+1024}")
    k.e(f"v_mov_b32 v{vt0}, 0")
    k.e(f"v_mov_b32 v{vt1}, 0")
    k.e("s_mov_b32 s27, 0x3f803f80")
    k.e("s_waitcnt lgkmcnt(0)")
    for ksl in range(2):
        for p in range(2):
            r = PR[ksl*2+p]
            k.e(f"buffer_store_dwordx4 {vr(r,4)}, v{vDst}, s[20:23], s{36+p} offen {PREP_ST}")
            if ksl == 0:
                k.e(f"s_add_u32 s{36+p}, s{36+p}, s38")
            for i in range(4):
                k.e(f"v_dot2c_f32_bf16 v{vt0 if p == 0 else vt1}, s27, v{r+i}")
    k.e("s_nop 2")
    k.e(f"v_permlane32_swap_b32 v{vt0}, v{vt1}")
    k.e(f"v_add_f32 v{vt0}, v{vt0}, v{vt1}")
    k.e(f"buffer_store_dword v{vt0}, v{vCs}, s[20:23], s39 offen")
    k.e(f"s_branch {k.L('back')}")
    k.label("b2")
    k.e("s_cmp_lg_u32 s24, 0")
    k.e(f"s_cbranch_scc1 {k.L('clm_nov')}")
    claim_verdict(k, vt0, vt1, STG + 4096)
    k.label("clm_nov")
    k.e("s_waitcnt vmcnt(0)")
    k.e("s_barrier")
    claim_read(k, vt0, STG + 4096)
    k.e("s_waitcnt lgkmcnt(0)")
    claim_check(k, vt0)
    k.e("s_mov_b32 s44, 99")
    next_code_prefetch(k, 48, "k3_wo_kernel", "k5_down_kernel")
    if PREFETCH:
        k.e("s_lshr_b32 s27, s2, 3")
        k.e("s_lshl_b32 s27, s27, 3")
        k.e("s_add_u32 s27, s27, s24")
        k.e("s_and_b32 s28, s2, 1")
        for (base, half, per, reg) in ((WS_WO, 0x40000, 1024, PR[0]), (WS_WGU, 8*32*6144, 6144, PR[0]+1), (WS_WD, 4*86*2048, 2752, PR[0]+2)):
            nl = (per + 127) // 128
            k.e(f"s_mul_i32 s32, s28, {half}")
            k.e(f"s_mul_i32 s33, s27, {per}")
            k.e("s_add_u32 s32, s32, s33")
            k.e(f"s_add_u32 s32, s32, {hex(base)}")
            k.e(f"v_min_u32 v{vt0}, {nl-1 if per % 128 == 0 else nl}, v0")
            k.e(f"v_lshlrev_b32 v{vt0}, 7, v{vt0}")
            k.e(f"buffer_load_dword v{reg}, v{vt0}, s[20:23], s32 offen")
    k.e(f"s_branch {k.L('back')}")
    claim_redo(k)
    return k

def gen_gemm64(name, nks, act_off, w_off, mode):
    k = K(name)
    NSLOT = G64_NSLOT
    D = G64_D
    SLOT = 16384
    RES = NSLOT * SLOT
    k.lds = RES + 8192 + 64
    CLM = RES + 8192
    nst = (nks + 3) // 4
    assert nst % 2 == 0
    vl = k.v(); vt0 = k.v(); vt1 = k.v(); vL16 = k.v(); vAb = k.v(); vWb = k.v(); vA = k.v(); vW = k.v()
    vS = k.v(); vQ = k.v(); vO = k.v(); vt2 = k.v()
    vRa = k.v(4)
    R = k.v(8)
    acc = k.v(16)
    T = k.v(16)
    sets = [dict(A=[k.v(4) for _ in range(4)], W=[k.v(4) for _ in range(4)]) for _ in range(2)]
    k.e("s_cmp_ge_u32 s2, 256")
    k.e(f"s_cbranch_scc1 {k.L('end')}")
    k.stamp(0)
    k.tick()
    k.e("s_load_dwordx2 s[8:9], s[0:1], 72")
    k.e(f"s_load_dwordx2 s[4:5], s[0:1], {0 if mode == 'wo' else 56}")
    claim_begin(k)
    wave_setup(k, vt0)
    k.label("restart")
    tile_map_32x8(k, 25, 26, 27, 28)
    k.e(f"v_lshlrev_b32 v{vL16}, 4, v0")
    k.e("s_and_b32 s33, s24, 1")
    k.e("s_bfe_u32 s34, s24, 0x10001")
    def hf_offset():
        k.e("s_lshr_b32 s35, s25, 1")
        k.e("s_lshl_b32 s35, s35, 5")
        k.e("s_lshl_b32 s30, s26, 2")
        k.e("s_add_u32 s35, s35, s30")
        k.e("s_lshl_b32 s30, s34, 1")
        k.e("s_add_u32 s35, s35, s30")
        k.e("s_lshl_b32 s35, s35, 2")
        k.e("s_and_b32 s30, s25, 1")
        k.e("s_lshl_b32 s30, s30, 1")
        k.e("s_add_u32 s35, s35, s30")
        k.e("s_add_u32 s35, s35, s33")
        k.e("s_lshl_b32 s35, s35, 10")
        k.e(f"s_add_u32 s35, s35, {hex(WS_H)}")
    k.e("s_cmp_ge_u32 s24, 4")
    k.e(f"s_cbranch_scc1 {k.L('cons')}")
    split = 4 if mode == "wo" else 12
    k.e(f"s_mul_i32 s27, s25, {nks*2048}")
    k.e(f"s_add_u32 s27, s27, {hex(act_off)}")
    k.e(f"s_mul_i32 s30, s26, {nks*2048}")
    k.e(f"s_add_u32 s30, s30, {hex(w_off)}")
    k.e("s_cmp_eq_u32 s34, 0")
    k.e("s_cselect_b32 s30, s27, s30")
    k.e("s_lshl_b32 s29, s33, 12")
    k.e("s_lshl_b32 s32, s24, 12")
    k.e("s_bitcmp1_b32 s2, 0")
    k.e(f"s_cselect_b32 s31, {split*8192}, 0")
    k.e(f"s_cselect_b32 s36, 0, {split*8192}")
    k.e("s_add_u32 s31, s31, s29")
    nl = 16 if mode == "wo" else 48
    k.e("s_lshl_b32 s28, s28, 2")
    k.e("s_add_u32 s28, s28, s24")
    k.e(f"s_mul_i32 s28, s28, {nl*128}")
    k.e("s_add_u32 s27, s27, s28")
    k.e("s_add_u32 s27, s27, s36")
    k.e(f"s_mov_b32 s18, {nks*2048}")
    k.e("s_mov_b32 s19, 0x00020000")
    k.e("s_mov_b32 m0, s32")
    k.e("s_waitcnt lgkmcnt(0)")
    k.stamp(1)
    hint_load(k, "l")
    k.e("s_add_u32 s16, s8, s30")
    k.e("s_addc_u32 s17, s9, 0")
    nout = []
    def issue(q):
        if q:
            k.e(f"s_add_u32 m0, s32, {(q % NSLOT)*SLOT}")
            if q == nst - split:
                k.e("s_add_u32 s31, s31, 8192")
                k.e("s_bitcmp1_b32 s2, 0")
                k.e("s_cselect_b32 s31, s29, s31")
            else:
                k.e("s_add_u32 s31, s31, 8192")
        for g in range(4):
            k.e(f"buffer_load_dwordx4 v{vL16}, s[16:19], s31 offen offset:{g*1024} lds")
        nout.extend([q] * 4)
    pf = [f"s_load_dword s48, s[46:47], {i*128}" for i in range(nl)] if ACTPF else []
    def resid():
        k.e("s_lshl_b32 s27, s24, 11")
        k.e(f"s_add_u32 m0, s27, {RES}")
        if mode == "wo":
            srd(k, 12, 4, 2048 * 1024)
            k.e(f"v_lshrrev_b32 v{vt0}, 3, v0")
            k.e(f"v_xor_b32 v{vt1}, v{vt0}, v0")
            k.e(f"v_and_b32 v{vt1}, 7, v{vt1}")
            k.e(f"v_lshlrev_b32 v{vt0}, 10, v{vt0}")
            k.e(f"v_lshl_add_u32 v{vt0}, v{vt1}, 4, v{vt0}")
            k.e("s_lshl_b32 s27, s25, 16")
            k.e("s_lshl_b32 s28, s24, 14")
            k.e("s_add_u32 s27, s27, s28")
            k.e("s_lshl_b32 s28, s26, 7")
            k.e("s_add_u32 s27, s27, s28")
            k.e(f"buffer_load_dwordx4 v{vt0}, s[12:15], s27 offen lds")
            k.e(f"s_add_u32 s27, s27, {8192-1024}")
            k.e(f"buffer_load_dwordx4 v{vt0}, s[12:15], s27 offen offset:1024 lds")
        else:
            srd(k, 20, 8, WS_END)
            hf_offset()
            k.e(f"buffer_load_dwordx4 v{vL16}, s[20:23], s35 offen lds")
            k.e(f"s_add_u32 s35, s35, {4096-1024}")
            k.e(f"buffer_load_dwordx4 v{vL16}, s[20:23], s35 offen offset:1024 lds")
    for q in range(D):
        issue(q)
        if q == 0:
            hint_check(k, "l")
        if q == 1:
            k.e("s_add_u32 s46, s8, s27")
            k.e("s_addc_u32 s47, s9, 0")
            for x in pf[:14]: k.e(x)
    k.e("s_cmp_lg_u32 s24, 0")
    k.e(f"s_cbranch_scc1 {k.L('clm_skip')}")
    claim_issue(k)
    k.stamp(2)
    pi = 14
    for s in range(nst):
        if s == nst - 1:
            k.e("s_cmp_lg_u32 s24, 0")
            k.e(f"s_cbranch_scc1 {k.L('clm_nov')}")
            claim_verdict(k, vt0, vt1, CLM)
            k.label("clm_nov")
        last = max(i for i, t in enumerate(nout) if t <= s)
        k.e(f"s_waitcnt vmcnt({len(nout) - 1 - last})")
        k.e("s_barrier")
        if s != 10: k.tick()
        if s + D < nst:
            issue(s + D)
            if s == 0:
                resid()
                nout.extend([nst - 1] * 2)
            if s + D == nst - 1:
                k.stamp(3)
        if s == 1 and mode == "wo" and NCP >= 2:
            next_code_prefetch(k, 40, "k4_gu_kernel", "k4_gu_kernel")
        if s >= 1:
            for x in pf[pi:pi+6]: k.e(x)
            pi += 6
    k.stamp(4)
    claim_read(k, vt0, CLM)
    k.e("s_waitcnt lgkmcnt(0)")
    claim_check(k, vt0)
    k.tick_flush(int(name[1]))
    k.e(f"s_branch {k.L('fin')}")
    k.label("cons")
    k.e("s_lshl_b32 s27, s33, 10")
    k.e(f"v_add_u32 v{vAb}, s27, v{vL16}")
    k.e("s_lshl_b32 s27, s34, 10")
    k.e("s_add_u32 s27, s27, 8192")
    k.e(f"v_add_u32 v{vWb}, s27, v{vL16}")
    for z in range(acc, acc + 16):
        k.e(f"v_mov_b32 v{z}, 0")
    k.e("s_mov_b32 s38, 0")
    k.e("s_mov_b32 s41, 0xffff0000")
    k.e(f"v_and_b32 v{vt0}, 31, v0")
    k.e(f"v_lshrrev_b32 v{vt1}, 5, v0")
    if mode == "wo":
        hf_offset()
        k.e("s_add_u32 s36, s35, 4096")
        k.e("s_lshl_b32 s37, s25, 1")
        k.e("s_add_u32 s37, s37, s33")
        k.e("s_lshl_b32 s37, s37, 12")
        k.e("s_lshl_b32 s28, s26, 9")
        k.e("s_add_u32 s37, s37, s28")
        k.e("s_lshl_b32 s28, s34, 3")
        k.e("s_add_u32 s37, s37, s28")
        k.e(f"s_add_u32 s37, s37, {hex(WS_ST)}")
        k.e(f"v_and_b32 v{vt2}, 7, v0")
        k.e("s_lshl_b32 s27, s34, 2")
        k.e(f"v_xor_b32 v{vt2}, s27, v{vt2}")
        k.e(f"v_lshlrev_b32 v{vt2}, 4, v{vt2}")
        k.e(f"v_lshl_add_u32 v{vt2}, v{vt0}, 7, v{vt2}")
        k.e(f"v_lshl_add_u32 v{vt2}, v{vt1}, 3, v{vt2}")
        k.e("s_lshl_b32 s27, s33, 12")
        k.e(f"s_add_u32 s27, s27, {RES}")
        k.e(f"v_add_u32 v{vRa}, s27, v{vt2}")
        for j in range(1, 4):
            k.e(f"v_xor_b32 v{vRa+j}, {j*16}, v{vRa}")
        k.e(f"v_lshlrev_b32 v{vt0}, 4, v{vt0}")
        k.e(f"v_lshl_add_u32 v{vt0}, v{vt1}, 2, v{vt0}")
        k.e(f"v_mov_b32 v{vS}, 0")
        k.e(f"v_mov_b32 v{vQ}, 0")
        k.e("s_mov_b32 s42, 0x3f803f80")
        k.e("s_waitcnt lgkmcnt(0)")
        k.stamp(1)
        srd(k, 20, 8, WS_END)
    else:
        k.e(f"v_lshlrev_b32 v{vO}, 10, v{vt0}")
        k.e(f"v_lshl_add_u32 v{vO}, v{vt1}, 4, v{vO}")
        k.e("s_lshl_b32 s29, s25, 16")
        k.e("s_lshl_b32 s30, s33, 15")
        k.e("s_add_u32 s29, s29, s30")
        k.e("s_lshl_b32 s30, s26, 7")
        k.e("s_add_u32 s29, s29, s30")
        k.e("s_lshl_b32 s30, s34, 6")
        k.e("s_add_u32 s29, s29, s30")
        k.e("s_and_b32 s27, s24, 3")
        k.e("s_lshl_b32 s27, s27, 11")
        k.e(f"s_add_u32 s27, s27, {RES}")
        k.e(f"v_add_u32 v{vRa}, s27, v{vL16}")
        k.e("s_waitcnt lgkmcnt(0)")
        k.stamp(1)
        srd(k, 12, 4, 2048 * 1024)
    hint_load(k, "c")
    hint_check(k, "c")
    def pre_stage():
        return [f"v_add_u32 v{vA}, s38, v{vAb}", f"v_add_u32 v{vW}, s38, v{vWb}"] + adv(k, 38, SLOT, NSLOT*SLOT)
    def mf(i):
        S = sets[i]
        return [f"v_mfma_f32_32x32x16_bf16 {vr(acc,16)}, {vr(S['W'][j],4)}, {vr(S['A'][j],4)}, {vr(acc,16)}" for j in range(4)]
    def reads(i):
        S = sets[i]
        rd = []
        for j in range(4):
            rd.append(f"ds_read_b128 {vr(S['A'][j],4)}, v{vA} offset:{j*2048}")
            rd.append(f"ds_read_b128 {vr(S['W'][j],4)}, v{vW} offset:{j*2048}")
        return rd
    assert D <= NSLOT - 2
    consumer_loop_s(k, nst, pre_stage, reads, mf)
    if mode == "wo":
        for j in range(4):
            k.e(f"ds_read_b64 {vr(R+2*j,2)}, v{vRa+j}")
        nr = 4
    else:
        k.e(f"ds_read_b128 {vr(R,4)}, v{vRa}")
        k.e(f"ds_read_b128 {vr(R+4,4)}, v{vRa} offset:1024")
        nr = 2
    claim_read(k, vt2, CLM)
    nr += 1
    m = mf(1)
    for j in range(4):
        k.e(f"s_waitcnt lgkmcnt({6-2*j+nr})")
        k.e(m[j])
    k.e("s_waitcnt lgkmcnt(0)")
    claim_check(k, vt2)
    for i in range(8):
        k.e(f"v_lshlrev_b32 v{T+2*i}, 16, v{R+i}")
        k.e(f"v_and_b32 v{T+2*i+1}, s41, v{R+i}")
    for i in range(8):
        k.e(f"v_cvt_pk_bf16_f32 v{R+i}, v{acc+2*i}, v{acc+2*i+1}")
    for i in range(8):
        k.e(f"v_lshlrev_b32 v{acc+2*i}, 16, v{R+i}")
        k.e(f"v_and_b32 v{acc+2*i+1}, s41, v{R+i}")
    for i in range(0, 16, 2):
        k.e(f"v_pk_add_f32 {vr(acc+i,2)}, {vr(acc+i,2)}, {vr(T+i,2)}")
    for i in range(8):
        k.e(f"v_cvt_pk_bf16_f32 v{R+i}, v{acc+2*i}, v{acc+2*i+1}")
    if mode == "wo":
        k.e(f"buffer_store_dwordx4 {vr(R,4)}, v{vL16}, s[20:23], s35 offen")
        k.e(f"buffer_store_dwordx4 {vr(R+4,4)}, v{vL16}, s[20:23], s36 offen")
        for i in range(8):
            k.e(f"v_dot2c_f32_bf16 v{vS}, s42, v{R+i}")
            k.e(f"v_dot2c_f32_bf16 v{vQ}, v{R+i}, v{R+i}")
        k.e("s_nop 2")
        k.e(f"v_permlane32_swap_b32 v{vS}, v{vQ}")
        k.e(f"v_add_f32 v{vS}, v{vS}, v{vQ}")
        k.e(f"buffer_store_dword v{vS}, v{vt0}, s[20:23], s37 offen")
    else:
        k.e(f"v_permlane32_swap_b32 v{R}, v{R+2}")
        k.e(f"v_permlane32_swap_b32 v{R+1}, v{R+3}")
        k.e(f"buffer_store_dwordx4 {vr(R,4)}, v{vO}, s[12:15], s29 offen")
        k.e(f"v_permlane32_swap_b32 v{R+4}, v{R+6}")
        k.e(f"v_permlane32_swap_b32 v{R+5}, v{R+7}")
        k.e(f"buffer_store_dwordx4 {vr(R+4,4)}, v{vO}, s[12:15], s29 offen offset:32")
    k.label("fin")
    k.stamp_flush(int(name[1]))
    k.label("end")
    k.e("s_endpgm")
    claim_redo(k)
    return k

def gen_k4():
    k = K("k4_gu_kernel")
    NSLOT = 6
    D = 2
    SLOT = 20480
    MISC = NSLOT * SLOT
    MISC2 = MISC + 2048
    k.lds = MISC2 + 2048
    CLM = MISC2 + 1024
    vl = k.v(); vt0 = k.v(); vt1 = k.v(); vL16 = k.v(); vXb = k.v(); vWb = k.v(); vX = k.v(); vW = k.v()
    CC = [k.v(4), k.v(4)]
    T = k.v(8)
    BP = [k.v(4), k.v(4)]; AP = [k.v(4) for _ in range(3)]
    acc = [[k.v(16) for _ in range(3)] for _ in range(2)]
    sets = [dict(X=[[k.v(4) for _ in range(2)] for _ in range(2)], W=[[k.v(4) for _ in range(3)] for _ in range(2)]) for _ in range(2)]
    k.e("s_cmp_ge_u32 s2, 256")
    k.e(f"s_cbranch_scc1 {k.L('end')}")
    k.stamp(0)
    k.tick()
    k.e("s_load_dwordx2 s[8:9], s[0:1], 72")
    claim_begin(k)
    wave_setup(k, vt0)
    k.label("restart")
    k.e("s_and_b32 s26, s2, 1")
    k.e("s_lshl_b32 s26, s26, 3")
    k.e("s_lshr_b32 s28, s2, 5")
    k.e("s_add_u32 s26, s26, s28")
    k.e("s_cmp_ge_u32 s26, 15")
    k.e(f"s_cbranch_scc1 {k.L('empty')}")
    k.e("s_and_b32 s25, s2, 6")
    k.e("s_lshl_b32 s25, s25, 1")
    k.e("s_bfe_u32 s27, s2, 0x20003")
    k.e("s_add_u32 s25, s25, s27")
    k.e(f"v_lshlrev_b32 v{vL16}, 4, v0")
    k.e("s_cmp_ge_u32 s24, 4")
    k.e(f"s_cbranch_scc1 {k.L('cons')}")
    k.e("s_lshl_b32 s27, s25, 17")
    k.e(f"s_add_u32 s27, s27, {hex(WS_H)}")
    k.e(f"s_mul_i32 s31, s26, {32*6144}")
    k.e(f"s_add_u32 s31, s31, {hex(WS_WGU)}")
    k.e("s_lshl_b32 s29, s24, 11")
    k.e("s_mul_i32 s32, s24, 3072")
    k.e("s_add_u32 s30, s27, s29")
    k.e("s_add_u32 s31, s31, s32")
    k.e("s_add_u32 s32, s32, 8192")
    k.e("s_bitcmp1_b32 s2, 0")
    k.e("s_cselect_b32 s33, 0x10000, 0")
    k.e(f"s_cselect_b32 s34, {8*12288}, 0")
    k.e("s_cselect_b32 s36, 0, 0x10000")
    k.e("s_add_u32 s33, s33, s30")
    k.e("s_add_u32 s34, s34, s31")
    k.e("s_min_u32 s28, s28, 6")
    k.e("s_lshl_b32 s28, s28, 2")
    k.e("s_add_u32 s28, s28, s24")
    k.e(f"s_mul_i32 s28, s28, {19*128}")
    k.e("s_add_u32 s27, s27, s28")
    k.e("s_add_u32 s27, s27, s36")
    k.e(f"s_mov_b32 s22, {hex(WS_END)}")
    k.e("s_mov_b32 s23, 0x00020000")
    k.e("s_mov_b32 m0, s29")
    k.e("s_waitcnt lgkmcnt(0)")
    k.stamp(1)
    hint_load(k, "l")
    k.e("s_mov_b64 s[20:21], s[8:9]")
    nout = []
    def issue(q):
        if q:
            k.e(f"s_add_u32 m0, s29, {(q % NSLOT)*SLOT}")
            k.e("s_add_u32 s33, s33, 8192")
            if q == 8:
                k.e("s_bitcmp1_b32 s2, 0")
                k.e("s_cselect_b32 s33, s30, s33")
        for g in range(2):
            k.e(f"buffer_load_dwordx4 v{vL16}, s[20:23], s33 offen offset:{g*1024} lds")
        k.e(f"s_add_u32 m0, s32, {(q % NSLOT)*SLOT}")
        if q:
            k.e("s_add_u32 s34, s34, 12288")
            if q == 8:
                k.e("s_bitcmp1_b32 s2, 0")
                k.e("s_cselect_b32 s34, s31, s34")
        else:
            k.e("s_nop 0")
        for g in range(3):
            k.e(f"buffer_load_dwordx4 v{vL16}, s[20:23], s34 offen offset:{g*1024} lds")
        nout.extend([q] * 5)
    def wait_for(q):
        last = max(i for i, t in enumerate(nout) if t <= q)
        k.e(f"s_waitcnt vmcnt({len(nout) - 1 - last})")
        k.tick()
    pf = [f"s_load_dword s48, s[46:47], {i*128}" for i in range(19)] if ACTPF else []
    ST = acc[0][0]; CS = acc[0][1]
    def st_issue():
        k.e("s_lshl_b32 s27, s25, 2")
        k.e("s_add_u32 s27, s27, s24")
        k.e("s_lshl_b32 s27, s27, 12")
        k.e(f"s_add_u32 s27, s27, {hex(WS_ST)}")
        for q in range(4):
            k.e(f"buffer_load_dwordx4 {vr(ST+4*q,4)}, v{vL16}, s[20:23], s27 offen offset:{q*1024}")
        k.e("s_mul_i32 s27, s26, 3")
        k.e("s_min_u32 s28, s24, 2")
        k.e("s_add_u32 s27, s27, s28")
        k.e("s_lshl_b32 s27, s27, 12")
        k.e(f"s_add_u32 s27, s27, {hex(WS_CS)}")
        for q in range(4):
            k.e(f"buffer_load_dwordx4 {vr(CS+4*q,4)}, v{vL16}, s[20:23], s27 offen offset:{q*1024}")
    def st_proc():
        s = ST; t2 = T; t3 = T + 1; C = CC[0]; RS = T + 2
        for i in range(2, 16, 2):
            k.e(f"v_add_f32 v{s}, v{s}, v{s+i}")
            k.e(f"v_add_f32 v{s+1}, v{s+1}, v{s+i+1}")
        k.e(f"v_mov_b32 v{s+2}, v{s}")
        k.e(f"v_mov_b32 v{s+3}, v{s+1}")
        k.e("s_nop 1")
        k.e(f"v_permlane32_swap_b32 v{s}, v{s+2}")
        k.e(f"v_permlane32_swap_b32 v{s+1}, v{s+3}")
        k.e(f"v_add_f32 v{s}, v{s}, v{s+2}")
        k.e(f"v_add_f32 v{s+1}, v{s+1}, v{s+3}")
        ln_finish(k, s, s + 1, C, RS, t2, t3)
        A_ = -2.0 * 1.4426950408889634 * 0.7978845608028654
        k.e(f"v_mul_f32 v{C+3}, v{t2}, v{t2}")
        k.e(f"v_mul_f32 v{C+1}, {f32(A_)}, v{RS}")
        k.e(f"v_mul_f32 v{C+2}, v{RS}, v{RS}")
        k.e(f"v_mul_f32 v{C+2}, v{C+2}, v{C+1}")
        k.e(f"v_mul_f32 v{C+2}, {f32(0.044715)}, v{C+2}")
        k.e(f"v_and_b32 v{vt0}, 0x1ff, v{vL16}")
        k.e("s_lshl_b32 s27, s24, 9")
        k.e(f"s_add_u32 s27, s27, {MISC}")
        k.e(f"v_add_u32 v{vt0}, s27, v{vt0}")
        k.e(f"ds_write_b128 v{vt0}, {vr(C,4)}")
        for u in range(2):
            c = CS + 8 * u
            for i in range(1, 8):
                k.e(f"v_add_f32 v{c}, v{c}, v{c+i}")
        k.e("s_nop 1")
        k.e(f"v_permlane32_swap_b32 v{CS}, v{CS+8}")
        k.e(f"v_add_f32 v{CS}, v{CS}, v{CS+8}")
        split2(k, CS, CS + 1, t2)
        k.e("s_lshl_b32 s27, s28, 8")
        k.e(f"s_add_u32 s27, s27, {MISC2}")
        k.e(f"v_lshl_add_u32 v{vt0}, v0, 2, s27")
        k.e(f"ds_write_b32 v{vt0}, v{CS+1}")
        k.e("s_waitcnt lgkmcnt(0)")
    issue(0)
    hint_check(k, "l")
    issue(1)
    k.e("s_add_u32 s46, s8, s27")
    k.e("s_addc_u32 s47, s9, 0")
    for x in pf[:14]: k.e(x)
    issue(2)
    k.e("s_cmp_lg_u32 s24, 0")
    k.e(f"s_cbranch_scc1 {k.L('clm_skip')}")
    k.label("clm_iss")
    claim_issue(k)
    k.e("s_cmp_ge_u32 s26, 15")
    k.e(f"s_cbranch_scc1 {k.L('clm_ver')}")
    k.stamp(2)
    wait_for(0); k.e("s_barrier"); k.tick()
    issue(3)
    wait_for(1); k.e("s_barrier"); k.tick()
    issue(4); issue(5)
    for x in pf[14:]: k.e(x)
    for s in range(1, 8):
        if s == 7:
            k.e("s_cmp_lg_u32 s24, 0")
            k.e(f"s_cbranch_scc1 {k.L('clm_nov')}")
            k.label("clm_ver")
            claim_verdict(k, vt0, vt1, CLM)
            k.label("clm_nov")
        wait_for(2*s + 1); k.e("s_barrier"); k.tick()
        if 2*s + 4 < 16:
            issue(2*s + 4); issue(2*s + 5)
        if s == 2 and NCP >= 2:
            next_code_prefetch(k, 40, "k5_down_kernel", "k5_down_kernel")
        if s == 6:
            st_proc()
        if s == 4:
            st_issue()
            nout.extend([13] * 8)
        if s == 5:
            k.stamp(3)
    k.stamp(4)
    claim_read(k, vt0, CLM)
    k.e("s_waitcnt lgkmcnt(0)")
    claim_check(k, vt0)
    k.tick_flush(4)
    k.e(f"s_branch {k.L('fin')}")
    k.label("cons")
    k.e("s_and_b32 s33, s24, 1")
    k.e("s_bfe_u32 s34, s24, 0x10001")
    k.e("s_lshl_b32 s27, s33, 11")
    k.e(f"v_add_u32 v{vXb}, s27, v{vL16}")
    k.e("s_mul_i32 s27, s34, 3072")
    k.e("s_add_u32 s27, s27, 8192")
    k.e(f"v_add_u32 v{vWb}, s27, v{vL16}")
    k.e("s_mov_b32 s38, 0")
    for r in BP + AP:
        for i in (0, 1, 2, 3):
            k.e(f"v_mov_b32 v{r+i}, 0")
    k.e("s_nop 1")
    for b in range(2):
        for u in range(3):
            mfma32(k, acc[b][u], BP[0], BP[0], "0")
    k.e("s_mul_i32 s42, s26, 6")
    k.e("s_mul_i32 s43, s34, 3")
    k.e("s_add_u32 s42, s42, s43")
    k.e("s_lshl_b32 s27, s25, 1")
    k.e("s_add_u32 s27, s27, s33")
    k.e("s_mul_i32 s27, s27, 86")
    k.e("s_add_u32 s27, s27, s42")
    k.e("s_lshl_b32 s27, s27, 11")
    k.e(f"s_add_u32 s45, s27, {hex(WS_A)}")
    k.e("v_cmp_gt_u32 vcc, 32, v0")
    k.e(f"v_and_b32 v{vt0}, 0x1ff, v{vL16}")
    k.e("s_lshl_b32 s27, s33, 10")
    k.e(f"s_add_u32 s27, s27, {MISC}")
    k.e(f"v_add_u32 v{vt0}, s27, v{vt0}")
    k.e(f"v_and_b32 v{vt1}, 31, v0")
    k.e("s_mul_i32 s27, s34, 384")
    k.e(f"s_add_u32 s27, s27, {MISC2}")
    k.e(f"v_lshl_add_u32 v{vt1}, v{vt1}, 2, s27")
    k.e("s_waitcnt lgkmcnt(0)")
    k.stamp(1)
    srd(k, 20, 8, WS_END)
    hint_load(k, "c")
    hint_check(k, "c")
    def pre_stage(h):
        return [f"v_add_u32 v{vX}, s38, v{vXb}", f"v_add_u32 v{vW}, s38, v{vWb}"] + adv(k, 38, SLOT, NSLOT*SLOT)
    def mf(i):
        S = sets[i]
        r = []
        for kk in range(2):
            for u in range(3):
                for b in range(2):
                    r.append(f"v_mfma_f32_32x32x16_bf16 {vr(acc[b][u],16)}, {vr(S['W'][kk][u],4)}, {vr(S['X'][kk][b],4)}, {vr(acc[b][u],16)}")
        return r
    def reads(i):
        S = sets[i]
        rd = []
        for kk in range(2):
            for b in range(2):
                rd.append(f"ds_read_b128 {vr(S['X'][kk][b],4)}, v{vX} offset:{kk*4096+b*1024}")
            for u in range(3):
                rd.append(f"ds_read_b128 {vr(S['W'][kk][u],4)}, v{vW} offset:{kk*6144+u*1024}")
        return rd
    consumer_loop_m(k, 16, pre_stage, reads, mf, 2, barA=False)
    for b in range(2):
        k.e(f"ds_read_b128 {vr(CC[b],4)}, v{vt0} offset:{b*512}")
    for u in range(3):
        k.e(f"ds_read_b32 v{AP[u]}, v{vt1} offset:{u*128}")
    claim_read(k, vX, CLM)
    m = mf(1)
    for x in m[:6]: k.e(x)
    k.e("s_waitcnt lgkmcnt(0)")
    claim_check(k, vX)
    for b in range(2):
        k.e(f"v_cndmask_b32 v{BP[b]}, 0, v{CC[b]}, vcc")
    j = 6
    for u in range(3):
        for b in range(2):
            k.e(m[j]); j += 1
            mfma32(k, acc[b][u], AP[u], BP[b])
    for u in range(3):
        k.e("s_cmp_lt_u32 s42, 86")
        k.e(f"s_cselect_b32 s28, s45, {hex(OOB)}")
        k.e("s_add_u32 s42, s42, 1")
        k.e("s_add_u32 s45, s45, 2048")
        for b in range(2):
            a = acc[b][u]; C = CC[b]
            for i in range(0, 8, 2):
                k.e(f"v_pk_mul_f32 {vr(T+i,2)}, {vr(a+i,2)}, {vr(a+i,2)}")
            for i in range(0, 8, 2):
                k.e(f"v_pk_fma_f32 {vr(T+i,2)}, {vr(T+i,2)}, {vr(C+2,2)}, {vr(C,2)} op_sel:[0,0,1] op_sel_hi:[1,0,1]")
            for i in range(0, 8, 2):
                k.e(f"v_pk_mul_f32 {vr(T+i,2)}, {vr(T+i,2)}, {vr(a+i,2)}")
            for i in range(8):
                k.e(f"v_exp_f32 v{T+i}, v{T+i}")
            for i in range(0, 8, 2):
                k.e(f"v_pk_mul_f32 {vr(a+i,2)}, {vr(a+i,2)}, {vr(a+8+i,2)}")
            for i in range(0, 8, 2):
                k.e(f"v_pk_fma_f32 {vr(T+i,2)}, {vr(T+i,2)}, {vr(C+2,2)}, {vr(C+2,2)} op_sel:[0,1,1]")
            for i in range(8):
                k.e(f"v_rcp_f32 v{T+i}, v{T+i}")
            for i in range(0, 8, 2):
                k.e(f"v_pk_mul_f32 {vr(a+i,2)}, {vr(a+i,2)}, {vr(T+i,2)}")
            for i in range(4):
                k.e(f"v_cvt_pk_bf16_f32 v{a+i}, v{a+2*i}, v{a+2*i+1}")
            k.e(f"buffer_store_dwordx4 {vr(a,4)}, v{vL16}, s[20:23], s28 offen offset:{b*1024}")
    k.label("fin")
    k.stamp_flush(4)
    k.label("end")
    k.e("s_endpgm")
    k.label("empty")
    k.e("s_waitcnt lgkmcnt(0)")
    hint_load(k, "e")
    hint_check(k, "e")
    k.e("s_cmp_eq_u32 s24, 0")
    k.e(f"s_cbranch_scc1 {k.L('clm_iss')}")
    k.e(f"s_branch {k.L('clm_nov')}")
    claim_redo(k)
    return k

def build():
    ks = [(gen_k1(), 768), (gen_k2(), 512),
          (gen_gemm64("k3_wo_kernel", 32, WS_O, WS_WO, "wo"), 512),
          (gen_k4(), 512),
          (gen_gemm64("k5_down_kernel", 86, WS_A, WS_WD, "down"), 512)]
    ref = open(f"cdna_kernels/{NAME}.s.ref").read().splitlines()
    head = [l for l in ref if l.startswith(";") and "@launch" not in l and "Override" not in l and "grid=ceil" not in l]
    out = "\n".join(head) + "\n"
    for k, blk in ks:
        out += f"; @launch kernel={k.name} grid=(256,1,1) block=({blk},1,1) lds={k.lds}\n"
    out += '.amdgcn_target "amdgcn-amd-amdhsa--gfx950"\n'
    for k, blk in ks:
        out += k.text()
    return out

if __name__ == "__main__":
    if len(sys.argv) > 2 and sys.argv[2] == "stamp":
        STAMP = True
    out = build()
    path = sys.argv[1] if len(sys.argv) > 1 else f"cdna_kernels/{NAME}.s"
    open(path, "w").write(out)
    bad = hazard.check(out)
    print("hazards:", len(bad))
```

```python
import sys, struct
sys.path.insert(0, "gen")
import hazard

NAME = "sequential_preLN__softmax_full_mha__geglu_ffn__prompt"

WS_Q   = 0x000000
WS_KV  = 0x200000
WS_O   = 0x600000
WS_H   = 0x800000
WS_ST  = 0xA00000
WS_CS  = 0xA40000
WS_MAP = 0xAF0000
WS_WO  = 0xB00000
WS_WD  = 0xC00000
WS_WGU = 0xE00000
WS_A   = 0x1200000
WS_END = 0x1800000
OOB    = 0x7FFF0000
WS_DBG = 0x2000000
STAMP = False
import os
NODMA = int(os.environ.get('NODMA', '0'))
TICK = int(os.environ.get('TICK', '0'))
DIAG = os.environ.get('DIAG', '')

def f32(x):
    return "0x%08x" % struct.unpack("<I", struct.pack("<f", x))[0]

class K:
    def __init__(self, name):
        self.name = name
        self.lines = []
        self.nv = 0
        self.maxs = 0
    def e(self, s):
        if NODMA and (s.endswith(" lds") or s.startswith("s_load_dword s48")) and not self.name.startswith("k2"):
            s = "s_nop 0"
        self.lines.append("    " + s)
    def c(self, s):
        self.lines.append("    ; " + s)
    def label(self, l):
        self.lines.append(f"{self.name}_{l}:")
    def L(self, l):
        return f"{self.name}_{l}"
    def v(self, n=1, align=None):
        if align is None:
            align = 1 if n == 1 else (2 if n == 2 else 4)
        self.nv = (self.nv + align - 1) // align * align
        r = self.nv
        self.nv += n
        return r
    def stamp(self, idx):
        if DIAG and idx == 0:
            self.e("s_memrealtime s[64:65]")
            self.e("s_memtime s[66:67]")
        if not STAMP:
            return
        self.e(f"s_memtime s[{64+2*idx}:{65+2*idx}]")
        if idx in (3, 4):
            self.e(f"s_memrealtime s[{80+2*idx}:{81+2*idx}]")
        self.nstamp = max(getattr(self, "nstamp", 0), idx + 1)
    def tick(self):
        if not TICK:
            return
        n = getattr(self, "ntick", 0)
        assert n < 22
        self.e(f"s_memtime s[{52+2*n}:{53+2*n}]")
        self.ntick = n + 1
    def tick_flush(self, kidx):
        if not TICK:
            return
        n = self.ntick
        self.e("s_waitcnt vmcnt(0) lgkmcnt(0)")
        self.e(f"s_add_u32 s44, s8, {hex(WS_DBG + kidx*0x40000)}")
        self.e("s_addc_u32 s45, s9, 0")
        self.e("s_mov_b32 s46, 0x40000")
        self.e("s_mov_b32 s47, 0x00020000")
        self.e("s_lshl_b32 s48, s2, 3")
        self.e("s_add_u32 s48, s48, s24")
        self.e("s_lshl_b32 s48, s48, 7")
        self.e("v_mov_b32 v2, 0")
        for i in range(n):
            self.e(f"v_mov_b32 v0, s{52+2*i}")
            self.e(f"buffer_store_dword v0, v2, s[44:47], s48 offen offset:{i*4}")
        self.e("s_endpgm")
    def stamp_flush(self, kidx):
        if DIAG:
            self.e("s_waitcnt vmcnt(0) lgkmcnt(0)")
            self.e("s_memrealtime s[68:69]")
            self.e("s_memtime s[70:71]")
            self.e(f"s_add_u32 s56, s8, {hex(WS_DBG + kidx*0x40000)}")
            self.e("s_addc_u32 s57, s9, 0")
            self.e("s_mov_b32 s58, 0x40000")
            self.e("s_mov_b32 s59, 0x00020000")
            self.e("s_lshl_b32 s60, s3, 3")
            self.e("s_add_u32 s60, s60, s24")
            self.e("s_lshl_b32 s60, s60, 4")
            self.e("s_waitcnt lgkmcnt(0)")
            self.e("s_sub_u32 s70, s70, s66")
            self.e("v_mov_b32 v4, 0")
            self.e("v_mov_b32 v0, s64")
            self.e("v_mov_b32 v1, s68")
            self.e("v_mov_b32 v2, s70")
            self.e("s_sub_u32 s70, s68, s64")
            self.e("v_mov_b32 v3, s70")
            self.e("buffer_store_dwordx4 v[0:3], v4, s[56:59], s60 offen")
        if not STAMP:
            return
        n = self.nstamp
        self.e("s_waitcnt vmcnt(0) lgkmcnt(0)")
        self.stamp(n)
        self.e("s_memrealtime s[62:63]")
        n += 1
        self.e("s_waitcnt lgkmcnt(0)")
        self.e(f"s_add_u32 s56, s8, {hex(WS_DBG + kidx*0x40000)}")
        self.e("s_addc_u32 s57, s9, 0")
        self.e("s_mov_b32 s58, 0x40000")
        self.e("s_mov_b32 s59, 0x00020000")
        self.e("s_lshl_b32 s60, s2, 3")
        self.e("s_add_u32 s60, s60, s24")
        self.e("s_lshl_b32 s60, s60, 7")
        self.e("v_mov_b32 v2, 0")
        for i in range(n):
            self.e(f"v_mov_b32 v0, s{64+2*i}")
            self.e(f"v_mov_b32 v1, s{80+2*i if i in (3, 4) else 62}")
            self.e(f"buffer_store_dwordx2 v[0:1], v2, s[56:59], s60 offen offset:{i*8}")
    def text(self, nsgpr=102):
        nv = max(self.nv, 8)
        acc = (nv + 3) // 4 * 4
        head = f""".text
.globl {self.name}
.p2align 8
.type {self.name},@function
{self.name}:
"""
        tail = f"""
.section .rodata,"a"
.p2align 6
.amdhsa_kernel {self.name}
  .amdhsa_next_free_vgpr {nv}
  .amdhsa_next_free_sgpr {nsgpr}
  .amdhsa_accum_offset {acc}
  .amdhsa_group_segment_fixed_size 0
  .amdhsa_kernarg_size 80
  .amdhsa_user_sgpr_count 2
  .amdhsa_user_sgpr_kernarg_segment_ptr 1
  .amdhsa_system_sgpr_workgroup_id_x 1
.end_amdhsa_kernel
"""
        return head + "\n".join(self.lines) + f"\n{self.name}_codeend:" + tail

def vr(b, n):
    return f"v[{b}:{b+n-1}]" if n > 1 else f"v{b}"
def sr(b, n):
    return f"s[{b}:{b+n-1}]" if n > 1 else f"s{b}"

def srd(k, d, base, nbytes):
    k.e(f"s_mov_b32 s{d}, s{base}")
    k.e(f"s_mov_b32 s{d+1}, s{base+1}")
    k.e(f"s_mov_b32 s{d+2}, {hex(nbytes)}")
    k.e(f"s_mov_b32 s{d+3}, 0x00020000")

def mfma32(k, d, a, b, c=None):
    cs = vr(d, 16) if c is None else (c if isinstance(c, str) else vr(c, 16))
    k.e(f"v_mfma_f32_32x32x16_bf16 {vr(d,16)}, {vr(a,4)}, {vr(b,4)}, {cs}")
def mfma16(k, d, a, b):
    k.e(f"v_mfma_f32_16x16x32_bf16 {vr(d,4)}, {vr(a,4)}, {vr(b,4)}, {vr(d,4)}")

def interleave(k, mains, fillers, per):
    fi = 0
    for m in mains:
        k.e(m)
        for _ in range(per):
            if fi < len(fillers):
                k.e(fillers[fi]); fi += 1
    while fi < len(fillers):
        k.e(fillers[fi]); fi += 1

def tile_map_32x8(k, s_tm, s_tn, t0, t1):
    k.e(f"s_and_b32 s{s_tm}, s2, 6")
    k.e(f"s_lshl_b32 s{s_tm}, s{s_tm}, 2")
    k.e(f"s_bfe_u32 s{t0}, s2, 0x30003")
    k.e(f"s_add_u32 s{s_tm}, s{s_tm}, s{t0}")
    k.e(f"s_and_b32 s{s_tn}, s2, 1")
    k.e(f"s_lshl_b32 s{s_tn}, s{s_tn}, 2")
    k.e(f"s_lshr_b32 s{t1}, s2, 6")
    k.e(f"s_add_u32 s{s_tn}, s{s_tn}, s{t1}")

def ln_finish(k, vS, vQ, vNegM, vRstd, t0, t1):
    k.e(f"v_mul_f32 v{vS}, {f32(1.0/512)}, v{vS}")
    k.e(f"v_mul_f32 v{vQ}, {f32(1.0/512)}, v{vQ}")
    k.e(f"v_fma_f32 v{vQ}, -v{vS}, v{vS}, v{vQ}")
    k.e(f"v_max_f32 v{vQ}, 0, v{vQ}")
    k.e(f"v_cvt_pk_bf16_f32 v{vNegM}, -v{vS}, -v{vS}")
    k.e(f"v_cvt_pk_bf16_f32 v{t0}, v{vQ}, v{vQ}")
    k.e(f"v_lshlrev_b32 v{t0}, 16, v{t0}")
    k.e(f"v_add_f32 v{t0}, {f32(1e-5)}, v{t0}")
    k.e(f"v_cvt_pk_bf16_f32 v{t0}, v{t0}, v{t0}")
    k.e(f"v_lshlrev_b32 v{t0}, 16, v{t0}")
    k.e(f"v_sqrt_f32 v{t0}, v{t0}")
    k.e("s_nop 0")
    k.e(f"v_cvt_pk_bf16_f32 v{t0}, v{t0}, v{t0}")
    k.e(f"v_lshlrev_b32 v{t0}, 16, v{t0}")
    k.e(f"v_rcp_f32 v{vRstd}, v{t0}")
    k.e("s_nop 0")

def split2(k, vcs, vdst, t0):
    k.e(f"v_cvt_pk_bf16_f32 v{t0}, v{vcs}, v{vcs}")
    k.e(f"v_lshlrev_b32 v{t0}, 16, v{t0}")
    k.e(f"v_sub_f32 v{t0}, v{vcs}, v{t0}")
    k.e(f"v_cvt_pk_bf16_f32 v{vdst}, v{vcs}, v{t0}")

import os
ROT = int(os.environ.get("ROT", "0"))
PREFETCH = int(os.environ.get("PREFETCH", "1"))
PREP_ST = os.environ.get("PREP_ST", "sc1")
ZROWS = int(os.environ.get("ZROWS", "1"))
G64_NSLOT = int(os.environ.get("G64_NSLOT", "6"))
G64_D = int(os.environ.get("G64_D", "4"))
K1MAP = int(os.environ.get("K1MAP", "0"))
ROWMAP = int(os.environ.get("ROWMAP", "1"))
WDPF = int(os.environ.get("WDPF", "2"))
SPF = int(os.environ.get("SPF", "128"))
WNT = os.environ.get("WNT", "")
K1_D = int(os.environ.get("K1_D", "4"))
K1_SPF = int(os.environ.get("K1_SPF", "0"))
K1_PER = int(os.environ.get("K1_PER", "3"))
K1_CODEPF = int(os.environ.get("K1_CODEPF", "44"))
ACTPF = int(os.environ.get("ACTPF", "0"))
K1_NOSTAT = int(os.environ.get("K1_NOSTAT", "0"))
K1_PRIO = int(os.environ.get("K1_PRIO", "0"))
NCP = int(os.environ.get("NCP", "1"))
CLAIM = int(os.environ.get("CLAIM", "1"))
def wave_setup(k, vt):
    k.e(f"v_lshrrev_b32 v{vt}, 6, v0")
    k.e("v_and_b32 v0, 63, v0")
    k.e(f"v_readfirstlane_b32 s24, v{vt}")

def adv(k, sreg, step, wrap):
    return [f"s_add_u32 s{sreg}, s{sreg}, {step}", f"s_cmp_eq_u32 s{sreg}, {wrap}", f"s_cselect_b32 s{sreg}, 0, s{sreg}"]

def spread(k, mains, reads, others, rper, oper):
    ri = oi = 0
    for m in mains:
        k.e(m)
        n = 0
        while ri < len(reads) and n < rper:
            k.e(reads[ri]); ri += 1; n += 1
        if ri >= len(reads):
            while oi < len(others) and n < oper:
                k.e(others[oi]); oi += 1; n += 1
    for x in reads[ri:] + others[oi:]:
        k.e(x)

def consumer_loop_m(k, nhalf, pre_stage, reads, mfmas, per, cnt=40, barA=True):
    for x in pre_stage(0): k.e(x)
    k.e(f"s_mov_b32 s{cnt}, {nhalf//2}")
    k.stamp(2)
    k.e("s_barrier")
    k.stamp(3)
    for x in reads(0): k.e(x)
    for x in pre_stage(1): k.e(x)
    k.e("s_waitcnt lgkmcnt(0)")
    if not barA:
        k.e("s_barrier")
    k.e(f"s_branch {k.L('cin')}")
    m0, m1 = mfmas(0), mfmas(1)
    k.label("cloop")
    k.e("s_waitcnt lgkmcnt(0)")
    k.e(m1[-1])
    k.label("cin")
    if barA:
        k.e("s_barrier")
    spread(k, m0[:-1], reads(1), pre_stage(0) + [f"s_sub_u32 s{cnt}, s{cnt}, 1", f"s_cmp_eq_u32 s{cnt}, 0"], per, 5)
    k.e("s_waitcnt lgkmcnt(0)")
    k.e(m0[-1])
    k.e(f"s_cbranch_scc1 {k.L('cpost')}")
    k.e("s_barrier")
    spread(k, m1[:-1], reads(0), pre_stage(1), per, 5)
    k.e(f"s_branch {k.L('cloop')}")
    k.label("cpost")
    k.stamp(4)

def consumer_loop_s(k, nst, pre_stage, reads, mfmas, cnt=40):
    nr = len(reads(0))
    for x in pre_stage(): k.e(x)
    k.e(f"s_mov_b32 s{cnt}, {nst//2}")
    k.stamp(2)
    k.e("s_barrier")
    k.stamp(3)
    for x in reads(0): k.e(x)
    for x in pre_stage(): k.e(x)
    k.label("cloop")
    k.e("s_barrier")
    for x in reads(1): k.e(x)
    k.e(f"s_waitcnt lgkmcnt({nr})")
    interleave(k, mfmas(0), pre_stage() + [f"s_sub_u32 s{cnt}, s{cnt}, 1", f"s_cmp_eq_u32 s{cnt}, 0"], 3)
    k.e(f"s_cbranch_scc1 {k.L('cpost')}")
    k.e("s_barrier")
    for x in reads(0): k.e(x)
    k.e(f"s_waitcnt lgkmcnt({nr})")
    interleave(k, mfmas(1), pre_stage(), 3)
    k.e(f"s_branch {k.L('cloop')}")
    k.label("cpost")
    k.stamp(4)

def loader_loop(k, nst, D, n, issue, cnt=40, hooks=(), split_first=False):
    k.e(f"s_mov_b32 s{cnt}, 0")
    k.label("lloop")
    k.e(f"s_cmp_lt_u32 s{cnt}, {D}")
    k.e(f"s_cbranch_scc1 {k.L('lskip')}")
    if STAMP or split_first:
        k.e(f"s_cmp_eq_u32 s{cnt}, {D}")
        k.e(f"s_cbranch_scc0 {k.L('lst')}")
        k.stamp(2)
        if split_first:
            k.e(f"s_waitcnt vmcnt({n*(D-1) + n//2})")
            k.e("s_barrier")
        k.label("lst")
    k.e(f"s_waitcnt vmcnt({n*(D-1)})")
    k.e("s_barrier")
    k.label("lskip")
    issue()
    for hi, (at, fn) in enumerate(hooks):
        k.e(f"s_cmp_eq_u32 s{cnt}, {at}")
        k.e(f"s_cbranch_scc0 {k.L('lh%d' % hi)}")
        fn()
        k.label("lh%d" % hi)
    k.e(f"s_add_u32 s{cnt}, s{cnt}, 1")
    k.e(f"s_cmp_lt_u32 s{cnt}, {nst}")
    k.e(f"s_cbranch_scc1 {k.L('lloop')}")
    k.stamp(3)
    for i in range(D):
        k.e(f"s_waitcnt vmcnt({n*(D-1-i)})")
        k.e("s_barrier")
    k.stamp(4)

def pkmul_bcast(k, d, s):
    if s % 2 == 0:
        k.e(f"v_pk_mul_f32 {vr(d,2)}, {vr(d,2)}, {vr(s,2)} op_sel_hi:[1,0]")
    else:
        k.e(f"v_pk_mul_f32 {vr(d,2)}, {vr(d,2)}, {vr(s-1,2)} op_sel:[0,1]")

def code_prefetch(k, sp, swave, nlines):
    if not nlines:
        return
    k.e(f"s_getpc_b64 s[{sp}:{sp+1}]")
    k.e(f"s_and_b32 s{sp+2}, s24, 3")
    k.e(f"s_lshl_b32 s{sp+2}, s{sp+2}, 7")
    k.e(f"s_add_u32 s{sp}, s{sp}, s{sp+2}")
    k.e(f"s_addc_u32 s{sp+1}, s{sp+1}, 0")
    for i in range(0, nlines, 4):
        k.e(f"s_load_dword s{sp+2}, s[{sp}:{sp+1}], {i*128}")
    k.e("s_waitcnt lgkmcnt(0)")

def next_code_prefetch(k, sp, first, last, tag="ncp"):
    if not NCP:
        return
    k.e(f"s_lshr_b32 s{sp+2}, s2, 3")
    k.e(f"s_lshl_b32 s{sp+2}, s{sp+2}, 2")
    k.e(f"s_and_b32 s{sp+3}, s24, 3")
    k.e(f"s_add_u32 s{sp+2}, s{sp+2}, s{sp+3}")
    k.e(f"s_lshl_b32 s{sp+2}, s{sp+2}, 7")
    k.e(f"s_min_u32 s{sp+2}, s{sp+2}, {last}_codeend-{first}-4")
    k.e(f"s_getpc_b64 s[{sp}:{sp+1}]")
    k.label(tag)
    k.e(f"s_add_u32 s{sp+2}, s{sp+2}, {first}-{k.L(tag)}")
    k.e(f"s_add_u32 s{sp}, s{sp}, s{sp+2}")
    k.e(f"s_addc_u32 s{sp+1}, s{sp+1}, 0")
    k.e(f"s_load_dword s{sp+2}, s[{sp}:{sp+1}], 0")

def claim_begin(k):
    k.e("s_load_dwordx2 s[10:11], s[0:1], 64")
    k.e("s_mov_b32 s3, s2")
    k.e("s_mov_b32 s98, 0")
    k.e("s_mov_b32 s97, 0")
    if not CLAIM:
        return
    k.e("s_getreg_b32 s99, hwreg(HW_REG_XCC_ID, 0, 3)")
    k.e("s_getreg_b32 s100, hwreg(HW_REG_HW_ID, 8, 4)")
    k.e("s_getreg_b32 s101, hwreg(HW_REG_HW_ID, 13, 2)")
    if CLAIM == 3:
        k.e("s_cmp_ge_u32 s100, 3")
        k.e("s_cselect_b32 s97, 1, 0")
        k.e("s_andn2_b32 s97, s97, s101")
        k.e("s_add_u32 s100, s100, s97")
    k.e("s_lshr_b32 s97, s100, 3")
    k.e("s_and_b32 s100, s100, 7")
    k.e("s_lshl_b32 s100, s100, 3")
    k.e("s_lshl_b32 s101, s101, 6")
    k.e("s_or_b32 s2, s99, s100")
    k.e("s_or_b32 s2, s2, s101")
    if CLAIM == 2:
        k.e("s_and_b32 s2, s2, 0xf5")
    if not k.name.startswith("k1"):
        map_addr(k, 100)

def map_addr(k, sd):
    k.e(f"s_and_b32 s{sd}, s2, 7")
    k.e(f"s_lshl_b32 s{sd}, s{sd}, 7")
    k.e("s_lshr_b32 s101, s2, 6")
    k.e("s_lshl_b32 s101, s101, 2")
    k.e(f"s_add_u32 s{sd}, s{sd}, s101")
    k.e(f"s_add_u32 s{sd}, s{sd}, {hex(WS_MAP)}")

def hint_load(k, tag):
    k.e("s_cmp_eq_u32 s97, 0")
    k.e(f"s_cbranch_scc1 {k.L('hl_' + tag)}")
    k.e("s_load_dword s99, s[8:9], s100")
    k.label("hl_" + tag)

def hint_check(k, tag):
    k.e("s_cmp_eq_u32 s97, 0")
    k.e(f"s_cbranch_scc1 {k.L('hc_' + tag)}")
    k.e("s_mov_b32 s97, 0")
    k.e("s_waitcnt lgkmcnt(0)")
    k.e("s_and_b32 s99, s99, 0x38")
    k.e("s_or_b32 s2, s2, s99")
    k.e("s_cmp_lg_u32 s99, 0")
    k.e(f"s_cbranch_scc1 {k.L('restart')}")
    k.label("hc_" + tag)

def claim_issue(k):
    k.e("s_cmp_lg_u32 s98, 0")
    k.e(f"s_cbranch_scc1 {k.L('clm_skip')}")
    k.e("s_lshr_b32 s101, s2, 3")
    k.e("s_lshl_b32 s99, 1, s101")
    k.e("s_and_b32 s100, s2, 7")
    k.e("s_lshl_b32 s100, s100, 5")
    k.e("s_atomic_or s99, s[10:11], s100 glc")
    k.label("clm_skip")

def claim_verdict(k, vt, vt2, lds):
    k.e("s_mov_b32 s96, 0")
    k.e("s_cmp_lg_u32 s98, 0")
    k.e(f"s_cbranch_scc1 {k.L('clm_done')}")
    k.e("s_lshr_b32 s101, s2, 3")
    k.e("s_waitcnt lgkmcnt(0)")
    k.e("s_bitcmp1_b32 s99, s101")
    k.e(f"s_cbranch_scc0 {k.L('clm_done')}")
    k.e("s_movk_i32 s98, 600")
    k.label("clm_try")
    k.e("s_sub_u32 s98, s98, 1")
    k.e("s_cmp_eq_u32 s98, 0")
    k.e(f"s_cbranch_scc1 {k.L('clm_done')}")
    k.e("s_ff0_i32_b32 s101, s99")
    k.e("s_cmp_eq_i32 s101, -1")
    k.e(f"s_cbranch_scc0 {k.L('clm_bit')}")
    k.e("s_add_u32 s100, s100, 32")
    k.e("s_and_b32 s100, s100, 0xe0")
    k.e("s_mov_b32 s101, 0")
    k.label("clm_bit")
    k.e("s_lshl_b32 s99, 1, s101")
    k.e("s_atomic_or s99, s[10:11], s100 glc")
    k.e("s_waitcnt lgkmcnt(0)")
    k.e("s_bitcmp1_b32 s99, s101")
    k.e(f"s_cbranch_scc1 {k.L('clm_try')}")
    k.e("s_lshl_b32 s96, s101, 3")
    k.e("s_lshr_b32 s100, s100, 5")
    k.e("s_add_u32 s96, s96, s100")
    k.e("s_add_u32 s96, s96, 256")
    k.label("clm_done")
    k.e(f"v_mov_b32 v{vt}, {lds}")
    k.e(f"v_mov_b32 v{vt2}, s96")
    k.e(f"ds_write_b32 v{vt}, v{vt2}")
    k.e("s_waitcnt lgkmcnt(0)")

def claim_read(k, vd, lds):
    k.e(f"v_mov_b32 v{vd}, {lds}")
    k.e(f"ds_read_b32 v{vd}, v{vd}")

def claim_check(k, vd):
    k.e(f"v_readfirstlane_b32 s99, v{vd}")
    k.e("s_nop 0")
    k.e("s_cmp_lg_u32 s99, 0")
    k.e(f"s_cbranch_scc1 {k.L('clm_redo')}")

def claim_redo(k):
    k.label("clm_early")
    k.e("s_or_b32 s2, s2, s99")
    k.e(f"s_branch {k.L('clm_go')}")
    k.label("clm_redo")
    k.e("s_and_b32 s2, s99, 255")
    k.e("s_mov_b32 s98, 1")
    k.label("clm_go")
    k.e("s_setprio 0")
    k.e("s_waitcnt vmcnt(0) lgkmcnt(0)")
    k.e("s_nop 7")
    k.e("s_nop 7")
    k.e("s_barrier")
    k.e(f"s_branch {k.L('restart')}")

def gen_k1():
    k = K("k1_qkv_kernel")
    XP = 1040
    XH = 32 * XP
    WBASE = 2 * XH
    NSLOT = 7
    D = K1_D
    SLOT = 12288
    MISC = WBASE + NSLOT * SLOT
    MISC2 = MISC + 1024
    k.lds = MISC2 + 4096
    CLM = MISC + 512
    assert MISC2 % 2048 == 0
    vl = k.v(); vt0 = k.v(); vt1 = k.v(); vt2 = k.v()
    vL16 = k.v()
    vXp = [k.v(), k.v()]; vXm = [k.v(), k.v()]
    vW0 = [k.v(), k.v()]; vW1 = [k.v(), k.v()]
    vR = k.v(2); vR2 = vR + 1
    sel = k.v(4)
    cs = [k.v(4) for _ in range(3)]
    acc = [k.v(16) for _ in range(3)]
    sets = [dict(XA=k.v(4), XB=k.v(4), WA=[k.v(4) for _ in range(3)], WB=[k.v(4) for _ in range(3)]) for _ in range(2)]
    BP = k.v(4); AP = [k.v(4) for _ in range(3)]
    RR = sets[0]['WA'][0]
    assert k.nv <= 168
    k.e("s_cmp_ge_u32 s2, 256")
    k.e(f"s_cbranch_scc1 {k.L('end')}")
    k.stamp(0)
    k.tick()
    k.e("s_load_dwordx4 s[4:7], s[0:1], 0")
    k.e("s_load_dwordx2 s[8:9], s[0:1], 72")
    claim_begin(k)
    wave_setup(k, vt0)
    k.label("restart")
    tile_map_32x8(k, 25, 26, 27, 28)
    k.e(f"v_lshrrev_b32 v{vt1}, 5, v0")
    k.e("s_cmp_ge_u32 s24, 4")
    k.e(f"s_cbranch_scc1 {k.L('cons')}")
    vWg = vXp[0]; vXg = vXp[1]
    k.e(f"v_lshrrev_b32 v{vt0}, 3, v0")
    k.e(f"v_mul_u32_u24 v{vWg}, 3072, v{vt0}")
    k.e(f"v_lshrrev_b32 v{vt0}, 2, v0")
    k.e(f"v_and_b32 v{vt0}, 4, v{vt0}")
    k.e(f"v_xor_b32 v{vt0}, v{vt0}, v0")
    k.e(f"v_and_b32 v{vt0}, 7, v{vt0}")
    k.e(f"v_lshl_add_u32 v{vWg}, v{vt0}, 4, v{vWg}")
    k.e(f"v_lshlrev_b32 v{vt0}, 3, v{vt1}")
    k.e(f"v_xor_b32 v{vt0}, v{vt0}, v0")
    k.e(f"v_lshl_add_u32 v{vt0}, s27, 2, v{vt0}")
    k.e(f"v_and_b32 v{vt0}, 31, v{vt0}")
    k.e(f"v_lshlrev_b32 v{vXg}, 10, v{vt1}")
    k.e(f"v_lshl_add_u32 v{vXg}, v{vt0}, 4, v{vXg}")
    k.e("s_lshl_b32 s31, s25, 16")
    k.e("s_lshl_b32 s36, s24, 11")
    k.e("s_add_u32 s31, s31, s36")
    k.e(f"s_mul_i32 s29, s24, {XP}")
    for g in range(4):
        k.e(f"s_add_u32 s36, s28, {g}")
        k.e("s_and_b32 s36, s36, 3")
        k.e(f"s_mul_i32 s{44+g}, s36, {8*XP}")
        k.e(f"s_add_u32 s{44+g}, s{44+g}, s29")
        k.e("s_lshl_b32 s36, s36, 14")
        k.e(f"s_add_u32 s{48+g}, s36, s31")
    k.e(f"s_mul_i32 s32, s24, {8*3072}")
    k.e("s_lshl_b32 s33, s26, 7")
    k.e("s_add_u32 s32, s32, s33")
    k.e(f"s_mul_i32 s33, s27, {32*3072}")
    k.e("s_add_u32 s33, s33, s32")
    k.e(f"s_add_u32 s35, s32, {256*3072}")
    k.e("s_mul_i32 s34, s24, 3072")
    k.e(f"s_add_u32 s34, s34, {WBASE}")
    k.e(f"s_mov_b32 s14, {2048*1024}")
    k.e("s_mov_b32 s15, 0x00020000")
    k.e(f"s_mov_b32 s18, {512*3072}")
    k.e("s_mov_b32 s19, 0x00020000")
    k.e("s_mov_b32 m0, s44")
    k.e("s_waitcnt lgkmcnt(0)")
    k.stamp(1)
    k.e("s_mov_b64 s[12:13], s[4:5]")
    k.e("s_mov_b64 s[16:17], s[6:7]")
    first = [True]
    nout = []
    def xgrp(g, half):
        if not first[0]:
            k.e(f"s_add_u32 m0, s{44+g}, {half*(XH-512)}")
            k.e(f"s_add_u32 s36, s{48+g}, 8192")
        else:
            k.e(f"s_add_u32 s36, s{48+g}, 8192")
        first[0] = False
        k.e(f"buffer_load_dwordx4 v{vXg}, s[12:15], s{48+g} offen offset:{half*512} lds")
        k.e(f"s_add_u32 m0, s{44+g}, {half*(XH-512) + 4*XP}")
        k.e("s_nop 0")
        k.e(f"buffer_load_dwordx4 v{vXg}, s[12:15], s36 offen offset:{half*512} lds")
        nout.extend([("x", half)] * 2)
    def wstage(q):
        k.e(f"s_add_u32 m0, s34, {(q % NSLOT)*SLOT}")
        k.e(f"s_add_u32 s36, s33, {32*3072}")
        for g in range(3):
            k.e(f"buffer_load_dwordx4 v{vWg}, s[16:19], s33 offen offset:{g*1024} lds")
        if q == 7:
            k.e("s_cmp_eq_u32 s36, s35")
            k.e("s_cselect_b32 s33, s32, s36")
            k.e(f"s_add_u32 s33, s33, {256*3072}")
            k.e("s_mov_b32 s32, s35")
            k.e(f"s_add_u32 s35, s35, {256*3072}")
        elif q < 15:
            k.e("s_cmp_eq_u32 s36, s35")
            k.e("s_cselect_b32 s33, s32, s36")
        nout.extend([("w", q)] * 3)
    def wait_for(s):
        need = lambda t: (t[0] == "w" and t[1] <= s) or (t[0] == "x" and t[1] <= (1 if s >= 5 else 0))
        last = max(i for i, t in enumerate(nout) if need(t))
        k.e(f"s_waitcnt vmcnt({len(nout) - 1 - last})")
        k.e("s_barrier")
        k.tick()
    xgrp(0, 0); wstage(0)
    for g in (1, 2, 3): xgrp(g, 0)
    for q in range(1, D): wstage(q)
    k.stamp(2)
    def k1_early(tag, v):
        k.e("s_cmp_eq_u32 s97, 0")
        k.e(f"s_cbranch_scc1 {k.L('ek_' + tag)}")
        claim_read(k, v, CLM + 4)
        k.e("s_mov_b32 s97, 0")
        k.e("s_waitcnt lgkmcnt(0)")
        k.e(f"v_readfirstlane_b32 s99, v{v}")
        k.e("s_nop 0")
        k.e("s_and_b32 s99, s99, 0x38")
        k.e(f"s_cbranch_scc1 {k.L('clm_early')}")
        k.label("ek_" + tag)
    for s in range(16):
        wait_for(s)
        if s == 0:
            k1_early("l", vt0)
        if s < 2:
            xgrp(2*s, 1); xgrp(2*s+1, 1)
        if s + D < 16:
            wstage(s + D)
        if s == 15 - D:
            k.stamp(3)
        if s == 6:
            next_code_prefetch(k, 40, "k2_attn_kernel", "k2_attn_kernel")
    k.stamp(4)
    k.label("chkend")
    claim_read(k, vt0, CLM)
    k.e("s_waitcnt lgkmcnt(0)")
    claim_check(k, vt0)
    k.tick_flush(1)
    k.e(f"s_branch {k.L('fin')}")
    k.label("cons")
    k.e("s_cmp_ge_u32 s24, 8")
    k.e(f"s_cbranch_scc1 {k.L('stat')}")
    if K1_PRIO: k.e(f"s_setprio {K1_PRIO}")
    k.e(f"v_lshlrev_b32 v{vL16}, 4, v0")
    k.e("s_and_b32 s33, s24, 1")
    k.e("s_bfe_u32 s34, s24, 0x10001")
    k.e("s_xor_b32 s35, s33, s34")
    k.e(f"v_bfe_u32 v{vt0}, v0, 1, 4")
    k.e(f"v_mul_u32_u24 v{vt2}, {XP}, v{vt0}")
    k.e(f"v_lshl_add_u32 v{vt2}, v{vt1}, 4, v{vt2}")
    k.e(f"v_and_b32 v{vt0}, 1, v0")
    k.e(f"v_mul_u32_u24 v{vXp[0]}, {512+128}, v{vt0}")
    k.e(f"v_mul_u32_u24 v{vXm[0]}, {512-128}, v{vt0}")
    k.e(f"s_mul_i32 s36, s33, {16*XP}")
    k.e("s_lshl_b32 s37, s35, 5")
    k.e("s_add_u32 s38, s36, s37")
    k.e("s_xor_b32 s37, s37, 32")
    k.e("s_add_u32 s39, s36, s37")
    k.e(f"v_add3_u32 v{vXp[1]}, v{vXp[0]}, v{vt2}, s39")
    k.e(f"v_add3_u32 v{vXm[1]}, v{vXm[0]}, v{vt2}, s39")
    k.e(f"v_add3_u32 v{vXp[0]}, v{vXp[0]}, v{vt2}, s38")
    k.e(f"v_add3_u32 v{vXm[0]}, v{vXm[0]}, v{vt2}, s38")
    w = vW1[1]
    k.e(f"v_mul_u32_u24 v{w}, 3072, v{vt1}")
    k.e(f"v_bfe_u32 v{vt0}, v0, 2, 2")
    k.e(f"v_lshl_add_u32 v{w}, v{vt0}, 7, v{w}")
    k.e(f"v_bfe_u32 v{vt0}, v0, 3, 1")
    k.e(f"v_xor_b32 v{vt0}, s34, v{vt0}")
    k.e(f"v_lshl_add_u32 v{w}, v{vt0}, 6, v{w}")
    k.e(f"v_bfe_u32 v{vt0}, v0, 4, 1")
    k.e(f"v_lshl_add_u32 v{w}, v{vt0}, 5, v{w}")
    k.e(f"v_and_b32 v{vt2}, 3, v0")
    k.e(f"v_lshl_add_u32 v{w}, v{vt2}, 3, v{w}")
    k.e("s_mul_i32 s28, s35, 6144")
    k.e(f"s_add_u32 s36, s28, {WBASE}")
    k.e(f"s_sub_u32 s37, {WBASE+6144}, s28")
    k.e(f"v_add_u32 v{vW0[0]}, s36, v{w}")
    k.e(f"v_add_u32 v{vW0[1]}, s37, v{w}")
    k.e(f"v_add_u32 v{vW1[0]}, {4*SLOT}, v{vW0[0]}")
    k.e(f"v_add_u32 v{vW1[1]}, {4*SLOT}, v{vW0[1]}")
    k.e(f"v_bfe_u32 v{vt2}, v0, 2, 1")
    k.e(f"v_cmp_eq_u32 vcc, v{vt0}, v{vt2}")
    k.e(f"v_mov_b32 v{vt2}, 0x3f803f80")
    k.e("s_nop 0")
    k.e(f"v_cndmask_b32 v{sel}, 0, v{vt2}, vcc")
    for i in range(1, 4):
        k.e(f"v_mov_b32 v{sel+i}, v{sel}")
    for z in list(range(BP, BP + 16)):
        k.e(f"v_mov_b32 v{z}, 0")
    k.e("s_lshl_b32 s27, s26, 2")
    k.e("s_lshl_b32 s28, s34, 1")
    k.e("s_add_u32 s27, s27, s28")
    k.e("s_lshl_b32 s27, s27, 6")
    k.e("s_lshl_b32 s28, s25, 1")
    k.e("s_add_u32 s27, s27, s28")
    k.e("s_add_u32 s27, s27, s33")
    k.e("s_lshl_b32 s42, s27, 10")
    k.e("s_add_u32 s43, s42, 0x10000")
    k.e("s_lshl_b32 s44, s27, 11")
    k.e(f"s_add_u32 s44, s44, {hex(WS_KV)}")
    k.e("s_add_u32 s45, s44, 0x20000")
    k.e("s_waitcnt lgkmcnt(0)")
    k.stamp(1)
    srd(k, 20, 8, WS_END)
    code_prefetch(k, 46, 33, K1_CODEPF)
    def big(S, first=False):
        r = []
        for n, (X, W) in enumerate(((S['XA'], S['WA']), (S['XB'], S['WB']))):
            c = lambda a: "0" if (first and n == 0) else vr(a, 16)
            r.append(f"v_mfma_f32_32x32x16_bf16 {vr(acc[0],16)}, {vr(W[0],4)}, {vr(X,4)}, {c(acc[0])}")
            r.append(f"v_mfma_f32_32x32x16_bf16 {vr(acc[1],16)}, {vr(W[1],4)}, {vr(X,4)}, {c(acc[1])}")
            r.append(f"v_mfma_f32_32x32x16_bf16 {vr(acc[2],16)}, {vr(X,4)}, {vr(W[2],4)}, {c(acc[2])}")
        return r
    def small(S, first=False):
        return [f"v_mfma_f32_16x16x32_bf16 {vr(cs[g],4)}, {vr(sel,4)}, {vr(S['WA'][g],4)}, {'0' if first else vr(cs[g],4)}" for g in range(3)]
    def reads(q):
        S = sets[q & 1]
        koff = (q & 7) * 64
        xb = vXm if (koff & 128) else vXp
        xo = (q >> 3) * XH + koff
        sl = q % NSLOT
        wb, wo = (vW0, sl * SLOT) if sl < 4 else (vW1, (sl - 4) * SLOT)
        r = []
        for n, (X, W) in enumerate((('XA', 'WA'), ('XB', 'WB'))):
            r.append(f"ds_read_b128 {vr(S[X],4)}, v{xb[n]} offset:{xo}")
            for g in range(3):
                r.append(f"ds_read_b64_tr_b16 {vr(S[W][g],2)}, v{wb[n]} offset:{wo+g*1024}")
                r.append(f"ds_read_b64_tr_b16 {vr(S[W][g]+2,2)}, v{wb[n]} offset:{wo+g*1024+512}")
        return r
    k.stamp(2)
    k.e("s_barrier")
    k.stamp(3)
    k1_early("c", vt0)
    for x in reads(0): k.e(x)
    k.e("s_waitcnt lgkmcnt(0)")
    for q in range(15):
        k.e("s_barrier")
        b = big(sets[q & 1], q == 0); s = small(sets[q & 1], q == 0)
        m = b[:5] + s + b[5:]
        spread(k, m[:-1], reads(q + 1), [], K1_PER, 5)
        k.e("s_waitcnt lgkmcnt(0)")
        k.e(m[-1])
    k.stamp(4)
    for m in small(sets[1]): k.e(m)
    k.e(f"v_and_b32 v{vt0}, 31, v0")
    k.e("s_lshl_b32 s27, s33, 7")
    k.e(f"s_add_u32 s27, s27, {MISC}")
    k.e(f"v_lshl_add_u32 v{vt0}, v{vt0}, 2, s27")
    k.e(f"v_lshl_add_u32 v{vt1}, v{vt1}, 4, s27")
    bg = big(sets[1])
    k.e(bg[0])
    k.e(f"ds_read_b32 v{BP}, v{vt0}")
    k.e(f"ds_read_b32 v{vR}, v{vt0} offset:256")
    claim_read(k, vt2, CLM)
    for j in range(4):
        k.e(f"ds_read_b128 {vr(RR+4*j,4)}, v{vt1} offset:{256+j*32}")
    T = sets[0]['XA']; B = sets[0]['XB']
    k.e(bg[1])
    k.e("s_and_b32 s27, s24, 3")
    k.e("s_lshl_b32 s27, s27, 10")
    k.e(f"s_add_u32 s27, s27, {MISC2}")
    k.e(f"v_add_u32 v{vt1}, s27, v{vL16}")
    for g in range(3):
        k.e(f"v_mov_b32 v{T+g}, v{cs[g]}")
    k.e(f"ds_write_b128 v{vt1}, {vr(T,4)}")
    k.e(bg[2])
    k.e(f"v_xor_b32 v{vt1}, 1024, v{vt1}")
    k.e("v_cmp_gt_u32 vcc, 32, v0")
    k.e("s_waitcnt lgkmcnt(0)")
    k.e(bg[3])
    claim_check(k, vt2)
    k.e("s_barrier")
    k.e(f"ds_read_b128 {vr(B,4)}, v{vt1}")
    k.e(bg[4])
    k.e(f"v_cndmask_b32 v{BP}, 0, v{BP}, vcc")
    k.e(f"v_mul_f32 v{vR2}, {f32(0.25*1.4426950408889634)}, v{vR}")
    k.e(f"v_bfe_u32 v{vt0}, v0, 4, 1")
    k.e(f"v_lshlrev_b32 v{vt0}, 17, v{vt0}")
    k.e(f"v_lshrrev_b32 v{vt1}, 5, v0")
    k.e(bg[5])
    k.e(f"v_lshl_add_u32 v{vt0}, v{vt1}, 8, v{vt0}")
    k.e(f"v_and_b32 v{vt1}, 15, v0")
    k.e(f"v_lshl_add_u32 v{vt0}, v{vt1}, 4, v{vt0}")
    k.e("s_waitcnt lgkmcnt(0)")
    for g in range(3):
        k.e(f"v_add_f32 v{T+g}, v{T+g}, v{B+g}")
        split2(k, T + g, AP[g], vt2)
        if g == 1: mfma32(k, acc[0], AP[0], BP)
        if g == 2: mfma32(k, acc[1], AP[1], BP)
    k.e("s_nop 0")
    mfma32(k, acc[2], BP, AP[2])
    k.e("s_nop 4")
    for b, (sc, soffs) in enumerate(((vR2, (42, 43)), (vR, (44, 45)))):
        for i in range(0, 16, 2):
            if b == 0 and i < 8:
                k.e(f"v_mul_f32 v{acc[b]+i}, v{sc}, v{acc[b]+i}")
                k.e(f"v_mul_f32 v{acc[b]+i+1}, v{sc}, v{acc[b]+i+1}")
            else:
                pkmul_bcast(k, acc[b] + i, sc)
        for i in range(8):
            k.e(f"v_cvt_pk_bf16_f32 v{acc[b]+i}, v{acc[b]+2*i}, v{acc[b]+2*i+1}")
        k.e(f"buffer_store_dwordx4 {vr(acc[b],4)}, v{vL16}, s[20:23], s{soffs[0]} offen")
        k.e(f"buffer_store_dwordx4 {vr(acc[b]+4,4)}, v{vL16}, s[20:23], s{soffs[1]} offen")
    a = acc[2]
    for i in range(0, 16, 2):
        k.e(f"v_pk_mul_f32 {vr(a+i,2)}, {vr(a+i,2)}, {vr(RR+i,2)}")
    for i in range(8):
        k.e(f"v_cvt_pk_bf16_f32 v{a+i}, v{a+2*i}, v{a+2*i+1}")
    k.e(f"v_permlane32_swap_b32 v{a}, v{a+2}")
    k.e(f"v_permlane32_swap_b32 v{a+1}, v{a+3}")
    k.e(f"buffer_store_dwordx4 {vr(a,4)}, v{vt0}, s[20:23], s44 offen offset:1024")
    k.e(f"v_permlane32_swap_b32 v{a+4}, v{a+6}")
    k.e(f"v_permlane32_swap_b32 v{a+5}, v{a+7}")
    k.e(f"buffer_store_dwordx4 {vr(a+4,4)}, v{vt0}, s[20:23], s44 offen offset:1536")
    k.label("fin")
    k.stamp_flush(1)
    k.label("end")
    k.e("s_endpgm")
    k.label("stat")
    if K1_NOSTAT:
        k.e("s_endpgm")
    k.e("s_setprio 3")
    vSum = vXp[0]; vSq = vXp[1]; vSum2 = vXm[0]; vSq2 = vXm[1]; vXs = vW0[0]
    k.e("s_and_b32 s29, s24, 3")
    k.e("s_add_u32 s30, s27, 8")
    k.e("s_lshl_b32 s30, s30, 5")
    k.e("s_lshl_b32 s31, s29, 3")
    k.e("s_add_u32 s30, s30, s31")
    k.e("s_mul_i32 s30, s30, 3072")
    k.e("s_lshl_b32 s31, s26, 7")
    k.e("s_add_u32 s30, s30, s31")
    k.e("s_lshl_b32 s31, s25, 6")
    k.e("s_lshl_b32 s32, s28, 4")
    k.e("s_add_u32 s31, s31, s32")
    k.e("s_lshl_b32 s32, s29, 2")
    k.e("s_add_u32 s31, s31, s32")
    k.e("s_lshl_b32 s31, s31, 10")
    k.e("s_add_u32 s31, s31, 512")
    k.e(f"v_and_b32 v{vt0}, 15, v0")
    k.e(f"v_lshrrev_b32 v{vt2}, 1, v{vt0}")
    k.e(f"v_mul_u32_u24 v{vXs}, {XP}, v{vt2}")
    k.e(f"v_and_b32 v{vt2}, 1, v0")
    k.e(f"v_lshl_add_u32 v{vXs}, v{vt2}, 9, v{vXs}")
    k.e(f"v_lshrrev_b32 v{vt1}, 4, v0")
    k.e(f"v_xor_b32 v{vt1}, v{vt1}, v{vt2}")
    k.e(f"v_lshl_add_u32 v{vXs}, v{vt1}, 7, v{vXs}")
    k.e(f"s_mul_i32 s36, s29, {8*XP}")
    k.e(f"v_add_u32 v{vXs}, s36, v{vXs}")
    for z in (vSum, vSq, vSum2, vSq2):
        k.e(f"v_mov_b32 v{z}, 0")
    k.e("s_mov_b32 s41, 0xffff0000")
    k.e("s_mov_b32 s40, 4")
    k.e("s_waitcnt lgkmcnt(0)")
    k.e("s_add_u32 s32, s6, s30")
    k.e("s_addc_u32 s33, s7, 0")
    k.e("s_add_u32 s34, s4, s31")
    k.e("s_addc_u32 s35, s5, 0")
    if K1_SPF:
        pf = [f"s_load_dword s48, s[34:35], {r*1024 + c*128}" for r in range(4) for c in range(4)]
        pf += [f"s_load_dword s48, s[32:33], {r*1024}" for r in range(24)]
        for x in pf[:K1_SPF]: k.e(x)
    XS = [sets[0]['XA'], sets[0]['XB']]
    tl = [sets[1]['XA'] + i for i in range(4)]
    def proc(X):
        for i in range(4):
            a, b = tl[(2*i) % 4], tl[(2*i+1) % 4]
            x = X + i
            for ln in [f"v_lshlrev_b32 v{a}, 16, v{x}", f"v_and_b32 v{b}, s41, v{x}",
                       f"v_fmac_f32 v{vSq}, v{a}, v{a}", f"v_fmac_f32 v{vSq2}, v{b}, v{b}",
                       f"v_add_f32 v{vSum}, v{vSum}, v{a}", f"v_add_f32 v{vSum2}, v{vSum2}, v{b}"]:
                k.e(ln)
    k.e("s_mov_b32 s40, 0")
    k.e("s_cmp_lg_u32 s24, 8")
    k.e(f"s_cbranch_scc1 {k.L('clm_skip')}")
    k.e("s_cmp_eq_u32 s97, 0")
    k.e(f"s_cbranch_scc1 {k.L('clm_iss')}")
    k.e("s_and_b32 s100, s2, 7")
    k.e("s_lshl_b32 s100, s100, 5")
    k.e("s_lshr_b32 s101, s2, 3")
    k.e("s_mov_b32 s96, 12")
    k.label("clm_poll")
    k.e("s_mov_b32 s99, 0")
    k.e("s_atomic_or s99, s[10:11], s100 glc")
    k.e("s_sub_u32 s96, s96, 1")
    k.e("s_waitcnt lgkmcnt(0)")
    k.e("s_lshr_b32 s99, s99, s101")
    k.e("s_and_b32 s99, s99, 0xff")
    k.e("s_cmp_eq_u32 s96, 0")
    k.e(f"s_cbranch_scc1 {k.L('clm_pick')}")
    k.e("s_bcnt1_i32_b32 s36, s99")
    k.e("s_cmp_lt_u32 s36, 7")
    k.e(f"s_cbranch_scc1 {k.L('clm_poll')}")
    k.label("clm_pick")
    k.e("s_ff0_i32_b32 s99, s99")
    k.e("s_and_b32 s99, s99, 7")
    k.e("s_lshl_b32 s99, s99, 3")
    k.e(f"v_mov_b32 v{vt1}, {CLM + 4}")
    k.e(f"v_mov_b32 v{vt2}, s99")
    k.e(f"ds_write_b32 v{vt1}, v{vt2}")
    map_addr(k, 100)
    srd(k, 20, 8, WS_END)
    k.e(f"v_mov_b32 v{vt1}, 0")
    k.e(f"buffer_store_dword v{vt2}, v{vt1}, s[20:23], s100 offen")
    k.e("s_cmp_lg_u32 s99, 0")
    k.e("s_waitcnt lgkmcnt(0)")
    k.e(f"s_cbranch_scc1 {k.L('clm_skip')}")
    k.label("clm_iss")
    claim_issue(k)
    k.e("s_barrier")
    k.e("s_cmp_eq_u32 s97, 0")
    k.e(f"s_cbranch_scc1 {k.L('ek_s')}")
    claim_read(k, vt1, CLM + 4)
    k.e("s_mov_b32 s97, 0")
    k.e("s_waitcnt lgkmcnt(0)")
    k.e(f"v_readfirstlane_b32 s36, v{vt1}")
    k.e("s_nop 0")
    k.e("s_and_b32 s36, s36, 0x38")
    k.e(f"s_cbranch_scc0 {k.L('ek_s')}")
    k.e("s_mov_b32 s99, s36")
    k.e(f"s_branch {k.L('clm_early')}")
    k.label("ek_s")
    k.e(f"ds_read_b128 {vr(XS[0],4)}, v{vXs}")
    k.label("sloop")
    k.e("s_waitcnt lgkmcnt(0)")
    k.e(f"ds_read_b128 {vr(XS[1],4)}, v{vXs} offset:16")
    k.e("s_cmp_eq_u32 s40, 3")
    k.e(f"s_cselect_b32 s36, {XH-96}, 32")
    k.e(f"v_add_u32 v{vXs}, s36, v{vXs}")
    k.e("s_cmp_lt_u32 s40, 2")
    proc(XS[0])
    k.e(f"s_cbranch_scc1 {k.L('snb')}")
    k.e("s_barrier")
    k.label("snb")
    k.e("s_waitcnt lgkmcnt(0)")
    k.e(f"ds_read_b128 {vr(XS[0],4)}, v{vXs}")
    k.e("s_add_u32 s40, s40, 1")
    k.e("s_cmp_lt_u32 s40, 8")
    proc(XS[1])
    k.e("s_barrier")
    k.e(f"s_cbranch_scc1 {k.L('sloop')}")
    k.e(f"v_add_f32 v{vSum}, v{vSum}, v{vSum2}")
    k.e(f"v_add_f32 v{vSq}, v{vSq}, v{vSq2}")
    k.e("s_nop 1")
    k.e(f"v_permlane32_swap_b32 v{vSum}, v{vSq}")
    k.e(f"v_add_f32 v{vSum}, v{vSum}, v{vSq}")
    k.e(f"v_mov_b32 v{vSq}, v{vSum}")
    k.e("s_nop 1")
    k.e(f"v_permlane16_swap_b32 v{vSum}, v{vSq}")
    k.e(f"v_add_f32 v{vSum}, v{vSum}, v{vSq}")
    k.e(f"v_mov_b32 v{vSq}, v{vSum}")
    k.e("s_nop 1")
    k.e(f"v_permlane32_swap_b32 v{vSum}, v{vSq}")
    ln_finish(k, vSum, vSq, vSum2, vSq2, vt2, vt1)
    k.e("s_lshl_b32 s36, s29, 6")
    k.e(f"s_add_u32 s36, s36, {MISC}")
    k.e(f"v_lshl_add_u32 v{vt0}, v{vt0}, 2, s36")
    k.e(f"ds_write2_b32 v{vt0}, v{vSum2}, v{vSq2} offset0:0 offset1:64")
    k.e("s_cmp_lg_u32 s24, 8")
    k.e(f"s_cbranch_scc1 {k.L('clm_nov')}")
    claim_verdict(k, vt1, vt2, CLM)
    k.label("clm_nov")
    k.e("s_waitcnt lgkmcnt(0)")
    k.e("s_barrier")
    claim_read(k, vt0, CLM)
    k.e("s_waitcnt lgkmcnt(0)")
    claim_check(k, vt0)
    k.e("s_endpgm")
    claim_redo(k)
    return k

def gen_k2():
    k = K("k2_attn_kernel")
    STG = 131072
    k.lds = STG + 32768
    vl = k.v(); vt0 = k.v(); vt1 = k.v(); vL16 = k.v(); vK = k.v(); vV = k.v(); vSrc = k.v(); vDst = k.v()
    vIdx = k.v(); vCs = k.v(); vt2 = k.v(); vt3 = k.v()
    Q = k.v(4); KA = k.v(4); KB = k.v(4)
    VA = [k.v(4), k.v(4)]; VB = [k.v(4), k.v(4)]
    PR = [k.v(4) for _ in range(4)]
    NM = k.v(16); SA = k.v(16); SB = k.v(16); O = k.v(16)
    k.e("s_cmp_ge_u32 s2, 256")
    k.e(f"s_cbranch_scc1 {k.L('end')}")
    k.stamp(0)
    k.e("s_load_dwordx2 s[8:9], s[0:1], 72")
    k.e("s_load_dwordx2 s[4:5], s[0:1], 16")
    k.e("s_load_dwordx4 s[12:15], s[0:1], 32")
    k.e("s_load_dwordx2 s[6:7], s[0:1], 48")
    claim_begin(k)
    wave_setup(k, vt0)
    k.label("restart")
    k.e(f"v_lshlrev_b32 v{vL16}, 4, v0")
    k.e("s_and_b32 s25, s2, 1")
    k.e("s_lshl_b32 s25, s25, 4")
    k.e("s_bfe_u32 s27, s2, 0x40003")
    k.e("s_add_u32 s25, s25, s27")
    k.e("s_and_b32 s40, s2, 6")
    k.e("s_lshr_b32 s26, s2, 7")
    k.e("s_add_u32 s26, s26, s40")
    k.e("s_lshl_b32 s40, s40, 14")
    k.e("s_lshl_b32 s26, s26, 3")
    k.e("s_add_u32 s26, s26, s24")
    k.e("s_lshl_b32 s27, s25, 6")
    k.e("s_add_u32 s27, s27, s26")
    k.e("s_lshl_b32 s28, s27, 10")
    k.e("s_lshl_b32 s29, s25, 17")
    k.e(f"s_add_u32 s29, s29, {hex(WS_KV)}")
    k.e("s_lshl_b32 m0, s24, 11")
    k.e("s_add_u32 s27, s29, m0")
    k.e("s_add_u32 s27, s27, s40")
    k.e("s_waitcnt lgkmcnt(0)")
    k.stamp(1)
    hint_load(k, "a")
    srd(k, 20, 8, WS_END)
    k.e(f"buffer_load_dwordx4 v{vL16}, s[20:23], s27 offen lds")
    k.e(f"buffer_load_dwordx4 {vr(Q,4)}, v{vL16}, s[20:23], s28 offen")
    k.e(f"buffer_load_dwordx4 v{vL16}, s[20:23], s27 offen offset:1024 lds")
    k.e("s_and_b32 s30, s24, 3")
    k.e("s_lshl_b32 s30, s30, 12")
    k.e("s_cmp_ge_u32 s24, 4")
    k.e("s_cselect_b32 s31, 0x10000, 0x4000" if False else "s_cselect_b32 s31, 4, 1")
    k.e("s_lshl_b32 s31, s31, 14")
    k.e("s_add_u32 s30, s30, s31")
    def bulk(nch, tag):
        k.e(f"s_mov_b32 s31, {nch}")
        k.label(tag)
        k.e("s_mov_b32 m0, s30")
        k.e("s_add_u32 s27, s30, s40")
        k.e("s_and_b32 s27, s27, 0x1ffff")
        k.e("s_add_u32 s27, s27, s29")
        for g in range(4):
            k.e(f"buffer_load_dwordx4 v{vL16}, s[20:23], s27 offen offset:{g*1024} lds")
        k.e("s_add_u32 s30, s30, 16384")
        k.e("s_sub_u32 s31, s31, 1")
        k.e("s_cmp_lg_u32 s31, 0")
        k.e(f"s_cbranch_scc1 {k.L(tag)}")
    k.e(f"v_lshrrev_b32 v{vt1}, 5, v0")
    k.e(f"v_mov_b32 v{vK}, v{vL16}")
    k.e(f"v_lshlrev_b32 v{vV}, 8, v{vt1}")
    k.e(f"v_and_b32 v{vt0}, 15, v0")
    k.e(f"v_lshl_add_u32 v{vV}, v{vt0}, 4, v{vV}")
    k.e(f"v_mov_b32 v{vt0}, 0x3f803f80")
    if ZROWS:
        k.e(f"v_and_b32 v{vt2}, 11, v0")
        k.e(f"v_cmp_eq_u32 vcc, 0, v{vt2}")
        k.e("s_nop 1")
        k.e(f"v_cndmask_b32 v{vt0}, 0, v{vt0}, vcc")
    for r in VA + VB:
        for i in range(4):
            k.e(f"v_mov_b32 v{r+i}, v{vt0}")
    k.e(f"v_mov_b32 v{vIdx}, 0xdddddddd")
    k.e("s_mov_b32 s42, 0x0000ffff")
    k.e("s_mov_b32 s43, 0x0000ffff")
    k.e("s_mov_b32 s44, 0")
    k.e("s_mov_b32 s45, 0")
    hint_check(k, "a")
    k.stamp(2)
    k.e("s_waitcnt vmcnt(0)")
    k.e("s_barrier")
    k.e(f"ds_read_b128 {vr(KA,4)}, v{vK}")
    k.e("s_cmp_ge_u32 s24, 4")
    k.e(f"s_cbranch_scc1 {k.L('nob1')}")
    bulk(3, "bulk1")
    k.label("nob1")
    k.e(f"s_branch {k.L('prep1')}")
    k.label("prep1r")
    k.e("s_waitcnt lgkmcnt(0)")
    mfma32(k, SA, KA, Q, "0")
    k.e("s_nop 7")
    k.e("s_nop 3")
    k.e(f"v_max3_f32 v{vt0}, v{SA}, v{SA+1}, v{SA+2}")
    for i in range(3, 15, 2):
        k.e(f"v_max3_f32 v{vt0}, v{vt0}, v{SA+i}, v{SA+i+1}")
    k.e(f"v_max_f32 v{vt0}, v{vt0}, v{SA+15}")
    k.label("setm")
    k.e(f"ds_read_b128 {vr(KB,4)}, v{vK} offset:2048")
    k.e("s_mov_b64 exec, s[42:43]")
    k.e(f"ds_read_b128 {vr(VA[0],4)}, v{vV} offset:1024")
    k.e(f"ds_read_b128 {vr(VA[1],4)}, v{vV} offset:1536")
    k.e("s_mov_b64 exec, -1")
    k.e(f"v_mov_b32 v{vt1}, v{vt0}")
    k.e("s_nop 1")
    k.e(f"v_permlane32_swap_b32 v{vt0}, v{vt1}")
    k.e(f"v_max_f32 v{vt0}, v{vt0}, v{vt1}")
    for i in range(16):
        k.e(f"v_sub_f32 v{NM+i}, 0, v{vt0}")
    k.e("s_nop 1")
    mfma32(k, SA, KA, Q, NM)
    for i in range(16):
        k.e(f"v_mov_b32 v{O+i}, 0")
    for i in range(8, 16):
        k.e(f"v_mov_b32 v{SB+i}, 0")
    k.e("s_mov_b32 s41, 0")
    k.stamp(3)
    def smf(a, b):
        k.e(f"v_smfmac_f32_32x32x32_bf16 {vr(O,16)}, {vr(a,4)}, {vr(b,8)}, v{vIdx}")
    k.label("loop")
    for t in range(8):
        half = t & 1
        S, Sn = (SA, SB) if half == 0 else (SB, SA)
        Kn, Knn = (KB, KA) if half == 0 else (KA, KB)
        Vc, Vp = (VA, VB) if half == 0 else (VB, VA)
        base = t * 2048
        if half == 0:
            k.e(f"s_setprio {3 - t//2}")
        if t == 6:
            k.e("s_cmp_eq_u32 s41, s44")
            k.e(f"s_cbranch_scc1 {k.L('chk')}")
            k.label("back")
        for i in range(0, 3):
            k.e(f"v_exp_f32 v{S+i}, v{S+i}")
        smf(Vp[1], Sn + 8)
        for i in range(3, 8):
            k.e(f"v_exp_f32 v{S+i}, v{S+i}")
        k.e("s_waitcnt lgkmcnt(2)")
        mfma32(k, Sn, Kn, Q, NM)
        k.e(f"ds_read_b128 {vr(Knn,4)}, v{vK} offset:{base+4096}")
        for i in range(8, 13):
            k.e(f"v_exp_f32 v{S+i}, v{S+i}")
        k.e("s_waitcnt lgkmcnt(1)")
        smf(Vc[0], S)
        k.e("s_mov_b64 exec, s[42:43]")
        k.e(f"ds_read_b128 {vr(Vp[0],4)}, v{vV} offset:{base+2048+1024}")
        k.e(f"ds_read_b128 {vr(Vp[1],4)}, v{vV} offset:{base+2048+1536}")
        k.e("s_mov_b64 exec, -1")
        if t == 7:
            k.e(f"v_add_u32 v{vK}, 0x4000, v{vK}")
            k.e(f"v_add_u32 v{vV}, 0x4000, v{vV}")
            k.e("s_add_u32 s41, s41, 1")
            k.e("s_cmp_lt_u32 s41, 8")
        for i in range(13, 16):
            k.e(f"v_exp_f32 v{S+i}, v{S+i}")
    k.e(f"s_cbranch_scc1 {k.L('loop')}")
    k.stamp(4)
    k.e("s_nop 0")
    smf(VB[1], SB + 8)
    k.e("s_lshr_b32 s27, s26, 1")
    k.e("s_lshl_b32 s27, s27, 5")
    k.e("s_add_u32 s27, s27, s25")
    k.e("s_lshl_b32 s27, s27, 1")
    k.e("s_and_b32 s28, s26, 1")
    k.e("s_add_u32 s27, s27, s28")
    k.e("s_lshl_b32 s27, s27, 10")
    k.e(f"s_add_u32 s27, s27, {hex(WS_O)}")
    k.e("s_waitcnt lgkmcnt(0)")
    k.e(f"v_mov_b32 v{vt1}, {f32(2.0**60)}")
    k.e("s_nop 1")
    k.e(f"v_cmp_nlt_f32 vcc, v{O+8}, v{vt1}")
    k.e(f"v_rcp_f32 v{vt0}, v{O+8}")
    k.e(f"s_cbranch_vccnz {k.L('fb')}")
    k.label("fin")
    for i in range(8):
        k.e(f"v_mul_f32 v{O+i}, v{vt0}, v{O+i}")
    for i in range(4):
        k.e(f"v_cvt_pk_bf16_f32 v{O+i}, v{O+2*i}, v{O+2*i+1}")
    k.e(f"buffer_store_dwordx4 {vr(O,4)}, v{vL16}, s[20:23], s27 offen")
    k.stamp_flush(2)
    k.label("end")
    k.e("s_endpgm")
    k.label("fb")
    k.e("s_cmp_eq_u32 s45, 0")
    k.e(f"s_cbranch_scc0 {k.L('fin')}")
    k.e("s_mov_b32 s45, 1")
    k.e(f"v_mov_b32 v{vK}, v{vL16}")
    k.e(f"v_subrev_u32 v{vV}, 0x20000, v{vV}")
    k.e(f"v_mov_b32 v{vt0}, 0xff800000")
    k.e("s_mov_b32 s41, 0")
    k.label("fbloop")
    k.e(f"ds_read_b128 {vr(KA,4)}, v{vK}")
    k.e(f"v_add_u32 v{vK}, 2048, v{vK}")
    k.e("s_waitcnt lgkmcnt(0)")
    mfma32(k, SA, KA, Q, "0")
    k.e("s_add_u32 s41, s41, 1")
    k.e("s_cmp_lt_u32 s41, 64")
    k.e("s_nop 7")
    k.e("s_nop 3")
    for i in range(0, 16, 2):
        k.e(f"v_max3_f32 v{vt0}, v{vt0}, v{SA+i}, v{SA+i+1}")
    k.e(f"s_cbranch_scc1 {k.L('fbloop')}")
    k.e(f"v_mov_b32 v{vK}, v{vL16}")
    k.e(f"ds_read_b128 {vr(KA,4)}, v{vK}")
    k.e("s_waitcnt lgkmcnt(0)")
    k.e(f"s_branch {k.L('setm')}")
    k.label("chk")
    k.e("s_add_u32 s44, s44, 1")
    k.e("s_cmp_eq_u32 s41, 1")
    k.e(f"s_cbranch_scc1 {k.L('prep2')}")
    k.e("s_cmp_eq_u32 s41, 3")
    k.e(f"s_cbranch_scc1 {k.L('b2')}")
    k.e("s_cmp_lt_u32 s24, 4")
    k.e(f"s_cbranch_scc1 {k.L('b1a')}")
    k.e("s_barrier")
    bulk(4, "bulk2")
    k.e(f"s_branch {k.L('back')}")
    k.label("b1a")
    k.e("s_cmp_lg_u32 s24, 0")
    k.e(f"s_cbranch_scc1 {k.L('clm_skip')}")
    claim_issue(k)
    k.e("s_waitcnt vmcnt(4)")
    k.e("s_cmp_eq_u32 s46, 0")
    k.e(f"s_cbranch_scc0 {k.L('b1b')}")
    k.e("s_waitcnt vmcnt(0)")
    k.label("b1b")
    k.e("s_barrier")
    k.e(f"s_branch {k.L('back')}")
    k.label("prep1")
    k.e("s_sub_u32 s27, 7, s24")
    k.e("s_lshl_b32 s27, s27, 8")
    k.e("s_add_u32 s27, s27, s3")
    k.e("s_mov_b32 s46, 0")
    k.e("s_cmp_ge_u32 s27, 1176")
    k.e(f"s_cbranch_scc1 {k.L('prep1r')}")
    k.e("s_mov_b32 s46, 1")
    k.e(f"v_lshrrev_b32 v{vt1}, 5, v0")
    k.e(f"v_and_b32 v{vt0}, 31, v0")
    k.e("s_cmp_lt_u32 s27, 704")
    k.e(f"s_cbranch_scc0 {k.L('prepB')}")
    k.e("s_cmp_ge_u32 s27, 352")
    k.e("s_cselect_b32 s47, 256, 0")
    k.e("s_cselect_b32 s16, s14, s12")
    k.e("s_cselect_b32 s17, s15, s13")
    k.e("s_cselect_b32 s28, 352, 0")
    k.e("s_sub_u32 s27, s27, s28")
    k.e("s_and_b32 s34, s27, 15")
    k.e("s_lshr_b32 s32, s27, 4")
    k.e(f"s_mov_b32 s18, {512*2752}")
    k.e("s_mov_b32 s33, 2752")
    for p in range(2):
        k.e("s_lshl_b32 s27, s32, 1")
        if p: k.e("s_add_u32 s27, s27, 1")
        k.e("s_mul_i32 s28, s27, 43691")
        k.e("s_lshr_b32 s28, s28, 17")
        k.e("s_mul_i32 s35, s28, 186")
        k.e("s_lshl_b32 s28, s27, 1")
        k.e("s_add_u32 s35, s35, s28")
        k.e("s_mul_i32 s28, s34, 12")
        k.e("s_add_u32 s35, s35, s28")
        k.e("s_lshl_b32 s35, s35, 10")
        k.e(f"s_add_u32 s{36+p}, s35, {hex(WS_WGU)}")
    k.e("s_cmp_eq_u32 s32, 21")
    k.e(f"s_cselect_b32 s37, {hex(OOB)}, s37")
    k.e("s_mov_b32 s38, 6144")
    k.e(f"v_lshrrev_b32 v{vt2}, 4, v{vt0}")
    k.e(f"v_and_b32 v{vt3}, 15, v0")
    k.e(f"v_lshlrev_b32 v{vt3}, 4, v{vt3}")
    k.e(f"v_add_u32 v{vt3}, s47, v{vt3}")
    k.e(f"v_lshl_add_u32 v{vDst}, v{vt2}, 10, v{vt3}")
    k.e(f"v_lshl_add_u32 v{vDst}, v{vt1}, 9, v{vDst}")
    k.e(f"v_lshl_add_u32 v{vCs}, v{vt2}, 11, v{vt3}")
    k.e(f"v_lshl_add_u32 v{vCs}, v{vt1}, 12, v{vCs}")
    k.e("s_lshl_b32 s39, s32, 13")
    k.e("s_lshr_b32 s27, s34, 2")
    k.e("s_lshl_b32 s27, s27, 9")
    k.e("s_add_u32 s39, s39, s27")
    k.e("s_and_b32 s27, s34, 3")
    k.e("s_lshl_b32 s27, s27, 2")
    k.e("s_add_u32 s39, s39, s27")
    k.e(f"s_add_u32 s39, s39, {hex(WS_CS)}")
    k.e(f"s_branch {k.L('prepC')}")
    k.label("prepB")
    k.e("s_cmp_lt_u32 s27, 1048")
    k.e("s_cselect_b32 s16, s6, s4")
    k.e("s_cselect_b32 s17, s7, s5")
    k.e(f"s_mov_b32 s18, {512*1024}")
    k.e(f"s_cselect_b32 s18, {1376*1024}, s18")
    k.e("s_cselect_b32 s35, 86, 32")
    k.e("s_movk_i32 s28, 1048")
    k.e("s_cselect_b32 s28, 704, s28")
    k.e(f"s_mov_b32 s36, {hex(WS_WO)}")
    k.e(f"s_cselect_b32 s36, {hex(WS_WD)}, s36")
    k.e("s_sub_u32 s27, s27, s28")
    k.e("s_and_b32 s32, s27, 7")
    k.e("s_lshr_b32 s34, s27, 3")
    k.e("s_mov_b32 s33, 1024")
    k.e("s_mul_i32 s27, s32, s35")
    k.e("s_lshl_b32 s28, s34, 1")
    k.e("s_add_u32 s27, s27, s28")
    k.e("s_lshl_b32 s27, s27, 11")
    k.e("s_add_u32 s36, s36, s27")
    k.e("s_add_u32 s37, s36, 1024")
    k.e("s_mov_b32 s38, 2048")
    k.e(f"v_mov_b32 v{vDst}, v{vL16}")
    k.e(f"v_mov_b32 v{vCs}, 0")
    k.e(f"s_mov_b32 s39, {hex(OOB)}")
    k.label("prepC")
    k.e("s_mov_b32 s19, 0x00020000")
    k.e(f"v_lshrrev_b32 v{vt2}, 3, v0")
    k.e(f"v_mul_u32_u24 v{vSrc}, s33, v{vt2}")
    k.e(f"v_lshrrev_b32 v{vt2}, 2, v0")
    k.e(f"v_and_b32 v{vt2}, 4, v{vt2}")
    k.e(f"v_xor_b32 v{vt2}, v{vt2}, v0")
    k.e(f"v_and_b32 v{vt2}, 7, v{vt2}")
    k.e(f"v_lshl_add_u32 v{vSrc}, v{vt2}, 4, v{vSrc}")
    k.e("s_lshl_b32 s27, s34, 5")
    k.e("s_mul_i32 s27, s27, s33")
    k.e("s_lshl_b32 s28, s32, 7")
    k.e("s_add_u32 s27, s27, s28")
    k.e("s_lshl_b32 s33, s33, 3")
    k.e("s_lshl_b32 s28, s24, 12")
    k.e(f"s_add_u32 s28, s28, {STG}")
    for rb in range(4):
        k.e(f"s_add_u32 m0, s28, {rb*1024}")
        k.e("s_nop 0")
        k.e(f"buffer_load_dwordx4 v{vSrc}, s[16:19], s27 offen lds")
        k.e("s_add_u32 s27, s27, s33")
    k.e(f"v_and_b32 v{vt2}, 3, v0")
    k.e(f"v_lshlrev_b32 v{vSrc}, 3, v{vt2}")
    k.e(f"v_lshl_add_u32 v{vSrc}, v{vt1}, 9, v{vSrc}")
    k.e(f"v_bfe_u32 v{vt2}, v0, 2, 2")
    k.e(f"v_lshl_add_u32 v{vSrc}, v{vt2}, 7, v{vSrc}")
    k.e(f"v_bfe_u32 v{vt2}, v0, 3, 1")
    k.e(f"v_lshl_add_u32 v{vSrc}, v{vt2}, 6, v{vSrc}")
    k.e(f"v_bfe_u32 v{vt2}, v0, 4, 1")
    k.e(f"v_lshl_add_u32 v{vSrc}, v{vt2}, 5, v{vSrc}")
    k.e(f"v_add_u32 v{vSrc}, s28, v{vSrc}")
    k.e(f"s_branch {k.L('prep1r')}")
    k.label("prep2")
    k.e("s_mov_b32 s44, 3")
    k.e("s_cmp_eq_u32 s46, 0")
    k.e(f"s_cbranch_scc1 {k.L('back')}")
    k.e(f"v_xor_b32 v{vt2}, 64, v{vSrc}")
    k.e("s_waitcnt vmcnt(0)")
    for ksl in range(2):
        for p in range(2):
            r = PR[ksl*2+p]
            a = vSrc if p == 0 else vt2
            k.e(f"ds_read_b64_tr_b16 {vr(r,2)}, v{a} offset:{ksl*2048}")
            k.e(f"ds_read_b64_tr_b16 {vr(r+2,2)}, v{a} offset:{ksl*2048+1024}")
    k.e(f"v_mov_b32 v{vt0}, 0")
    k.e(f"v_mov_b32 v{vt1}, 0")
    k.e("s_mov_b32 s27, 0x3f803f80")
    k.e("s_waitcnt lgkmcnt(0)")
    for ksl in range(2):
        for p in range(2):
            r = PR[ksl*2+p]
            k.e(f"buffer_store_dwordx4 {vr(r,4)}, v{vDst}, s[20:23], s{36+p} offen {PREP_ST}")
            if ksl == 0:
                k.e(f"s_add_u32 s{36+p}, s{36+p}, s38")
            for i in range(4):
                k.e(f"v_dot2c_f32_bf16 v{vt0 if p == 0 else vt1}, s27, v{r+i}")
    k.e("s_nop 2")
    k.e(f"v_permlane32_swap_b32 v{vt0}, v{vt1}")
    k.e(f"v_add_f32 v{vt0}, v{vt0}, v{vt1}")
    k.e(f"buffer_store_dword v{vt0}, v{vCs}, s[20:23], s39 offen")
    k.e(f"s_branch {k.L('back')}")
    k.label("b2")
    k.e("s_cmp_lg_u32 s24, 0")
    k.e(f"s_cbranch_scc1 {k.L('clm_nov')}")
    claim_verdict(k, vt0, vt1, STG + 4096)
    k.label("clm_nov")
    k.e("s_waitcnt vmcnt(0)")
    k.e("s_barrier")
    claim_read(k, vt0, STG + 4096)
    k.e("s_waitcnt lgkmcnt(0)")
    claim_check(k, vt0)
    k.e("s_mov_b32 s44, 99")
    next_code_prefetch(k, 48, "k3_wo_kernel", "k5_down_kernel")
    if PREFETCH:
        k.e("s_lshr_b32 s27, s2, 3")
        k.e("s_lshl_b32 s27, s27, 3")
        k.e("s_add_u32 s27, s27, s24")
        k.e("s_and_b32 s28, s2, 1")
        for (base, half, per, reg) in ((WS_WO, 0x40000, 1024, PR[0]), (WS_WGU, 8*32*6144, 6144, PR[0]+1), (WS_WD, 4*86*2048, 2752, PR[0]+2)):
            nl = (per + 127) // 128
            k.e(f"s_mul_i32 s32, s28, {half}")
            k.e(f"s_mul_i32 s33, s27, {per}")
            k.e("s_add_u32 s32, s32, s33")
            k.e(f"s_add_u32 s32, s32, {hex(base)}")
            k.e(f"v_min_u32 v{vt0}, {nl-1 if per % 128 == 0 else nl}, v0")
            k.e(f"v_lshlrev_b32 v{vt0}, 7, v{vt0}")
            k.e(f"buffer_load_dword v{reg}, v{vt0}, s[20:23], s32 offen")
    k.e(f"s_branch {k.L('back')}")
    claim_redo(k)
    return k

def gen_gemm64(name, nks, act_off, w_off, mode):
    k = K(name)
    NSLOT = G64_NSLOT
    D = G64_D
    SLOT = 16384
    RES = NSLOT * SLOT
    k.lds = RES + 8192 + 64
    CLM = RES + 8192
    nst = (nks + 3) // 4
    assert nst % 2 == 0
    vl = k.v(); vt0 = k.v(); vt1 = k.v(); vL16 = k.v(); vAb = k.v(); vWb = k.v(); vA = k.v(); vW = k.v()
    vS = k.v(); vQ = k.v(); vO = k.v(); vt2 = k.v()
    vRa = k.v(4)
    R = k.v(8)
    acc = k.v(16)
    T = k.v(16)
    sets = [dict(A=[k.v(4) for _ in range(4)], W=[k.v(4) for _ in range(4)]) for _ in range(2)]
    k.e("s_cmp_ge_u32 s2, 256")
    k.e(f"s_cbranch_scc1 {k.L('end')}")
    k.stamp(0)
    k.tick()
    k.e("s_load_dwordx2 s[8:9], s[0:1], 72")
    k.e(f"s_load_dwordx2 s[4:5], s[0:1], {0 if mode == 'wo' else 56}")
    claim_begin(k)
    wave_setup(k, vt0)
    k.label("restart")
    tile_map_32x8(k, 25, 26, 27, 28)
    k.e(f"v_lshlrev_b32 v{vL16}, 4, v0")
    k.e("s_and_b32 s33, s24, 1")
    k.e("s_bfe_u32 s34, s24, 0x10001")
    def hf_offset():
        k.e("s_lshr_b32 s35, s25, 1")
        k.e("s_lshl_b32 s35, s35, 5")
        k.e("s_lshl_b32 s30, s26, 2")
        k.e("s_add_u32 s35, s35, s30")
        k.e("s_lshl_b32 s30, s34, 1")
        k.e("s_add_u32 s35, s35, s30")
        k.e("s_lshl_b32 s35, s35, 2")
        k.e("s_and_b32 s30, s25, 1")
        k.e("s_lshl_b32 s30, s30, 1")
        k.e("s_add_u32 s35, s35, s30")
        k.e("s_add_u32 s35, s35, s33")
        k.e("s_lshl_b32 s35, s35, 10")
        k.e(f"s_add_u32 s35, s35, {hex(WS_H)}")
    k.e("s_cmp_ge_u32 s24, 4")
    k.e(f"s_cbranch_scc1 {k.L('cons')}")
    split = 4 if mode == "wo" else 12
    k.e(f"s_mul_i32 s27, s25, {nks*2048}")
    k.e(f"s_add_u32 s27, s27, {hex(act_off)}")
    k.e(f"s_mul_i32 s30, s26, {nks*2048}")
    k.e(f"s_add_u32 s30, s30, {hex(w_off)}")
    k.e("s_cmp_eq_u32 s34, 0")
    k.e("s_cselect_b32 s30, s27, s30")
    k.e("s_lshl_b32 s29, s33, 12")
    k.e("s_lshl_b32 s32, s24, 12")
    k.e("s_bitcmp1_b32 s2, 0")
    k.e(f"s_cselect_b32 s31, {split*8192}, 0")
    k.e(f"s_cselect_b32 s36, 0, {split*8192}")
    k.e("s_add_u32 s31, s31, s29")
    nl = 16 if mode == "wo" else 48
    k.e("s_lshl_b32 s28, s28, 2")
    k.e("s_add_u32 s28, s28, s24")
    k.e(f"s_mul_i32 s28, s28, {nl*128}")
    k.e("s_add_u32 s27, s27, s28")
    k.e("s_add_u32 s27, s27, s36")
    k.e(f"s_mov_b32 s18, {nks*2048}")
    k.e("s_mov_b32 s19, 0x00020000")
    k.e("s_mov_b32 m0, s32")
    k.e("s_waitcnt lgkmcnt(0)")
    k.stamp(1)
    hint_load(k, "l")
    k.e("s_add_u32 s16, s8, s30")
    k.e("s_addc_u32 s17, s9, 0")
    nout = []
    def issue(q):
        if q:
            k.e(f"s_add_u32 m0, s32, {(q % NSLOT)*SLOT}")
            if q == nst - split:
                k.e("s_add_u32 s31, s31, 8192")
                k.e("s_bitcmp1_b32 s2, 0")
                k.e("s_cselect_b32 s31, s29, s31")
            else:
                k.e("s_add_u32 s31, s31, 8192")
        for g in range(4):
            k.e(f"buffer_load_dwordx4 v{vL16}, s[16:19], s31 offen offset:{g*1024} lds")
        nout.extend([q] * 4)
    pf = [f"s_load_dword s48, s[46:47], {i*128}" for i in range(nl)] if ACTPF else []
    def resid():
        k.e("s_lshl_b32 s27, s24, 11")
        k.e(f"s_add_u32 m0, s27, {RES}")
        if mode == "wo":
            srd(k, 12, 4, 2048 * 1024)
            k.e(f"v_lshrrev_b32 v{vt0}, 3, v0")
            k.e(f"v_xor_b32 v{vt1}, v{vt0}, v0")
            k.e(f"v_and_b32 v{vt1}, 7, v{vt1}")
            k.e(f"v_lshlrev_b32 v{vt0}, 10, v{vt0}")
            k.e(f"v_lshl_add_u32 v{vt0}, v{vt1}, 4, v{vt0}")
            k.e("s_lshl_b32 s27, s25, 16")
            k.e("s_lshl_b32 s28, s24, 14")
            k.e("s_add_u32 s27, s27, s28")
            k.e("s_lshl_b32 s28, s26, 7")
            k.e("s_add_u32 s27, s27, s28")
            k.e(f"buffer_load_dwordx4 v{vt0}, s[12:15], s27 offen lds")
            k.e(f"s_add_u32 s27, s27, {8192-1024}")
            k.e(f"buffer_load_dwordx4 v{vt0}, s[12:15], s27 offen offset:1024 lds")
        else:
            srd(k, 20, 8, WS_END)
            hf_offset()
            k.e(f"buffer_load_dwordx4 v{vL16}, s[20:23], s35 offen lds")
            k.e(f"s_add_u32 s35, s35, {4096-1024}")
            k.e(f"buffer_load_dwordx4 v{vL16}, s[20:23], s35 offen offset:1024 lds")
    for q in range(D):
        issue(q)
        if q == 0:
            hint_check(k, "l")
        if q == 1:
            k.e("s_add_u32 s46, s8, s27")
            k.e("s_addc_u32 s47, s9, 0")
            for x in pf[:14]: k.e(x)
    k.e("s_cmp_lg_u32 s24, 0")
    k.e(f"s_cbranch_scc1 {k.L('clm_skip')}")
    claim_issue(k)
    k.stamp(2)
    pi = 14
    for s in range(nst):
        if s == nst - 1:
            k.e("s_cmp_lg_u32 s24, 0")
            k.e(f"s_cbranch_scc1 {k.L('clm_nov')}")
            claim_verdict(k, vt0, vt1, CLM)
            k.label("clm_nov")
        last = max(i for i, t in enumerate(nout) if t <= s)
        k.e(f"s_waitcnt vmcnt({len(nout) - 1 - last})")
        k.e("s_barrier")
        if s != 10: k.tick()
        if s + D < nst:
            issue(s + D)
            if s == 0:
                resid()
                nout.extend([nst - 1] * 2)
            if s + D == nst - 1:
                k.stamp(3)
        if s == 1 and mode == "wo" and NCP >= 2:
            next_code_prefetch(k, 40, "k4_gu_kernel", "k4_gu_kernel")
        if s >= 1:
            for x in pf[pi:pi+6]: k.e(x)
            pi += 6
    k.stamp(4)
    claim_read(k, vt0, CLM)
    k.e("s_waitcnt lgkmcnt(0)")
    claim_check(k, vt0)
    k.tick_flush(int(name[1]))
    k.e(f"s_branch {k.L('fin')}")
    k.label("cons")
    k.e("s_lshl_b32 s27, s33, 10")
    k.e(f"v_add_u32 v{vAb}, s27, v{vL16}")
    k.e("s_lshl_b32 s27, s34, 10")
    k.e("s_add_u32 s27, s27, 8192")
    k.e(f"v_add_u32 v{vWb}, s27, v{vL16}")
    for z in range(acc, acc + 16):
        k.e(f"v_mov_b32 v{z}, 0")
    k.e("s_mov_b32 s38, 0")
    k.e("s_mov_b32 s41, 0xffff0000")
    k.e(f"v_and_b32 v{vt0}, 31, v0")
    k.e(f"v_lshrrev_b32 v{vt1}, 5, v0")
    if mode == "wo":
        hf_offset()
        k.e("s_add_u32 s36, s35, 4096")
        k.e("s_lshl_b32 s37, s25, 1")
        k.e("s_add_u32 s37, s37, s33")
        k.e("s_lshl_b32 s37, s37, 12")
        k.e("s_lshl_b32 s28, s26, 9")
        k.e("s_add_u32 s37, s37, s28")
        k.e("s_lshl_b32 s28, s34, 3")
        k.e("s_add_u32 s37, s37, s28")
        k.e(f"s_add_u32 s37, s37, {hex(WS_ST)}")
        k.e(f"v_and_b32 v{vt2}, 7, v0")
        k.e("s_lshl_b32 s27, s34, 2")
        k.e(f"v_xor_b32 v{vt2}, s27, v{vt2}")
        k.e(f"v_lshlrev_b32 v{vt2}, 4, v{vt2}")
        k.e(f"v_lshl_add_u32 v{vt2}, v{vt0}, 7, v{vt2}")
        k.e(f"v_lshl_add_u32 v{vt2}, v{vt1}, 3, v{vt2}")
        k.e("s_lshl_b32 s27, s33, 12")
        k.e(f"s_add_u32 s27, s27, {RES}")
        k.e(f"v_add_u32 v{vRa}, s27, v{vt2}")
        for j in range(1, 4):
            k.e(f"v_xor_b32 v{vRa+j}, {j*16}, v{vRa}")
        k.e(f"v_lshlrev_b32 v{vt0}, 4, v{vt0}")
        k.e(f"v_lshl_add_u32 v{vt0}, v{vt1}, 2, v{vt0}")
        k.e(f"v_mov_b32 v{vS}, 0")
        k.e(f"v_mov_b32 v{vQ}, 0")
        k.e("s_mov_b32 s42, 0x3f803f80")
        k.e("s_waitcnt lgkmcnt(0)")
        k.stamp(1)
        srd(k, 20, 8, WS_END)
    else:
        k.e(f"v_lshlrev_b32 v{vO}, 10, v{vt0}")
        k.e(f"v_lshl_add_u32 v{vO}, v{vt1}, 4, v{vO}")
        k.e("s_lshl_b32 s29, s25, 16")
        k.e("s_lshl_b32 s30, s33, 15")
        k.e("s_add_u32 s29, s29, s30")
        k.e("s_lshl_b32 s30, s26, 7")
        k.e("s_add_u32 s29, s29, s30")
        k.e("s_lshl_b32 s30, s34, 6")
        k.e("s_add_u32 s29, s29, s30")
        k.e("s_and_b32 s27, s24, 3")
        k.e("s_lshl_b32 s27, s27, 11")
        k.e(f"s_add_u32 s27, s27, {RES}")
        k.e(f"v_add_u32 v{vRa}, s27, v{vL16}")
        k.e("s_waitcnt lgkmcnt(0)")
        k.stamp(1)
        srd(k, 12, 4, 2048 * 1024)
    hint_load(k, "c")
    hint_check(k, "c")
    def pre_stage():
        return [f"v_add_u32 v{vA}, s38, v{vAb}", f"v_add_u32 v{vW}, s38, v{vWb}"] + adv(k, 38, SLOT, NSLOT*SLOT)
    def mf(i):
        S = sets[i]
        return [f"v_mfma_f32_32x32x16_bf16 {vr(acc,16)}, {vr(S['W'][j],4)}, {vr(S['A'][j],4)}, {vr(acc,16)}" for j in range(4)]
    def reads(i):
        S = sets[i]
        rd = []
        for j in range(4):
            rd.append(f"ds_read_b128 {vr(S['A'][j],4)}, v{vA} offset:{j*2048}")
            rd.append(f"ds_read_b128 {vr(S['W'][j],4)}, v{vW} offset:{j*2048}")
        return rd
    assert D <= NSLOT - 2
    consumer_loop_s(k, nst, pre_stage, reads, mf)
    if mode == "wo":
        for j in range(4):
            k.e(f"ds_read_b64 {vr(R+2*j,2)}, v{vRa+j}")
        nr = 4
    else:
        k.e(f"ds_read_b128 {vr(R,4)}, v{vRa}")
        k.e(f"ds_read_b128 {vr(R+4,4)}, v{vRa} offset:1024")
        nr = 2
    claim_read(k, vt2, CLM)
    nr += 1
    m = mf(1)
    for j in range(4):
        k.e(f"s_waitcnt lgkmcnt({6-2*j+nr})")
        k.e(m[j])
    k.e("s_waitcnt lgkmcnt(0)")
    claim_check(k, vt2)
    for i in range(8):
        k.e(f"v_lshlrev_b32 v{T+2*i}, 16, v{R+i}")
        k.e(f"v_and_b32 v{T+2*i+1}, s41, v{R+i}")
    for i in range(8):
        k.e(f"v_cvt_pk_bf16_f32 v{R+i}, v{acc+2*i}, v{acc+2*i+1}")
    for i in range(8):
        k.e(f"v_lshlrev_b32 v{acc+2*i}, 16, v{R+i}")
        k.e(f"v_and_b32 v{acc+2*i+1}, s41, v{R+i}")
    for i in range(0, 16, 2):
        k.e(f"v_pk_add_f32 {vr(acc+i,2)}, {vr(acc+i,2)}, {vr(T+i,2)}")
    for i in range(8):
        k.e(f"v_cvt_pk_bf16_f32 v{R+i}, v{acc+2*i}, v{acc+2*i+1}")
    if mode == "wo":
        k.e(f"buffer_store_dwordx4 {vr(R,4)}, v{vL16}, s[20:23], s35 offen")
        k.e(f"buffer_store_dwordx4 {vr(R+4,4)}, v{vL16}, s[20:23], s36 offen")
        for i in range(8):
            k.e(f"v_dot2c_f32_bf16 v{vS}, s42, v{R+i}")
            k.e(f"v_dot2c_f32_bf16 v{vQ}, v{R+i}, v{R+i}")
        k.e("s_nop 2")
        k.e(f"v_permlane32_swap_b32 v{vS}, v{vQ}")
        k.e(f"v_add_f32 v{vS}, v{vS}, v{vQ}")
        k.e(f"buffer_store_dword v{vS}, v{vt0}, s[20:23], s37 offen")
    else:
        k.e(f"v_permlane32_swap_b32 v{R}, v{R+2}")
        k.e(f"v_permlane32_swap_b32 v{R+1}, v{R+3}")
        k.e(f"buffer_store_dwordx4 {vr(R,4)}, v{vO}, s[12:15], s29 offen")
        k.e(f"v_permlane32_swap_b32 v{R+4}, v{R+6}")
        k.e(f"v_permlane32_swap_b32 v{R+5}, v{R+7}")
        k.e(f"buffer_store_dwordx4 {vr(R+4,4)}, v{vO}, s[12:15], s29 offen offset:32")
    k.label("fin")
    k.stamp_flush(int(name[1]))
    k.label("end")
    k.e("s_endpgm")
    claim_redo(k)
    return k

def gen_k4():
    k = K("k4_gu_kernel")
    NSLOT = 6
    D = 2
    SLOT = 20480
    MISC = NSLOT * SLOT
    MISC2 = MISC + 2048
    k.lds = MISC2 + 2048
    CLM = MISC2 + 1024
    vl = k.v(); vt0 = k.v(); vt1 = k.v(); vL16 = k.v(); vXb = k.v(); vWb = k.v(); vX = k.v(); vW = k.v()
    CC = [k.v(4), k.v(4)]
    T = k.v(8)
    BP = [k.v(4), k.v(4)]; AP = [k.v(4) for _ in range(3)]
    acc = [[k.v(16) for _ in range(3)] for _ in range(2)]
    sets = [dict(X=[[k.v(4) for _ in range(2)] for _ in range(2)], W=[[k.v(4) for _ in range(3)] for _ in range(2)]) for _ in range(2)]
    k.e("s_cmp_ge_u32 s2, 256")
    k.e(f"s_cbranch_scc1 {k.L('end')}")
    k.stamp(0)
    k.tick()
    k.e("s_load_dwordx2 s[8:9], s[0:1], 72")
    claim_begin(k)
    wave_setup(k, vt0)
    k.label("restart")
    k.e("s_and_b32 s26, s2, 1")
    k.e("s_lshl_b32 s26, s26, 3")
    k.e("s_lshr_b32 s28, s2, 5")
    k.e("s_add_u32 s26, s26, s28")
    k.e("s_cmp_ge_u32 s26, 15")
    k.e(f"s_cbranch_scc1 {k.L('empty')}")
    k.e("s_and_b32 s25, s2, 6")
    k.e("s_lshl_b32 s25, s25, 1")
    k.e("s_bfe_u32 s27, s2, 0x20003")
    k.e("s_add_u32 s25, s25, s27")
    k.e(f"v_lshlrev_b32 v{vL16}, 4, v0")
    k.e("s_cmp_ge_u32 s24, 4")
    k.e(f"s_cbranch_scc1 {k.L('cons')}")
    k.e("s_lshl_b32 s27, s25, 17")
    k.e(f"s_add_u32 s27, s27, {hex(WS_H)}")
    k.e(f"s_mul_i32 s31, s26, {32*6144}")
    k.e(f"s_add_u32 s31, s31, {hex(WS_WGU)}")
    k.e("s_lshl_b32 s29, s24, 11")
    k.e("s_mul_i32 s32, s24, 3072")
    k.e("s_add_u32 s30, s27, s29")
    k.e("s_add_u32 s31, s31, s32")
    k.e("s_add_u32 s32, s32, 8192")
    k.e("s_bitcmp1_b32 s2, 0")
    k.e("s_cselect_b32 s33, 0x10000, 0")
    k.e(f"s_cselect_b32 s34, {8*12288}, 0")
    k.e("s_cselect_b32 s36, 0, 0x10000")
    k.e("s_add_u32 s33, s33, s30")
    k.e("s_add_u32 s34, s34, s31")
    k.e("s_min_u32 s28, s28, 6")
    k.e("s_lshl_b32 s28, s28, 2")
    k.e("s_add_u32 s28, s28, s24")
    k.e(f"s_mul_i32 s28, s28, {19*128}")
    k.e("s_add_u32 s27, s27, s28")
    k.e("s_add_u32 s27, s27, s36")
    k.e(f"s_mov_b32 s22, {hex(WS_END)}")
    k.e("s_mov_b32 s23, 0x00020000")
    k.e("s_mov_b32 m0, s29")
    k.e("s_waitcnt lgkmcnt(0)")
    k.stamp(1)
    hint_load(k, "l")
    k.e("s_mov_b64 s[20:21], s[8:9]")
    nout = []
    def issue(q):
        if q:
            k.e(f"s_add_u32 m0, s29, {(q % NSLOT)*SLOT}")
            k.e("s_add_u32 s33, s33, 8192")
            if q == 8:
                k.e("s_bitcmp1_b32 s2, 0")
                k.e("s_cselect_b32 s33, s30, s33")
        for g in range(2):
            k.e(f"buffer_load_dwordx4 v{vL16}, s[20:23], s33 offen offset:{g*1024} lds")
        k.e(f"s_add_u32 m0, s32, {(q % NSLOT)*SLOT}")
        if q:
            k.e("s_add_u32 s34, s34, 12288")
            if q == 8:
                k.e("s_bitcmp1_b32 s2, 0")
                k.e("s_cselect_b32 s34, s31, s34")
        else:
            k.e("s_nop 0")
        for g in range(3):
            k.e(f"buffer_load_dwordx4 v{vL16}, s[20:23], s34 offen offset:{g*1024} lds")
        nout.extend([q] * 5)
    def wait_for(q):
        last = max(i for i, t in enumerate(nout) if t <= q)
        k.e(f"s_waitcnt vmcnt({len(nout) - 1 - last})")
        k.tick()
    pf = [f"s_load_dword s48, s[46:47], {i*128}" for i in range(19)] if ACTPF else []
    ST = acc[0][0]; CS = acc[0][1]
    def st_issue():
        k.e("s_lshl_b32 s27, s25, 2")
        k.e("s_add_u32 s27, s27, s24")
        k.e("s_lshl_b32 s27, s27, 12")
        k.e(f"s_add_u32 s27, s27, {hex(WS_ST)}")
        for q in range(4):
            k.e(f"buffer_load_dwordx4 {vr(ST+4*q,4)}, v{vL16}, s[20:23], s27 offen offset:{q*1024}")
        k.e("s_mul_i32 s27, s26, 3")
        k.e("s_min_u32 s28, s24, 2")
        k.e("s_add_u32 s27, s27, s28")
        k.e("s_lshl_b32 s27, s27, 12")
        k.e(f"s_add_u32 s27, s27, {hex(WS_CS)}")
        for q in range(4):
            k.e(f"buffer_load_dwordx4 {vr(CS+4*q,4)}, v{vL16}, s[20:23], s27 offen offset:{q*1024}")
    def st_proc():
        s = ST; t2 = T; t3 = T + 1; C = CC[0]; RS = T + 2
        for i in range(2, 16, 2):
            k.e(f"v_add_f32 v{s}, v{s}, v{s+i}")
            k.e(f"v_add_f32 v{s+1}, v{s+1}, v{s+i+1}")
        k.e(f"v_mov_b32 v{s+2}, v{s}")
        k.e(f"v_mov_b32 v{s+3}, v{s+1}")
        k.e("s_nop 1")
        k.e(f"v_permlane32_swap_b32 v{s}, v{s+2}")
        k.e(f"v_permlane32_swap_b32 v{s+1}, v{s+3}")
        k.e(f"v_add_f32 v{s}, v{s}, v{s+2}")
        k.e(f"v_add_f32 v{s+1}, v{s+1}, v{s+3}")
        ln_finish(k, s, s + 1, C, RS, t2, t3)
        A_ = -2.0 * 1.4426950408889634 * 0.7978845608028654
        k.e(f"v_mul_f32 v{C+3}, v{t2}, v{t2}")
        k.e(f"v_mul_f32 v{C+1}, {f32(A_)}, v{RS}")
        k.e(f"v_mul_f32 v{C+2}, v{RS}, v{RS}")
        k.e(f"v_mul_f32 v{C+2}, v{C+2}, v{C+1}")
        k.e(f"v_mul_f32 v{C+2}, {f32(0.044715)}, v{C+2}")
        k.e(f"v_and_b32 v{vt0}, 0x1ff, v{vL16}")
        k.e("s_lshl_b32 s27, s24, 9")
        k.e(f"s_add_u32 s27, s27, {MISC}")
        k.e(f"v_add_u32 v{vt0}, s27, v{vt0}")
        k.e(f"ds_write_b128 v{vt0}, {vr(C,4)}")
        for u in range(2):
            c = CS + 8 * u
            for i in range(1, 8):
                k.e(f"v_add_f32 v{c}, v{c}, v{c+i}")
        k.e("s_nop 1")
        k.e(f"v_permlane32_swap_b32 v{CS}, v{CS+8}")
        k.e(f"v_add_f32 v{CS}, v{CS}, v{CS+8}")
        split2(k, CS, CS + 1, t2)
        k.e("s_lshl_b32 s27, s28, 8")
        k.e(f"s_add_u32 s27, s27, {MISC2}")
        k.e(f"v_lshl_add_u32 v{vt0}, v0, 2, s27")
        k.e(f"ds_write_b32 v{vt0}, v{CS+1}")
        k.e("s_waitcnt lgkmcnt(0)")
    issue(0)
    hint_check(k, "l")
    issue(1)
    k.e("s_add_u32 s46, s8, s27")
    k.e("s_addc_u32 s47, s9, 0")
    for x in pf[:14]: k.e(x)
    issue(2)
    k.e("s_cmp_lg_u32 s24, 0")
    k.e(f"s_cbranch_scc1 {k.L('clm_skip')}")
    k.label("clm_iss")
    claim_issue(k)
    k.e("s_cmp_ge_u32 s26, 15")
    k.e(f"s_cbranch_scc1 {k.L('clm_ver')}")
    k.stamp(2)
    wait_for(0); k.e("s_barrier"); k.tick()
    issue(3)
    wait_for(1); k.e("s_barrier"); k.tick()
    issue(4); issue(5)
    for x in pf[14:]: k.e(x)
    for s in range(1, 8):
        if s == 7:
            k.e("s_cmp_lg_u32 s24, 0")
            k.e(f"s_cbranch_scc1 {k.L('clm_nov')}")
            k.label("clm_ver")
            claim_verdict(k, vt0, vt1, CLM)
            k.label("clm_nov")
        wait_for(2*s + 1); k.e("s_barrier"); k.tick()
        if 2*s + 4 < 16:
            issue(2*s + 4); issue(2*s + 5)
        if s == 2 and NCP >= 2:
            next_code_prefetch(k, 40, "k5_down_kernel", "k5_down_kernel")
        if s == 6:
            st_proc()
        if s == 4:
            st_issue()
            nout.extend([13] * 8)
        if s == 5:
            k.stamp(3)
    k.stamp(4)
    claim_read(k, vt0, CLM)
    k.e("s_waitcnt lgkmcnt(0)")
    claim_check(k, vt0)
    k.tick_flush(4)
    k.e(f"s_branch {k.L('fin')}")
    k.label("cons")
    k.e("s_and_b32 s33, s24, 1")
    k.e("s_bfe_u32 s34, s24, 0x10001")
    k.e("s_lshl_b32 s27, s33, 11")
    k.e(f"v_add_u32 v{vXb}, s27, v{vL16}")
    k.e("s_mul_i32 s27, s34, 3072")
    k.e("s_add_u32 s27, s27, 8192")
    k.e(f"v_add_u32 v{vWb}, s27, v{vL16}")
    k.e("s_mov_b32 s38, 0")
    for r in BP + AP:
        for i in (0, 1, 2, 3):
            k.e(f"v_mov_b32 v{r+i}, 0")
    k.e("s_nop 1")
    for b in range(2):
        for u in range(3):
            mfma32(k, acc[b][u], BP[0], BP[0], "0")
    k.e("s_mul_i32 s42, s26, 6")
    k.e("s_mul_i32 s43, s34, 3")
    k.e("s_add_u32 s42, s42, s43")
    k.e("s_lshl_b32 s27, s25, 1")
    k.e("s_add_u32 s27, s27, s33")
    k.e("s_mul_i32 s27, s27, 86")
    k.e("s_add_u32 s27, s27, s42")
    k.e("s_lshl_b32 s27, s27, 11")
    k.e(f"s_add_u32 s45, s27, {hex(WS_A)}")
    k.e("v_cmp_gt_u32 vcc, 32, v0")
    k.e(f"v_and_b32 v{vt0}, 0x1ff, v{vL16}")
    k.e("s_lshl_b32 s27, s33, 10")
    k.e(f"s_add_u32 s27, s27, {MISC}")
    k.e(f"v_add_u32 v{vt0}, s27, v{vt0}")
    k.e(f"v_and_b32 v{vt1}, 31, v0")
    k.e("s_mul_i32 s27, s34, 384")
    k.e(f"s_add_u32 s27, s27, {MISC2}")
    k.e(f"v_lshl_add_u32 v{vt1}, v{vt1}, 2, s27")
    k.e("s_waitcnt lgkmcnt(0)")
    k.stamp(1)
    srd(k, 20, 8, WS_END)
    hint_load(k, "c")
    hint_check(k, "c")
    def pre_stage(h):
        return [f"v_add_u32 v{vX}, s38, v{vXb}", f"v_add_u32 v{vW}, s38, v{vWb}"] + adv(k, 38, SLOT, NSLOT*SLOT)
    def mf(i):
        S = sets[i]
        r = []
        for kk in range(2):
            for u in range(3):
                for b in range(2):
                    r.append(f"v_mfma_f32_32x32x16_bf16 {vr(acc[b][u],16)}, {vr(S['W'][kk][u],4)}, {vr(S['X'][kk][b],4)}, {vr(acc[b][u],16)}")
        return r
    def reads(i):
        S = sets[i]
        rd = []
        for kk in range(2):
            for b in range(2):
                rd.append(f"ds_read_b128 {vr(S['X'][kk][b],4)}, v{vX} offset:{kk*4096+b*1024}")
            for u in range(3):
                rd.append(f"ds_read_b128 {vr(S['W'][kk][u],4)}, v{vW} offset:{kk*6144+u*1024}")
        return rd
    consumer_loop_m(k, 16, pre_stage, reads, mf, 2, barA=False)
    for b in range(2):
        k.e(f"ds_read_b128 {vr(CC[b],4)}, v{vt0} offset:{b*512}")
    for u in range(3):
        k.e(f"ds_read_b32 v{AP[u]}, v{vt1} offset:{u*128}")
    claim_read(k, vX, CLM)
    m = mf(1)
    for x in m[:6]: k.e(x)
    k.e("s_waitcnt lgkmcnt(0)")
    claim_check(k, vX)
    for b in range(2):
        k.e(f"v_cndmask_b32 v{BP[b]}, 0, v{CC[b]}, vcc")
    j = 6
    for u in range(3):
        for b in range(2):
            k.e(m[j]); j += 1
            mfma32(k, acc[b][u], AP[u], BP[b])
    for u in range(3):
        k.e("s_cmp_lt_u32 s42, 86")
        k.e(f"s_cselect_b32 s28, s45, {hex(OOB)}")
        k.e("s_add_u32 s42, s42, 1")
        k.e("s_add_u32 s45, s45, 2048")
        for b in range(2):
            a = acc[b][u]; C = CC[b]
            for i in range(0, 8, 2):
                k.e(f"v_pk_mul_f32 {vr(T+i,2)}, {vr(a+i,2)}, {vr(a+i,2)}")
            for i in range(0, 8, 2):
                k.e(f"v_pk_fma_f32 {vr(T+i,2)}, {vr(T+i,2)}, {vr(C+2,2)}, {vr(C,2)} op_sel:[0,0,1] op_sel_hi:[1,0,1]")
            for i in range(0, 8, 2):
                k.e(f"v_pk_mul_f32 {vr(T+i,2)}, {vr(T+i,2)}, {vr(a+i,2)}")
            for i in range(8):
                k.e(f"v_exp_f32 v{T+i}, v{T+i}")
            for i in range(0, 8, 2):
                k.e(f"v_pk_mul_f32 {vr(a+i,2)}, {vr(a+i,2)}, {vr(a+8+i,2)}")
            for i in range(0, 8, 2):
                k.e(f"v_pk_fma_f32 {vr(T+i,2)}, {vr(T+i,2)}, {vr(C+2,2)}, {vr(C+2,2)} op_sel:[0,1,1]")
            for i in range(8):
                k.e(f"v_rcp_f32 v{T+i}, v{T+i}")
            for i in range(0, 8, 2):
                k.e(f"v_pk_mul_f32 {vr(a+i,2)}, {vr(a+i,2)}, {vr(T+i,2)}")
            for i in range(4):
                k.e(f"v_cvt_pk_bf16_f32 v{a+i}, v{a+2*i}, v{a+2*i+1}")
            k.e(f"buffer_store_dwordx4 {vr(a,4)}, v{vL16}, s[20:23], s28 offen offset:{b*1024}")
    k.label("fin")
    k.stamp_flush(4)
    k.label("end")
    k.e("s_endpgm")
    k.label("empty")
    k.e("s_waitcnt lgkmcnt(0)")
    hint_load(k, "e")
    hint_check(k, "e")
    k.e("s_cmp_eq_u32 s24, 0")
    k.e(f"s_cbranch_scc1 {k.L('clm_iss')}")
    k.e(f"s_branch {k.L('clm_nov')}")
    claim_redo(k)
    return k

def gen_diag():
    k = K("k6_diag_kernel")
    k.lds = 0
    k.nv = 16
    k.e("s_cmp_ge_u32 s2, 1")
    k.e(f"s_cbranch_scc1 {k.L('end')}")
    k.e("s_load_dwordx2 s[8:9], s[0:1], 72")
    k.e("v_lshlrev_b32 v1, 4, v0")
    k.e("s_waitcnt lgkmcnt(0)")
    for n, spec in enumerate(DIAG.split(":")):
        if spec == "0":
            k.e(f"s_mov_b32 s{30+n}, 0")
            continue
        f = "secd".index(spec[0]); ki = int(spec[1])
        op = "min" if f == 0 else "max"
        k.e(f"s_add_u32 s12, s8, {hex(WS_DBG + ki*0x40000)}")
        k.e("s_addc_u32 s13, s9, 0")
        k.e("s_mov_b32 s14, 0x40000")
        k.e("s_mov_b32 s15, 0x00020000")
        k.e(f"v_mov_b32 v2, {-1 if f == 0 else 0}")
        k.e("s_mov_b32 s20, 0")
        k.label(f"l{n}")
        k.e(f"buffer_load_dword v3, v1, s[12:15], s20 offen offset:{4*f}")
        k.e("s_add_u32 s20, s20, 1024")
        k.e("s_waitcnt vmcnt(0)")
        k.e(f"v_{op}_u32 v2, v2, v3")
        k.e("s_cmp_lt_u32 s20, 32768")
        k.e(f"s_cbranch_scc1 {k.L('l%d' % n)}")
        k.e(f"s_mov_b32 s{30+n}, {-1 if f == 0 else 0}")
        k.e("s_mov_b32 s20, 0")
        k.label(f"r{n}")
        k.e("v_readlane_b32 s21, v2, s20")
        k.e("s_add_u32 s20, s20, 1")
        k.e(f"s_{op}_u32 s{30+n}, s{30+n}, s21")
        k.e("s_cmp_lt_u32 s20, 64")
        k.e(f"s_cbranch_scc1 {k.L('r%d' % n)}")
        if f == 2:
            k.e(f"s_lshr_b32 s{30+n}, s{30+n}, 4")
    k.e("s_sub_u32 s30, s30, s31")
    k.e("s_min_u32 s30, s30, 10000")
    k.e("s_mul_i32 s30, s30, 10")
    k.e("s_memrealtime s[22:23]")
    k.e("s_waitcnt lgkmcnt(0)")
    k.label("spin")
    k.e("s_memrealtime s[24:25]")
    k.e("s_waitcnt lgkmcnt(0)")
    k.e("s_sub_u32 s26, s24, s22")
    k.e("s_cmp_lt_u32 s26, s30")
    k.e(f"s_cbranch_scc1 {k.L('spin')}")
    k.label("end")
    k.e("s_endpgm")
    return k

def build():
    ks = [(gen_k1(), 768), (gen_k2(), 512),
          (gen_gemm64("k3_wo_kernel", 32, WS_O, WS_WO, "wo"), 512),
          (gen_k4(), 512),
          (gen_gemm64("k5_down_kernel", 86, WS_A, WS_WD, "down"), 512)]
    if DIAG:
        ks.append((gen_diag(), 64))
    ref = open(f"cdna_kernels/{NAME}.s.ref").read().splitlines()
    head = [l for l in ref if l.startswith(";") and "@launch" not in l and "Override" not in l and "grid=ceil" not in l]
    out = "\n".join(head) + "\n"
    for k, blk in ks:
        out += f"; @launch kernel={k.name} grid=({1 if k.name.startswith('k6') else 256},1,1) block=({blk},1,1) lds={k.lds}\n"
    out += '.amdgcn_target "amdgcn-amd-amdhsa--gfx950"\n'
    for k, blk in ks:
        out += k.text()
    return out

if __name__ == "__main__":
    if len(sys.argv) > 2 and sys.argv[2] == "stamp":
        STAMP = True
    out = build()
    path = sys.argv[1] if len(sys.argv) > 1 else f"cdna_kernels/{NAME}.s"
    open(path, "w").write(out)
    bad = hazard.check(out)
    print("hazards:", len(bad))
```

```python
import sys, struct, os
sys.path.insert(0, "g3")
import hazard

NAME = "sequential_preLN__softmax_full_mha__geglu_ffn__prompt"
def opt(n, d): return int(os.environ.get(n, str(d)))
FUSED = opt("FUSED", 1)
STAMP = opt("STAMP", 0)
NODMA = opt("NODMA", 0)

WS_Q   = 0x000000
WS_KV  = 0x200000
WS_O   = 0x600000
WS_H   = 0x800000
WS_ST  = 0xA00000
WS_CS  = 0xA40000
WS_FL  = 0xA80000
WS_FT  = 0xAC0000
WS_WO  = 0xB00000
WS_WD  = 0xC00000
WS_WGU = 0xE00000
WS_A   = 0x1200000
WS_END = 0x1800000
WS_DBG = 0x2000000
OOB    = 0x7FFF0000
SC = " sc1" if FUSED else ""

S_X, S_WQKV, S_WO, S_WG, S_WU, S_WD, S_OUT, S_DBG, S_WS = 64, 66, 68, 72, 74, 76, 78, 80, 82
S_NONCE = 84
SRD_WS = 20

def f32(x):
    return "0x%08x" % struct.unpack("<I", struct.pack("<f", x))[0]
def vr(b, n):
    return f"v[{b}:{b+n-1}]" if n > 1 else f"v{b}"

class K:
    def __init__(self, name):
        self.name = name
        self.lines = []
        self.nv = 0
        self.maxv = 0
        self.lds = 0
        self.ph = "p"
        self.bars = {}
        self.role = None
        self.nst = {}
    def phase(self, p):
        self.ph = p
        self.nv = 0
    def e(self, s):
        if NODMA and s.endswith(" lds"):
            s = "s_nop 0"
        self.lines.append("    " + s)
    def bar(self, n=1):
        for _ in range(n):
            self.e("s_barrier")
    def label(self, l):
        self.lines.append(f"{self.L(l)}:")
    def L(self, l):
        return f"{self.name}_{self.ph}_{l}"
    def v(self, n=1):
        align = 1 if n == 1 else (2 if n == 2 else 4)
        self.nv = (self.nv + align - 1) // align * align
        r = self.nv
        self.nv += n
        self.maxv = max(self.maxv, self.nv)
        return r
    def use_lds(self, n):
        assert n <= 163840, n
        self.lds = max(self.lds, n)
    def stamp(self, idx):
        if not STAMP:
            return
        self.e("s_memtime s[86:87]" if STAMP == 1 else "s_memrealtime s[86:87]")
        self.e("s_waitcnt lgkmcnt(0)")
        self.e(f"v_writelane_b32 v167, s86, {idx}")
        self.maxv = 168
    def stamp_rt(self, idx):
        if not STAMP:
            return
        self.e("s_memrealtime s[86:87]")
        self.e("s_waitcnt lgkmcnt(0)")
        self.e(f"v_writelane_b32 v167, s86, {idx}")
    def stamp_flush(self, kidx):
        if not STAMP:
            return
        self.e("s_waitcnt vmcnt(0) lgkmcnt(0)")
        self.stamp(62)
        self.stamp_rt(63)
        self.e(f"s_add_u32 s56, s{S_WS}, {hex(WS_DBG + kidx*0x100000)}")
        self.e(f"s_addc_u32 s57, s{S_WS+1}, 0")
        self.e("s_mov_b32 s58, 0x100000")
        self.e("s_mov_b32 s59, 0x00020000")
        self.e("s_lshl_b32 s60, s2, 4")
        self.e("s_add_u32 s60, s60, s24")
        self.e("s_lshl_b32 s60, s60, 8")
        self.e("v_lshlrev_b32 v1, 2, v0")
        self.e("buffer_store_dword v167, v1, s[56:59], s60 offen")
    def text(self):
        nv = max(self.maxv, 8)
        assert nv <= 168, nv
        acc = (nv + 3) // 4 * 4
        head = f""".text
.globl {self.name}
.p2align 8
.type {self.name},@function
{self.name}:
"""
        tail = f"""
.section .rodata,"a"
.p2align 6
.amdhsa_kernel {self.name}
  .amdhsa_next_free_vgpr {nv}
  .amdhsa_next_free_sgpr 96
  .amdhsa_accum_offset {acc}
  .amdhsa_group_segment_fixed_size 0
  .amdhsa_kernarg_size 80
  .amdhsa_user_sgpr_count 2
  .amdhsa_user_sgpr_kernarg_segment_ptr 1
  .amdhsa_system_sgpr_workgroup_id_x 1
.end_amdhsa_kernel
"""
        return head + "\n".join(self.lines) + tail

def srd(k, d, base, nbytes):
    k.e(f"s_mov_b64 s[{d}:{d+1}], s[{base}:{base+1}]")
    k.e(f"s_mov_b32 s{d+2}, {hex(nbytes)}")
    k.e(f"s_mov_b32 s{d+3}, 0x00020000")

def mfma32(d, a, b, c=None):
    cs = vr(d, 16) if c is None else (c if isinstance(c, str) else vr(c, 16))
    return f"v_mfma_f32_32x32x16_bf16 {vr(d,16)}, {vr(a,4)}, {vr(b,4)}, {cs}"

def spread(k, mains, reads, others, rper, oper):
    ri = oi = 0
    for m in mains:
        k.e(m)
        n = 0
        while ri < len(reads) and n < rper:
            k.e(reads[ri]); ri += 1; n += 1
        if ri >= len(reads):
            while oi < len(others) and n < oper:
                k.e(others[oi]); oi += 1; n += 1
    for x in reads[ri:] + others[oi:]:
        k.e(x)

def entry(k):
    k.e("s_cmp_ge_u32 s2, 256")
    k.e(f"s_cbranch_scc1 {k.name}_exit")
    k.e("s_load_dwordx16 s[64:79], s[0:1], 0")
    k.e("s_load_dwordx4 s[80:83], s[0:1], 64")
    k.e("v_lshrrev_b32 v1, 6, v0")
    k.e("v_and_b32 v0, 63, v0")
    k.e("v_readfirstlane_b32 s24, v1")
    k.e(f"s_mov_b32 s22, {hex(WS_END)}")
    k.e("s_mov_b32 s23, 0x00020000")
    if STAMP:
        k.e("v_mov_b32 v167, 0")
        k.e("s_memtime s[88:89]" if STAMP == 1 else "s_memrealtime s[88:89]")
    k.first = True

def args_ready(k):
    if k.first:
        k.e("s_waitcnt lgkmcnt(0)")
        k.e(f"s_mov_b64 s[20:21], s[{S_WS}:{S_WS+1}]")
        if STAMP:
            k.e("v_writelane_b32 v167, s88, 0")

def finish(k, kidx):
    k.stamp_flush(kidx)
    k.lines.append(f"{k.name}_exit:")
    k.e("s_endpgm")

def tile_map_32x8(k):
    k.e("s_and_b32 s25, s2, 6")
    k.e("s_lshl_b32 s25, s25, 2")
    k.e("s_bfe_u32 s27, s2, 0x30003")
    k.e("s_add_u32 s25, s25, s27")
    k.e("s_and_b32 s26, s2, 1")
    k.e("s_lshl_b32 s26, s26, 2")
    k.e("s_lshr_b32 s28, s2, 6")
    k.e("s_add_u32 s26, s26, s28")

def ln_finish(k, vS, vQ, vNegM, vRstd, t0):
    k.e(f"v_mul_f32 v{vS}, {f32(1.0/512)}, v{vS}")
    k.e(f"v_mul_f32 v{vQ}, {f32(1.0/512)}, v{vQ}")
    k.e(f"v_fma_f32 v{vQ}, -v{vS}, v{vS}, v{vQ}")
    k.e(f"v_max_f32 v{vQ}, 0, v{vQ}")
    k.e(f"v_cvt_pk_bf16_f32 v{vNegM}, -v{vS}, -v{vS}")
    k.e(f"v_cvt_pk_bf16_f32 v{t0}, v{vQ}, v{vQ}")
    k.e(f"v_lshlrev_b32 v{t0}, 16, v{t0}")
    k.e(f"v_add_f32 v{t0}, {f32(1e-5)}, v{t0}")
    k.e(f"v_cvt_pk_bf16_f32 v{t0}, v{t0}, v{t0}")
    k.e(f"v_lshlrev_b32 v{t0}, 16, v{t0}")
    k.e(f"v_sqrt_f32 v{t0}, v{t0}")
    k.e("s_nop 0")
    k.e(f"v_cvt_pk_bf16_f32 v{t0}, v{t0}, v{t0}")
    k.e(f"v_lshlrev_b32 v{t0}, 16, v{t0}")
    k.e(f"v_rcp_f32 v{vRstd}, v{t0}")
    k.e("s_nop 0")

def split2(k, vcs, vdst, t0):
    k.e(f"v_cvt_pk_bf16_f32 v{t0}, v{vcs}, v{vcs}")
    k.e(f"v_lshlrev_b32 v{t0}, 16, v{t0}")
    k.e(f"v_sub_f32 v{t0}, v{vcs}, v{t0}")
    k.e(f"v_cvt_pk_bf16_f32 v{vdst}, v{vcs}, v{t0}")

def pkmul_bcast(k, d, s):
    if s % 2 == 0:
        k.e(f"v_pk_mul_f32 {vr(d,2)}, {vr(d,2)}, {vr(s,2)} op_sel_hi:[1,0]")
    else:
        k.e(f"v_pk_mul_f32 {vr(d,2)}, {vr(d,2)}, {vr(s-1,2)} op_sel:[0,1]")

class VQ:
    def __init__(self, k):
        self.k = k; self.q = []
    def add(self, tag, n=1):
        self.q += [tag] * n
    def wait(self, pred):
        idx = [i for i, t in enumerate(self.q) if pred(t)]
        if not idx:
            return
        n = len(self.q) - 1 - max(idx)
        assert n <= 63
        self.k.e(f"s_waitcnt vmcnt({n})")
        self.q = self.q[max(idx) + 1:]
    def drain(self):
        self.q = []

def publish(k, ph, slot_sreg, va, vb):
    if not FUSED:
        return
    k.e("s_lshl_b32 s62, s2, 7")
    k.e(f"s_lshl_b32 s63, s{slot_sreg}, 3")
    k.e("s_add_u32 s62, s62, s63")
    k.e(f"s_add_u32 s62, s62, {hex(WS_FL + ph*0x8000)}")
    k.e(f"v_mov_b32 v{va}, s{S_NONCE}")
    k.e(f"v_mov_b32 v{va+1}, s{S_NONCE+1}")
    k.e(f"v_mov_b32 v{vb}, 0")
    k.e("s_mov_b64 exec, 1")
    k.e("s_waitcnt vmcnt(0)")
    k.e(f"buffer_store_dwordx2 {vr(va,2)}, v{vb}, s[20:23], s62 offen sc1")
    k.e("s_mov_b64 exec, -1")

def poll(k, tag, vaddr, vd, soff, sleep=0):
    if not FUSED:
        return
    k.e("s_mov_b32 s63, 0x8000")
    k.label("poll_" + tag)
    k.e(f"buffer_load_dwordx2 {vr(vd,2)}, v{vaddr}, s[20:23], {soff} offen sc1")
    k.e("s_sub_u32 s63, s63, 1")
    k.e("s_waitcnt vmcnt(0)")
    k.e(f"v_cmp_ne_u64 vcc, s[{S_NONCE}:{S_NONCE+1}], {vr(vd,2)}")
    k.e(f"s_cbranch_scc1 {k.L('polld_' + tag)}")
    k.e(f"s_cbranch_vccz {k.L('polld_' + tag)}")
    k.e("s_mov_b64 exec, vcc")
    if sleep:
        k.e(f"s_sleep {sleep}")
    k.e(f"s_branch {k.L('poll_' + tag)}")
    k.label("polld_" + tag)
    k.e("s_mov_b64 exec, -1")

def poll0(k, tag, vaddr, vd, soff, st):
    if not FUSED:
        return
    k.e("s_cmp_lg_u32 s24, 0")
    k.e(f"s_cbranch_scc1 {k.L('nop_' + tag)}")
    k.stamp(st)
    poll(k, tag, vaddr, vd, soff, sleep=POLLSLEEP)
    k.label("nop_" + tag)
    k.bar()
    k.stamp(st + 1)

POLLSLEEP = opt("POLLSLEEP", 1)
KB = 1024
P4_X = [i * 8 * KB for i in range(6)]
P4_W = [104*KB, 116*KB, 128*KB, 140*KB, 48*KB, 60*KB, 72*KB, 84*KB]
P4_MISC = 96 * KB
P5_W = [x * KB for x in (152, 104, 112, 120, 128, 136, 144, 32, 40, 48, 56, 64)]
P5_A = [x * KB for x in (0, 8, 16, 24, 72, 80, 88)]
P5_RES = 96 * KB
P3_W = [x * KB for x in (128, 136, 144, 152, 64, 72, 80, 88)]
P3_A = [i * 8 * KB for i in range(8)]
P3_RES = 96 * KB
```

```python
from base import *
K1_D = opt("K1_D", 4)
TLBW = opt("TLBW", 2)
def phase1(k):
    k.phase("p1")
    XP = 1040
    XH = 32 * XP
    WBASE = 2 * XH
    NSLOT = 7
    D = K1_D
    SLOT = 12288
    MISC = 0
    MISC2 = 2048
    k.use_lds(WBASE + NSLOT * SLOT)
    vl = k.v(); vt0 = k.v(); vt1 = k.v(); vt2 = k.v()
    vL16 = k.v()
    vXp = [k.v(), k.v()]; vXm = [k.v(), k.v()]
    vW0 = [k.v(), k.v()]; vW1 = [k.v(), k.v()]
    vR = k.v(2); vR2 = vR + 1
    sel = k.v(4)
    cs = [k.v(4) for _ in range(3)]
    acc = [k.v(16) for _ in range(3)]
    sets = [dict(XA=k.v(4), XB=k.v(4), WA=[k.v(4) for _ in range(3)], WB=[k.v(4) for _ in range(3)]) for _ in range(2)]
    BP = k.v(4); AP = [k.v(4) for _ in range(3)]
    vN = k.v(2)
    RR = sets[0]['WA'][0]
    def tag_read():
        if FUSED:
            k.e(f"v_mov_b32 v{vN}, {MISC+512}")
            k.e(f"ds_read_b64 {vr(vN,2)}, v{vN}")
    def tag_take():
        if FUSED:
            k.e(f"v_readfirstlane_b32 s{S_NONCE}, v{vN}")
            k.e(f"v_readfirstlane_b32 s{S_NONCE+1}, v{vN+1}")
    tile_map_32x8(k)
    k.e(f"v_lshrrev_b32 v{vt1}, 5, v0")
    k.e("s_cmp_ge_u32 s24, 4")
    k.e(f"s_cbranch_scc1 {k.L('cons')}")
    vWg = vXp[0]; vXg = vXp[1]
    k.e(f"v_lshrrev_b32 v{vt0}, 3, v0")
    k.e(f"v_mul_u32_u24 v{vWg}, 3072, v{vt0}")
    k.e(f"v_lshrrev_b32 v{vt0}, 2, v0")
    k.e(f"v_and_b32 v{vt0}, 4, v{vt0}")
    k.e(f"v_xor_b32 v{vt0}, v{vt0}, v0")
    k.e(f"v_and_b32 v{vt0}, 7, v{vt0}")
    k.e(f"v_lshl_add_u32 v{vWg}, v{vt0}, 4, v{vWg}")
    k.e(f"v_lshlrev_b32 v{vt0}, 3, v{vt1}")
    k.e(f"v_xor_b32 v{vt0}, v{vt0}, v0")
    k.e(f"v_lshl_add_u32 v{vt0}, s27, 2, v{vt0}")
    k.e(f"v_and_b32 v{vt0}, 31, v{vt0}")
    k.e(f"v_lshlrev_b32 v{vXg}, 10, v{vt1}")
    k.e(f"v_lshl_add_u32 v{vXg}, v{vt0}, 4, v{vXg}")
    k.e("s_lshl_b32 s31, s25, 16")
    k.e("s_lshl_b32 s36, s24, 11")
    k.e("s_add_u32 s31, s31, s36")
    k.e(f"s_mul_i32 s29, s24, {XP}")
    for g in range(4):
        k.e(f"s_add_u32 s36, s28, {g}")
        k.e("s_and_b32 s36, s36, 3")
        k.e(f"s_mul_i32 s{44+g}, s36, {8*XP}")
        k.e(f"s_add_u32 s{44+g}, s{44+g}, s29")
        k.e("s_lshl_b32 s36, s36, 14")
        k.e(f"s_add_u32 s{48+g}, s36, s31")
    k.e(f"s_mul_i32 s32, s24, {8*3072}")
    k.e("s_lshl_b32 s33, s26, 7")
    k.e("s_add_u32 s32, s32, s33")
    k.e(f"s_mul_i32 s33, s27, {32*3072}")
    k.e("s_add_u32 s33, s33, s32")
    k.e(f"s_add_u32 s35, s32, {256*3072}")
    k.e("s_mul_i32 s34, s24, 3072")
    k.e(f"s_add_u32 s34, s34, {WBASE}")
    k.e(f"s_mov_b32 s14, {2048*1024}")
    k.e("s_mov_b32 s15, 0x00020000")
    k.e(f"s_mov_b32 s18, {512*3072}")
    k.e("s_mov_b32 s19, 0x00020000")
    args_ready(k)
    k.e(f"s_mov_b64 s[12:13], s[{S_X}:{S_X+1}]")
    k.e(f"s_mov_b64 s[16:17], s[{S_WQKV}:{S_WQKV+1}]")
    q = VQ(k)
    def xgrp(g, half):
        k.e(f"s_add_u32 m0, s{44+g}, {half*(XH-512)}")
        k.e(f"s_add_u32 s36, s{48+g}, 8192")
        k.e(f"buffer_load_dwordx4 v{vXg}, s[12:15], s{48+g} offen offset:{half*512} lds")
        k.e(f"s_add_u32 m0, s{44+g}, {half*(XH-512) + 4*XP}")
        k.e("s_nop 0")
        k.e(f"buffer_load_dwordx4 v{vXg}, s[12:15], s36 offen offset:{half*512} lds")
        q.add(0 if half == 0 else 5, 2)
    def wstage(s):
        k.e(f"s_add_u32 m0, s34, {(s % NSLOT)*SLOT}")
        k.e(f"s_add_u32 s36, s33, {32*3072}")
        for g in range(3):
            k.e(f"buffer_load_dwordx4 v{vWg}, s[16:19], s33 offen offset:{g*1024} lds")
        if s < 15:
            k.e("s_cmp_eq_u32 s36, s35")
            k.e("s_cselect_b32 s33, s32, s36")
        if s == 7:
            k.e(f"s_add_u32 s33, s33, {256*3072}")
            k.e("s_mov_b32 s32, s35")
            k.e(f"s_add_u32 s35, s35, {256*3072}")
        q.add(s, 3)
    xgrp(0, 0); wstage(0)
    for g in (1, 2, 3): xgrp(g, 0)
    for s in range(1, D): wstage(s)
    for s in range(16):
        q.wait(lambda t: t <= s)
        k.bar()
        if STAMP == 1 or s in (0, 15): k.stamp(1 + s)
        if s < 2:
            xgrp(2*s, 1); xgrp(2*s+1, 1)
        if s + D < 16:
            wstage(s + D)
        if s == TLBW:
            k.e("s_mul_i32 s36, s24, 0x600000")
            k.e(f"s_add_u32 s38, s{S_WS}, s36")
            k.e(f"s_addc_u32 s39, s{S_WS+1}, 0")
            k.e("s_mov_b32 s36, 0x200000")
            k.e("s_mov_b32 s37, 0x400000")
            k.e("s_load_dword s40, s[38:39], 0")
            k.e("s_load_dword s40, s[38:39], s36")
            k.e("s_load_dword s40, s[38:39], s37")
            for p, sz in ((S_WO, 512*1024), (S_WG, 512*2752), (S_WU, 512*2752), (S_WD, 1376*1024), (S_OUT, 2048*1024)):
                k.e(f"s_mul_i32 s36, s24, {(sz // 3 - 64) & ~63}")
                k.e(f"s_load_dword s40, s[{p}:{p+1}], s36")
    k.label("tail")
    tag_read()
    if FUSED:
        k.e("s_waitcnt lgkmcnt(0)")
        tag_take()
        k.bar()
        k.e("s_cmp_lt_u32 s24, 4")
        k.e(f"s_cbranch_scc1 {k.L('done')}")
        k.bar()
    k.e(f"s_branch {k.L('done')}")
    k.label("stat")
    k.e("s_setprio 3")
    vSum = vXp[0]; vSq = vXp[1]; vSum2 = vXm[0]; vSq2 = vXm[1]; vXs = vW0[0]
    k.e("s_and_b32 s29, s24, 3")
    k.e(f"v_and_b32 v{vt0}, 15, v0")
    k.e(f"v_lshrrev_b32 v{vt2}, 1, v{vt0}")
    k.e(f"v_mul_u32_u24 v{vXs}, {XP}, v{vt2}")
    k.e(f"v_and_b32 v{vt2}, 1, v0")
    k.e(f"v_lshl_add_u32 v{vXs}, v{vt2}, 9, v{vXs}")
    k.e(f"v_lshrrev_b32 v{vt1}, 4, v0")
    k.e(f"v_xor_b32 v{vt1}, v{vt1}, v{vt2}")
    k.e(f"v_lshl_add_u32 v{vXs}, v{vt1}, 7, v{vXs}")
    k.e(f"s_mul_i32 s36, s29, {8*XP}")
    k.e(f"v_add_u32 v{vXs}, s36, v{vXs}")
    for z in (vSum, vSq, vSum2, vSq2):
        k.e(f"v_mov_b32 v{z}, 0")
    k.e("s_mov_b32 s41, 0xffff0000")
    k.e("s_mov_b32 s40, 0")
    args_ready(k)
    vZ = vW0[1]
    if FUSED:
        srd(k, 12, S_DBG, 256)
        k.e(f"v_mov_b32 v{vZ}, 0")
        k.e("s_lshl_b32 s36, s2, 4")
        k.e("s_add_u32 s36, s36, s24")
        k.e("s_cmp_lg_u32 s36, 8")
        k.e(f"s_cbranch_scc1 {k.L('notag')}")
        k.e("s_memrealtime s[36:37]")
        k.e("s_waitcnt lgkmcnt(0)")
        k.e("s_or_b32 s37, s37, 0x40000000")
        k.e(f"v_mov_b32 v{vN}, s36")
        k.e(f"v_mov_b32 v{vN+1}, s37")
        k.e(f"buffer_store_dwordx2 {vr(vN,2)}, v{vZ}, s[12:15], 0 offen sc1")
        k.e("s_waitcnt vmcnt(0)")
        k.label("notag")
    XS = [sets[0]['XA'], sets[0]['XB']]
    tl = [sets[1]['XA'] + i for i in range(4)]
    def proc(X):
        for i in range(4):
            a, b = tl[(2*i) % 4], tl[(2*i+1) % 4]
            x = X + i
            for ln in [f"v_lshlrev_b32 v{a}, 16, v{x}", f"v_and_b32 v{b}, s41, v{x}",
                       f"v_fmac_f32 v{vSq}, v{a}, v{a}", f"v_fmac_f32 v{vSq2}, v{b}, v{b}",
                       f"v_add_f32 v{vSum}, v{vSum}, v{a}", f"v_add_f32 v{vSum2}, v{vSum2}, v{b}"]:
                k.e(ln)
    k.bar()
    k.e(f"ds_read_b128 {vr(XS[0],4)}, v{vXs}")
    if FUSED:
        k.e(f"buffer_load_dwordx2 {vr(vN,2)}, v{vZ}, s[12:15], 0 offen sc1")
    k.label("sloop")
    k.e("s_waitcnt lgkmcnt(0)")
    k.e(f"ds_read_b128 {vr(XS[1],4)}, v{vXs} offset:16")
    k.e("s_cmp_eq_u32 s40, 3")
    k.e(f"s_cselect_b32 s36, {XH-96}, 32")
    k.e(f"v_add_u32 v{vXs}, s36, v{vXs}")
    k.e("s_cmp_lt_u32 s40, 2")
    proc(XS[0])
    k.e(f"s_cbranch_scc1 {k.L('snb')}")
    k.bar()
    k.label("snb")
    k.e("s_waitcnt lgkmcnt(0)")
    k.e(f"ds_read_b128 {vr(XS[0],4)}, v{vXs}")
    k.e("s_add_u32 s40, s40, 1")
    k.e("s_cmp_lt_u32 s40, 8")
    proc(XS[1])
    k.bar()
    k.e(f"s_cbranch_scc1 {k.L('sloop')}")
    k.e(f"v_add_f32 v{vSum}, v{vSum}, v{vSum2}")
    k.e(f"v_add_f32 v{vSq}, v{vSq}, v{vSq2}")
    k.e("s_nop 1")
    k.e(f"v_permlane32_swap_b32 v{vSum}, v{vSq}")
    k.e(f"v_add_f32 v{vSum}, v{vSum}, v{vSq}")
    k.e(f"v_mov_b32 v{vSq}, v{vSum}")
    k.e("s_nop 1")
    k.e(f"v_permlane16_swap_b32 v{vSum}, v{vSq}")
    k.e(f"v_add_f32 v{vSum}, v{vSum}, v{vSq}")
    k.e(f"v_mov_b32 v{vSq}, v{vSum}")
    k.e("s_nop 1")
    k.e(f"v_permlane32_swap_b32 v{vSum}, v{vSq}")
    ln_finish(k, vSum, vSq, vSum2, vSq2, vt2)
    k.e("s_lshl_b32 s36, s29, 6")
    k.e(f"v_lshl_add_u32 v{vt0}, v{vt0}, 2, s36")
    k.e(f"ds_write2_b32 v{vt0}, v{vSum2}, v{vSq2} offset0:{MISC//4} offset1:{MISC//4+64}")
    if FUSED:
        k.e("s_mov_b32 s63, 0x8000")
        k.label("tagw")
        k.e("s_waitcnt vmcnt(0)")
        k.e(f"v_cmp_eq_u32 vcc, 0, v{vN+1}")
        k.e("s_sub_u32 s63, s63, 1")
        k.e(f"s_cbranch_scc1 {k.L('tagok')}")
        k.e(f"s_cbranch_vccz {k.L('tagok')}")
        k.e(f"buffer_load_dwordx2 {vr(vN,2)}, v{vZ}, s[12:15], 0 offen sc1")
        k.e(f"s_branch {k.L('tagw')}")
        k.label("tagok")
        k.e(f"ds_write_b64 v{vZ}, {vr(vN,2)} offset:{MISC+512}")
    k.e("s_waitcnt lgkmcnt(0)")
    k.e("s_setprio 0")
    k.bar()
    k.e(f"s_branch {k.L('tail')}")
    k.label("cons")
    k.e("s_cmp_ge_u32 s24, 8")
    k.e(f"s_cbranch_scc1 {k.L('stat')}")
    k.e(f"v_lshlrev_b32 v{vL16}, 4, v0")
    k.e("s_and_b32 s33, s24, 1")
    k.e("s_bfe_u32 s34, s24, 0x10001")
    k.e("s_xor_b32 s35, s33, s34")
    k.e(f"v_bfe_u32 v{vt0}, v0, 1, 4")
    k.e(f"v_mul_u32_u24 v{vt2}, {XP}, v{vt0}")
    k.e(f"v_lshl_add_u32 v{vt2}, v{vt1}, 4, v{vt2}")
    k.e(f"v_and_b32 v{vt0}, 1, v0")
    k.e(f"v_mul_u32_u24 v{vXp[0]}, {512+128}, v{vt0}")
    k.e(f"v_mul_u32_u24 v{vXm[0]}, {512-128}, v{vt0}")
    k.e(f"s_mul_i32 s36, s33, {16*XP}")
    k.e("s_lshl_b32 s37, s35, 5")
    k.e("s_add_u32 s38, s36, s37")
    k.e("s_xor_b32 s37, s37, 32")
    k.e("s_add_u32 s39, s36, s37")
    k.e(f"v_add3_u32 v{vXp[1]}, v{vXp[0]}, v{vt2}, s39")
    k.e(f"v_add3_u32 v{vXm[1]}, v{vXm[0]}, v{vt2}, s39")
    k.e(f"v_add3_u32 v{vXp[0]}, v{vXp[0]}, v{vt2}, s38")
    k.e(f"v_add3_u32 v{vXm[0]}, v{vXm[0]}, v{vt2}, s38")
    w = vW1[1]
    k.e(f"v_mul_u32_u24 v{w}, 3072, v{vt1}")
    k.e(f"v_bfe_u32 v{vt0}, v0, 2, 2")
    k.e(f"v_lshl_add_u32 v{w}, v{vt0}, 7, v{w}")
    k.e(f"v_bfe_u32 v{vt0}, v0, 3, 1")
    k.e(f"v_xor_b32 v{vt0}, s34, v{vt0}")
    k.e(f"v_lshl_add_u32 v{w}, v{vt0}, 6, v{w}")
    k.e(f"v_bfe_u32 v{vt0}, v0, 4, 1")
    k.e(f"v_lshl_add_u32 v{w}, v{vt0}, 5, v{w}")
    k.e(f"v_and_b32 v{vt2}, 3, v0")
    k.e(f"v_lshl_add_u32 v{w}, v{vt2}, 3, v{w}")
    k.e("s_mul_i32 s28, s35, 6144")
    k.e(f"s_add_u32 s36, s28, {WBASE}")
    k.e(f"s_sub_u32 s37, {WBASE+6144}, s28")
    k.e(f"v_add_u32 v{vW0[0]}, s36, v{w}")
    k.e(f"v_add_u32 v{vW0[1]}, s37, v{w}")
    k.e(f"v_add_u32 v{vW1[0]}, {4*SLOT}, v{vW0[0]}")
    k.e(f"v_add_u32 v{vW1[1]}, {4*SLOT}, v{vW0[1]}")
    k.e(f"v_bfe_u32 v{vt2}, v0, 2, 1")
    k.e(f"v_cmp_eq_u32 vcc, v{vt0}, v{vt2}")
    k.e(f"v_mov_b32 v{vt2}, 0x3f803f80")
    k.e("s_nop 0")
    k.e(f"v_cndmask_b32 v{sel}, 0, v{vt2}, vcc")
    for i in range(1, 4):
        k.e(f"v_mov_b32 v{sel+i}, v{sel}")
    for z in list(range(BP, BP + 16)):
        k.e(f"v_mov_b32 v{z}, 0")
    k.e("s_lshl_b32 s27, s26, 2")
    k.e("s_lshl_b32 s28, s34, 1")
    k.e("s_add_u32 s27, s27, s28")
    k.e("s_lshl_b32 s27, s27, 6")
    k.e("s_lshl_b32 s28, s25, 1")
    k.e("s_add_u32 s27, s27, s28")
    k.e("s_add_u32 s27, s27, s33")
    k.e("s_lshl_b32 s42, s27, 10")
    k.e("s_add_u32 s43, s42, 0x10000")
    k.e("s_lshl_b32 s44, s27, 11")
    k.e(f"s_add_u32 s44, s44, {hex(WS_KV)}")
    k.e("s_add_u32 s45, s44, 0x20000")
    k.e("s_and_b32 s46, s24, 3")
    args_ready(k)
    def big(S, first=False):
        r = []
        for n, (X, W) in enumerate(((S['XA'], S['WA']), (S['XB'], S['WB']))):
            c = "0" if (first and n == 0) else None
            r += [mfma32(acc[0], W[0], X, c), mfma32(acc[1], W[1], X, c), mfma32(acc[2], X, W[2], c)]
        return r
    def small(S, first=False):
        return [f"v_mfma_f32_16x16x32_bf16 {vr(cs[g],4)}, {vr(sel,4)}, {vr(S['WA'][g],4)}, {'0' if first else vr(cs[g],4)}" for g in range(3)]
    def reads(s):
        S = sets[s & 1]
        koff = (s & 7) * 64
        xb = vXm if (koff & 128) else vXp
        xo = (s >> 3) * XH + koff
        sl = s % NSLOT
        wb, wo = (vW0, sl * SLOT) if sl < 4 else (vW1, (sl - 4) * SLOT)
        r = []
        for n, (X, W) in enumerate((('XA', 'WA'), ('XB', 'WB'))):
            r.append(f"ds_read_b128 {vr(S[X],4)}, v{xb[n]} offset:{xo}")
            for g in range(3):
                r.append(f"ds_read_b64_tr_b16 {vr(S[W][g],2)}, v{wb[n]} offset:{wo+g*1024}")
                r.append(f"ds_read_b64_tr_b16 {vr(S[W][g]+2,2)}, v{wb[n]} offset:{wo+g*1024+512}")
        return r
    k.bar()
    for x in reads(0): k.e(x)
    k.e("s_waitcnt lgkmcnt(0)")
    for s in range(15):
        k.bar()
        b = big(sets[s & 1], s == 0); sm = small(sets[s & 1], s == 0)
        m = b[:5] + sm + b[5:]
        spread(k, m[:-1], reads(s + 1), [], 3, 5)
        k.e("s_waitcnt lgkmcnt(0)")
        k.e(m[-1])
    k.stamp(1)
    for m in small(sets[1]): k.e(m)
    k.e(f"v_and_b32 v{vt0}, 31, v0")
    k.e("s_lshl_b32 s27, s33, 7")
    k.e(f"v_lshl_add_u32 v{vt0}, v{vt0}, 2, s27")
    k.e(f"v_lshl_add_u32 v{vt1}, v{vt1}, 4, s27")
    bg = big(sets[1])
    k.e(bg[0])
    k.e(f"ds_read_b32 v{BP}, v{vt0} offset:{MISC}")
    k.e(f"ds_read_b32 v{vR}, v{vt0} offset:{MISC+256}")
    tag_read()
    for j in range(4):
        k.e(f"ds_read_b128 {vr(RR+4*j,4)}, v{vt1} offset:{MISC+256+j*32}")
    T = sets[0]['XA']; B = sets[0]['XB']
    k.e(bg[1])
    k.e("s_lshl_b32 s27, s46, 10")
    k.e(f"v_add_u32 v{vt1}, s27, v{vL16}")
    for g in range(3):
        k.e(f"v_mov_b32 v{T+g}, v{cs[g]}")
    k.e(f"ds_write_b128 v{vt1}, {vr(T,4)} offset:{MISC2}")
    k.e(bg[2])
    k.e(f"v_xor_b32 v{vt1}, 1024, v{vt1}")
    k.e("v_cmp_gt_u32 vcc, 32, v0")
    k.e("s_waitcnt lgkmcnt(0)")
    k.e(bg[3])
    k.bar()
    k.e(f"ds_read_b128 {vr(B,4)}, v{vt1} offset:{MISC2}")
    k.e(bg[4])
    k.e(f"v_cndmask_b32 v{BP}, 0, v{BP}, vcc")
    k.e(f"v_mul_f32 v{vR2}, {f32(0.25*1.4426950408889634)}, v{vR}")
    k.e(f"v_bfe_u32 v{vt0}, v0, 4, 1")
    k.e(f"v_lshlrev_b32 v{vt0}, 17, v{vt0}")
    k.e(f"v_lshrrev_b32 v{vt1}, 5, v0")
    k.e(bg[5])
    k.e(f"v_lshl_add_u32 v{vt0}, v{vt1}, 8, v{vt0}")
    k.e(f"v_and_b32 v{vt1}, 15, v0")
    k.e(f"v_lshl_add_u32 v{vt0}, v{vt1}, 4, v{vt0}")
    tag_take()
    k.e("s_waitcnt lgkmcnt(0)")
    order = [1, 2, 0]
    for n, g in enumerate(order):
        k.e(f"v_add_f32 v{T+g}, v{T+g}, v{B+g}")
        split2(k, T + g, AP[g], vt2)
        if n:
            p = order[n-1]
            k.e(mfma32(acc[p], BP, AP[p]) if p == 2 else mfma32(acc[p], AP[p], BP))
    k.e("s_nop 0")
    k.e(mfma32(acc[0], AP[0], BP))
    k.e("s_nop 4")
    def qk(b, sc, soffs, plain):
        for i in range(0, 16, 2):
            if i < plain:
                k.e(f"v_mul_f32 v{acc[b]+i}, v{sc}, v{acc[b]+i}")
                k.e(f"v_mul_f32 v{acc[b]+i+1}, v{sc}, v{acc[b]+i+1}")
            else:
                pkmul_bcast(k, acc[b] + i, sc)
        for i in range(8):
            k.e(f"v_cvt_pk_bf16_f32 v{acc[b]+i}, v{acc[b]+2*i}, v{acc[b]+2*i+1}")
        k.e(f"buffer_store_dwordx4 {vr(acc[b],4)}, v{vL16}, s[20:23], s{soffs[0]} offen{SC}")
        k.e(f"buffer_store_dwordx4 {vr(acc[b]+4,4)}, v{vL16}, s[20:23], s{soffs[1]} offen{SC}")
    qk(1, vR, (44, 45), 8)
    a = acc[2]
    for i in range(0, 16, 2):
        k.e(f"v_pk_mul_f32 {vr(a+i,2)}, {vr(a+i,2)}, {vr(RR+i,2)}")
    for i in range(8):
        k.e(f"v_cvt_pk_bf16_f32 v{a+i}, v{a+2*i}, v{a+2*i+1}")
    k.e(f"v_permlane32_swap_b32 v{a}, v{a+2}")
    k.e(f"v_permlane32_swap_b32 v{a+1}, v{a+3}")
    k.e(f"buffer_store_dwordx4 {vr(a,4)}, v{vt0}, s[20:23], s44 offen offset:1024{SC}")
    k.e(f"v_permlane32_swap_b32 v{a+4}, v{a+6}")
    k.e(f"v_permlane32_swap_b32 v{a+5}, v{a+7}")
    k.e(f"buffer_store_dwordx4 {vr(a+4,4)}, v{vt0}, s[20:23], s44 offen offset:1536{SC}")
    qk(0, vR2, (42, 43), 0)
    k.stamp(2)
    publish(k, 0, 46, vN, vt0)
    k.stamp(3)
    if FUSED: k.bar()
    k.label("done")
    k.first = False
```

```python
from base import *
PREFETCH = opt("PREFETCH", 1)
STG = 131072
def ft_poll(k, tag, vA, vD, kind):
    if not FUSED:
        return
    if kind in "od":
        k.e(f"v_min_u32 v{vA}, {15 if kind == 'o' else 42}, v0")
        k.e(f"v_lshlrev_b32 v{vA}, 6, v{vA}")
        k.e("s_lshl_b32 s62, s26, 3")
        k.e(f"s_add_u32 s62, s62, {hex(WS_FT + (1048 if kind == 'o' else 704)*8)}")
    else:
        k.e("s_mul_i32 s62, s26, 3")
        k.e(f"v_lshrrev_b32 v{vA}, 5, v0")
        k.e(f"v_lshl_add_u32 v{vA}, v{vA}, 1, s62")
        k.e(f"v_lshrrev_b32 v{vA}, 1, v{vA}")
        k.e(f"v_min_u32 v{vA}, 21, v{vA}")
        k.e(f"v_lshlrev_b32 v{vA}, 4, v{vA}")
        k.e(f"v_bfe_u32 v{vD}, v0, 4, 1")
        k.e(f"v_mul_u32_u24 v{vD}, 352, v{vD}")
        k.e(f"v_and_b32 v{vD+1}, 15, v0")
        k.e(f"v_add3_u32 v{vA}, v{vA}, v{vD}, v{vD+1}")
        k.e(f"v_lshlrev_b32 v{vA}, 3, v{vA}")
        k.e(f"s_mov_b32 s62, {hex(WS_FT)}")
    poll(k, tag, vA, vD, "s62", sleep=8)

def phase2(k, p3_preload):
    k.phase("p2")
    k.use_lds(STG + 32768)
    PST = STG + 8192
    vl = k.v(); vt0 = k.v(); vt1 = k.v(); vL16 = k.v(); vK = k.v(); vV = k.v(); vSrc = k.v(); vDst = k.v()
    vIdx = k.v(); vCs = k.v(); vt2 = k.v(); vt3 = k.v()
    vP = k.v(2)
    Q = k.v(4); KA = k.v(4); KB = k.v(4)
    VA = [k.v(4), k.v(4)]; VB = [k.v(4), k.v(4)]
    NM = k.v(16); SA = k.v(16); SB = k.v(16); O = k.v(16)
    PR = [NM + 4*i for i in range(4)]
    k.e(f"v_lshlrev_b32 v{vL16}, 4, v0")
    k.e("s_and_b32 s25, s2, 1")
    k.e("s_lshl_b32 s25, s25, 4")
    k.e("s_bfe_u32 s27, s2, 0x40003")
    k.e("s_add_u32 s25, s25, s27")
    k.e("s_and_b32 s40, s2, 6")
    k.e("s_lshr_b32 s26, s2, 7")
    k.e("s_add_u32 s26, s26, s40")
    k.e("s_cmp_ge_u32 s24, 4")
    k.e(f"s_cbranch_scc1 {k.L('comp')}")
    def prepA(r, dma=True, slot4=False):
        k.e(f"v_lshrrev_b32 v{vt1}, 5, v0")
        k.e("s_mov_b32 s27, s46")
        k.e(f"v_and_b32 v{vt0}, 31, v0")
        k.e("s_cmp_lt_u32 s27, 704")
        k.e(f"s_cbranch_scc0 {k.L('prepB' + r)}")
        k.e("s_cmp_ge_u32 s27, 352")
        k.e("s_cselect_b32 s47, 256, 0")
        k.e(f"s_cselect_b64 s[16:17], s[{S_WU}:{S_WU+1}], s[{S_WG}:{S_WG+1}]")
        k.e("s_cselect_b32 s28, 352, 0")
        k.e("s_sub_u32 s27, s27, s28")
        k.e("s_and_b32 s34, s27, 15")
        k.e("s_lshr_b32 s32, s27, 4")
        k.e(f"s_mov_b32 s18, {512*2752}")
        k.e("s_mov_b32 s33, 2752")
        for p in range(2):
            k.e("s_lshl_b32 s27, s32, 1")
            if p: k.e("s_add_u32 s27, s27, 1")
            k.e("s_mul_i32 s28, s27, 43691")
            k.e("s_lshr_b32 s28, s28, 17")
            k.e("s_mul_i32 s35, s28, 186")
            k.e("s_lshl_b32 s28, s27, 1")
            k.e("s_add_u32 s35, s35, s28")
            k.e("s_mul_i32 s28, s34, 12")
            k.e("s_add_u32 s35, s35, s28")
            k.e("s_lshl_b32 s35, s35, 10")
            k.e(f"s_add_u32 s{36+p}, s35, {hex(WS_WGU)}")
        k.e("s_cmp_eq_u32 s32, 21")
        k.e(f"s_cselect_b32 s37, {hex(OOB)}, s37")
        k.e("s_mov_b32 s38, 6144")
        k.e(f"v_lshrrev_b32 v{vt2}, 4, v{vt0}")
        k.e(f"v_and_b32 v{vt3}, 15, v0")
        k.e(f"v_lshlrev_b32 v{vt3}, 4, v{vt3}")
        k.e(f"v_add_u32 v{vt3}, s47, v{vt3}")
        k.e(f"v_lshl_add_u32 v{vDst}, v{vt2}, 10, v{vt3}")
        k.e(f"v_lshl_add_u32 v{vDst}, v{vt1}, 9, v{vDst}")
        k.e(f"v_lshl_add_u32 v{vCs}, v{vt2}, 11, v{vt3}")
        k.e(f"v_lshl_add_u32 v{vCs}, v{vt1}, 12, v{vCs}")
        k.e("s_lshl_b32 s39, s32, 13")
        k.e("s_lshr_b32 s27, s34, 2")
        k.e("s_lshl_b32 s27, s27, 9")
        k.e("s_add_u32 s39, s39, s27")
        k.e("s_and_b32 s27, s34, 3")
        k.e("s_lshl_b32 s27, s27, 2")
        k.e("s_add_u32 s39, s39, s27")
        k.e(f"s_add_u32 s39, s39, {hex(WS_CS)}")
        k.e(f"s_branch {k.L('prepC' + r)}")
        k.label("prepB" + r)
        k.e("s_cmp_lt_u32 s27, 1048")
        k.e(f"s_cselect_b64 s[16:17], s[{S_WD}:{S_WD+1}], s[{S_WO}:{S_WO+1}]")
        k.e(f"s_mov_b32 s18, {512*1024}")
        k.e(f"s_cselect_b32 s18, {1376*1024}, s18")
        k.e("s_cselect_b32 s35, 86, 32")
        k.e("s_movk_i32 s28, 1048")
        k.e("s_cselect_b32 s28, 704, s28")
        k.e(f"s_mov_b32 s36, {hex(WS_WO)}")
        k.e(f"s_cselect_b32 s36, {hex(WS_WD)}, s36")
        k.e("s_sub_u32 s27, s27, s28")
        k.e("s_and_b32 s32, s27, 7")
        k.e("s_lshr_b32 s34, s27, 3")
        k.e("s_mov_b32 s33, 1024")
        k.e("s_mul_i32 s27, s32, s35")
        k.e("s_lshl_b32 s28, s34, 1")
        k.e("s_add_u32 s27, s27, s28")
        k.e("s_lshl_b32 s27, s27, 11")
        k.e("s_add_u32 s36, s36, s27")
        k.e("s_add_u32 s37, s36, 1024")
        k.e("s_mov_b32 s38, 2048")
        k.e(f"v_mov_b32 v{vDst}, v{vL16}")
        k.e(f"v_mov_b32 v{vCs}, 0")
        k.e(f"s_mov_b32 s39, {hex(OOB)}")
        k.label("prepC" + r)
        k.e("s_mov_b32 s19, 0x00020000")
        k.e(f"v_lshrrev_b32 v{vt2}, 3, v0")
        k.e(f"v_mul_u32_u24 v{vSrc}, s33, v{vt2}")
        k.e(f"v_lshrrev_b32 v{vt2}, 2, v0")
        k.e(f"v_and_b32 v{vt2}, 4, v{vt2}")
        k.e(f"v_xor_b32 v{vt2}, v{vt2}, v0")
        k.e(f"v_and_b32 v{vt2}, 7, v{vt2}")
        k.e(f"v_lshl_add_u32 v{vSrc}, v{vt2}, 4, v{vSrc}")
        k.e("s_lshl_b32 s27, s34, 5")
        k.e("s_mul_i32 s27, s27, s33")
        k.e("s_lshl_b32 s28, s32, 7")
        k.e("s_add_u32 s27, s27, s28")
        k.e("s_lshl_b32 s33, s33, 3")
        k.e("s_lshl_b32 s28, s24, 12")
        k.e(f"s_add_u32 s28, s28, {PST + (4096 if slot4 else 0)}")
        for rb in range(4 if dma else 0):
            k.e(f"s_add_u32 m0, s28, {rb*1024}")
            k.e("s_nop 0")
            k.e(f"buffer_load_dwordx4 v{vSrc}, s[16:19], s27 offen lds")
            k.e("s_add_u32 s27, s27, s33")
        k.e(f"v_and_b32 v{vt2}, 3, v0")
        k.e(f"v_lshlrev_b32 v{vSrc}, 3, v{vt2}")
        k.e(f"v_lshl_add_u32 v{vSrc}, v{vt1}, 9, v{vSrc}")
        k.e(f"v_bfe_u32 v{vt2}, v0, 2, 2")
        k.e(f"v_lshl_add_u32 v{vSrc}, v{vt2}, 7, v{vSrc}")
        k.e(f"v_bfe_u32 v{vt2}, v0, 3, 1")
        k.e(f"v_lshl_add_u32 v{vSrc}, v{vt2}, 6, v{vSrc}")
        k.e(f"v_bfe_u32 v{vt2}, v0, 4, 1")
        k.e(f"v_lshl_add_u32 v{vSrc}, v{vt2}, 5, v{vSrc}")
        k.e(f"v_add_u32 v{vSrc}, s28, v{vSrc}")
    def prepB():
        k.e(f"v_xor_b32 v{vt2}, 64, v{vSrc}")
        k.e(f"v_mov_b32 v{vt0}, 0")
        k.e(f"v_mov_b32 v{vt3}, 0")
        k.e("s_mov_b32 s27, 0x3f803f80")
        k.e("s_waitcnt vmcnt(0)")
        for ksl in range(2):
            for p in range(2):
                r = PR[ksl*2+p]
                a = vSrc if p == 0 else vt2
                k.e(f"ds_read_b64_tr_b16 {vr(r,2)}, v{a} offset:{ksl*2048}")
                k.e(f"ds_read_b64_tr_b16 {vr(r+2,2)}, v{a} offset:{ksl*2048+1024}")
        k.e("s_waitcnt lgkmcnt(0)")
        for ksl in range(2):
            for p in range(2):
                r = PR[ksl*2+p]
                k.e(f"buffer_store_dwordx4 {vr(r,4)}, v{vDst}, s[20:23], s{36+p} offen sc1")
                if ksl == 0:
                    k.e(f"s_add_u32 s{36+p}, s{36+p}, s38")
                for i in range(4):
                    k.e(f"v_dot2c_f32_bf16 v{vt0 if p == 0 else vt3}, s27, v{r+i}")
        k.e("s_nop 2")
        k.e(f"v_permlane32_swap_b32 v{vt0}, v{vt3}")
        k.e(f"v_add_f32 v{vt0}, v{vt0}, v{vt3}")
        k.e(f"buffer_store_dword v{vt0}, v{vCs}, s[20:23], s39 offen sc1")
        if FUSED:
            k.e("s_lshl_b32 s27, s46, 3")
            k.e(f"s_add_u32 s27, s27, {hex(WS_FT)}")
            k.e(f"v_mov_b32 v{vP}, s{S_NONCE}")
            k.e(f"v_mov_b32 v{vP+1}, s{S_NONCE+1}")
            k.e(f"v_mov_b32 v{vt2}, 0")
            k.e("s_mov_b64 exec, 1")
            k.e("s_waitcnt vmcnt(0)")
            k.e(f"buffer_store_dwordx2 {vr(vP,2)}, v{vt2}, s[20:23], s27 offen sc1")
            k.e("s_mov_b64 exec, -1")
    k.e("s_setprio 3")
    k.e("s_sub_u32 s46, 3, s24")
    k.e("s_lshl_b32 s46, s46, 8")
    k.e("s_add_u32 s46, s46, s2")
    k.e("s_lshl_b32 s27, s25, 6")
    k.e("s_lshl_b32 s28, s26, 3")
    k.e("s_add_u32 s27, s27, s28")
    k.e("s_lshl_b32 s28, s27, 10")
    k.e("s_lshl_b32 s30, s24, 11")
    k.e("s_add_u32 s28, s28, s30")
    k.e(f"s_add_u32 s31, s30, {STG}")
    k.e("s_lshl_b32 s29, s25, 17")
    k.e(f"s_add_u32 s29, s29, {hex(WS_KV)}")
    k.e("s_lshl_b32 s30, s24, 12")
    k.e("s_add_u32 s29, s29, s30")
    k.e("s_lshl_b32 s40, s40, 14")
    if FUSED:
        k.e(f"v_lshrrev_b32 v{vK}, 4, v0")
        k.e(f"v_lshlrev_b32 v{vK}, 8, v{vK}")
        k.e(f"v_bfe_u32 v{vt1}, v0, 1, 3")
        k.e(f"v_lshl_add_u32 v{vK}, v{vt1}, 10, v{vK}")
        k.e(f"v_and_b32 v{vt1}, 1, v0")
        k.e(f"v_lshl_add_u32 v{vK}, v{vt1}, 3, v{vK}")
        k.e("s_lshr_b32 s32, s25, 4")
        k.e("s_lshl_b32 s32, s32, 7")
        k.e("s_bfe_u32 s33, s25, 0x20002")
        k.e("s_lshl_b32 s33, s33, 13")
        k.e("s_add_u32 s32, s32, s33")
        k.e("s_and_b32 s33, s25, 2")
        k.e("s_lshl_b32 s33, s33, 3")
        k.e("s_add_u32 s32, s32, s33")
        k.e(f"s_add_u32 s32, s32, {hex(WS_FL)}")
    args_ready(k)
    if FUSED:
        k.e("s_lshr_b32 s33, s40, 11")
        k.e("s_lshl_b64 s[34:35], 0xffff, s33")
        k.bar()
        k.e("s_mov_b64 exec, s[34:35]")
        poll0(k, "kv", vK, vP, "s32", 20)
        k.e("s_mov_b64 exec, -1")
    q = VQ(k)
    def chunk(c):
        k.e(f"s_add_u32 m0, s30, {c*16384}")
        k.e("s_add_u32 s27, s29, s40")
        for g in range(4):
            k.e(f"buffer_load_dwordx4 v{vL16}, s[20:23], s27 offen offset:{g*1024}{SC} lds")
        k.e("s_add_u32 s40, s40, 16384")
        k.e("s_and_b32 s40, s40, 0x1ffff")
        q.add(c, 4)
    k.e("s_mov_b32 m0, s31")
    k.e("s_nop 0")
    k.e(f"buffer_load_dwordx4 v{vL16}, s[20:23], s28 offen{SC} lds")
    k.e(f"buffer_load_dwordx4 v{vL16}, s[20:23], s28 offen offset:1024{SC} lds")
    q.add(0, 2)
    chunk(0); chunk(1)
    q.wait(lambda t: t <= 0); k.bar()
    k.stamp(22)
    poll(k, "kv2", vK, vP, "s32", sleep=2)
    for c in range(2, 6): chunk(c)
    q.wait(lambda t: t <= 1); k.bar()
    chunk(6); chunk(7)
    k.e("s_cmp_lt_u32 s46, 152")
    k.e(f"s_cbranch_scc0 {k.L('one')}")
    k.e("s_add_u32 s46, s46, 1024")
    prepA("2", slot4=True)
    k.e("s_sub_u32 s46, s46, 1024")
    k.label("one")
    prepA("0")
    k.e("s_waitcnt vmcnt(8)")
    k.e("s_cmp_lt_u32 s46, 152")
    k.e(f"s_cbranch_scc1 {k.L('two')}")
    k.e("s_waitcnt vmcnt(4)")
    k.label("two")
    k.bar()
    k.stamp(23)
    prepB()
    k.e("s_add_u32 s46, s46, 1024")
    k.e("s_cmp_lt_u32 s46, 1176")
    k.e(f"s_cbranch_scc0 {k.L('notask')}")
    prepA("1", dma=False, slot4=True)
    prepB()
    k.label("notask")
    k.stamp(24)
    if FUSED:
        k.e("s_and_b32 s26, s2, 1")
        k.e("s_lshl_b32 s26, s26, 3")
        k.e("s_lshr_b32 s28, s2, 5")
        k.e("s_add_u32 s26, s26, s28")
        ft_poll(k, "ftg", vt0, vP, "g")
        tile_map_32x8(k)
        ft_poll(k, "ftd", vt0, vP, "d")
        ft_poll(k, "fto", vt0, vP, "o")
    else:
        k.bar()
    if PREFETCH:
        k.e("s_lshr_b32 s27, s2, 3")
        k.e("s_lshl_b32 s27, s27, 2")
        k.e("s_add_u32 s27, s27, s24")
        k.e("s_and_b32 s28, s2, 1")
        lst = [(WS_WGU, 8*32*6144, 12288, 0, 64), (WS_WGU, 8*32*6144, 12288, 8192, 32), (WS_WD, 4*86*2048, 5504, 0, 43)]
        if not FUSED:
            lst = [(WS_WO, 0x40000, 2048, 0, 16)] + lst
        for n, (base, half, per, off, nl) in enumerate(lst):
            k.e(f"s_mul_i32 s32, s28, {half}")
            k.e(f"s_mul_i32 s33, s27, {per}")
            k.e("s_add_u32 s32, s32, s33")
            k.e(f"s_add_u32 s32, s32, {hex(base + off)}")
            k.e(f"v_min_u32 v{vt0}, {nl-1}, v0")
            k.e(f"v_lshlrev_b32 v{vt0}, 7, v{vt0}")
            k.e(f"buffer_load_dword v{PR[0]+n}, v{vt0}, s[20:23], s32 offen{SC}")
    if FUSED:
        k.e("s_setprio 0")
        p3_preload()
    k.e(f"s_branch {k.L('done')}")
    k.label("comp")
    k.e("s_sub_u32 s46, s24, 4")
    k.e("s_lshl_b32 s26, s26, 3")
    k.e("s_add_u32 s26, s26, s46")
    k.e(f"v_lshrrev_b32 v{vt1}, 5, v0")
    k.e(f"v_mov_b32 v{vK}, v{vL16}")
    k.e(f"v_lshlrev_b32 v{vV}, 8, v{vt1}")
    k.e(f"v_and_b32 v{vt0}, 15, v0")
    k.e(f"v_lshl_add_u32 v{vV}, v{vt0}, 4, v{vV}")
    k.e(f"v_mov_b32 v{vt0}, 0x3f803f80")
    k.e(f"v_and_b32 v{vt2}, 11, v0")
    k.e(f"v_cmp_eq_u32 vcc, 0, v{vt2}")
    k.e("s_lshl_b32 s27, s46, 10")
    k.e(f"s_add_u32 s27, s27, {STG}")
    k.e(f"v_cndmask_b32 v{vt0}, 0, v{vt0}, vcc")
    k.e(f"v_add_u32 v{vt2}, s27, v{vL16}")
    for r in VA + VB:
        for i in range(4):
            k.e(f"v_mov_b32 v{r+i}, v{vt0}")
    k.e(f"v_mov_b32 v{vIdx}, 0xdddddddd")
    k.e("s_mov_b32 s42, 0x0000ffff")
    k.e("s_mov_b32 s43, 0x0000ffff")
    k.e(f"s_mov_b32 s44, {3 if FUSED else 0x13}")
    k.e("s_lshr_b32 s27, s26, 1")
    k.e("s_lshl_b32 s27, s27, 5")
    k.e("s_add_u32 s27, s27, s25")
    k.e("s_lshl_b32 s27, s27, 1")
    k.e("s_and_b32 s28, s26, 1")
    k.e("s_add_u32 s27, s27, s28")
    k.e("s_lshl_b32 s27, s27, 10")
    k.e(f"s_add_u32 s47, s27, {hex(WS_O)}")
    args_ready(k)
    k.bar(2 if FUSED else 1)
    k.e(f"ds_read_b128 {vr(Q,4)}, v{vt2}")
    k.e(f"ds_read_b128 {vr(KA,4)}, v{vK}")
    k.e("s_waitcnt lgkmcnt(0)")
    k.e(mfma32(SA, KA, Q, "0"))
    k.e("s_nop 7")
    k.e("s_nop 3")
    k.e(f"v_max3_f32 v{vt0}, v{SA}, v{SA+1}, v{SA+2}")
    for i in range(3, 15, 2):
        k.e(f"v_max3_f32 v{vt0}, v{vt0}, v{SA+i}, v{SA+i+1}")
    k.e(f"v_max_f32 v{vt0}, v{vt0}, v{SA+15}")
    k.label("setm")
    k.e(f"ds_read_b128 {vr(KB,4)}, v{vK} offset:2048")
    k.e("s_mov_b64 exec, s[42:43]")
    k.e(f"ds_read_b128 {vr(VA[0],4)}, v{vV} offset:1024")
    k.e(f"ds_read_b128 {vr(VA[1],4)}, v{vV} offset:1536")
    k.e("s_mov_b64 exec, -1")
    k.e(f"v_mov_b32 v{vt1}, v{vt0}")
    k.e("s_nop 1")
    k.e(f"v_permlane32_swap_b32 v{vt0}, v{vt1}")
    k.e(f"v_max_f32 v{vt0}, v{vt0}, v{vt1}")
    for i in range(16):
        k.e(f"v_sub_f32 v{NM+i}, 0, v{vt0}")
    k.e("s_nop 1")
    k.e(mfma32(SA, KA, Q, NM))
    for i in range(16):
        k.e(f"v_mov_b32 v{O+i}, 0")
    for i in range(8, 16):
        k.e(f"v_mov_b32 v{SB+i}, 0")
    k.e("s_mov_b32 s41, 0")
    k.stamp(22); k.stamp_rt(25)
    def smf(a, b):
        k.e(f"v_smfmac_f32_32x32x32_bf16 {vr(O,16)}, {vr(a,4)}, {vr(b,8)}, v{vIdx}")
    k.label("loop")
    for t in range(8):
        half = t & 1
        S, Sn = (SA, SB) if half == 0 else (SB, SA)
        Kn, Knn = (KB, KA) if half == 0 else (KA, KB)
        Vc, Vp = (VA, VB) if half == 0 else (VB, VA)
        base = t * 2048
        if half == 0:
            k.e(f"s_setprio {3 - t//2}")
        if t == 6:
            k.e("s_bitcmp1_b32 s44, s41")
            k.e(f"s_cbranch_scc0 {k.L('nobar')}")
            k.bar()
            k.label("nobar")
        for i in range(0, 3):
            k.e(f"v_exp_f32 v{S+i}, v{S+i}")
        smf(Vp[1], Sn + 8)
        for i in range(3, 8):
            k.e(f"v_exp_f32 v{S+i}, v{S+i}")
        k.e("s_waitcnt lgkmcnt(2)")
        k.e(mfma32(Sn, Kn, Q, NM))
        k.e(f"ds_read_b128 {vr(Knn,4)}, v{vK} offset:{base+4096}")
        for i in range(8, 13):
            k.e(f"v_exp_f32 v{S+i}, v{S+i}")
        k.e("s_waitcnt lgkmcnt(1)")
        smf(Vc[0], S)
        k.e("s_mov_b64 exec, s[42:43]")
        k.e(f"ds_read_b128 {vr(Vp[0],4)}, v{vV} offset:{base+2048+1024}")
        k.e(f"ds_read_b128 {vr(Vp[1],4)}, v{vV} offset:{base+2048+1536}")
        k.e("s_mov_b64 exec, -1")
        if t == 7:
            k.e(f"v_add_u32 v{vK}, 0x4000, v{vK}")
            k.e(f"v_add_u32 v{vV}, 0x4000, v{vV}")
            k.e("s_add_u32 s41, s41, 1")
            k.e("s_cmp_lt_u32 s41, 8")
        for i in range(13, 16):
            k.e(f"v_exp_f32 v{S+i}, v{S+i}")
    k.e(f"s_cbranch_scc1 {k.L('loop')}")
    k.e("s_nop 0")
    smf(VB[1], SB + 8)
    k.stamp(23); k.stamp_rt(26)
    k.e("s_waitcnt lgkmcnt(0)")
    k.e(f"v_mov_b32 v{vt1}, {f32(2.0**60)}")
    k.e("s_nop 7")
    k.e("s_nop 1")
    k.e(f"v_cmp_nlt_f32 vcc, v{O+8}, v{vt1}")
    k.e(f"v_rcp_f32 v{vt0}, v{O+8}")
    k.e(f"s_cbranch_vccz {k.L('fin')}")
    k.e("s_cmp_eq_u32 s44, 0")
    k.e(f"s_cbranch_scc1 {k.L('fin')}")
    k.e("s_mov_b32 s44, 0")
    k.e(f"v_mov_b32 v{vK}, v{vL16}")
    k.e(f"v_subrev_u32 v{vV}, 0x20000, v{vV}")
    k.e(f"v_mov_b32 v{vt0}, 0xff800000")
    k.e("s_mov_b32 s41, 0")
    k.label("fbloop")
    k.e(f"ds_read_b128 {vr(KA,4)}, v{vK}")
    k.e(f"v_add_u32 v{vK}, 2048, v{vK}")
    k.e("s_waitcnt lgkmcnt(0)")
    k.e(mfma32(SA, KA, Q, "0"))
    k.e("s_add_u32 s41, s41, 1")
    k.e("s_cmp_lt_u32 s41, 64")
    k.e("s_nop 7")
    k.e("s_nop 3")
    for i in range(0, 16, 2):
        k.e(f"v_max3_f32 v{vt0}, v{vt0}, v{SA+i}, v{SA+i+1}")
    k.e(f"s_cbranch_scc1 {k.L('fbloop')}")
    k.e(f"v_mov_b32 v{vK}, v{vL16}")
    k.e(f"ds_read_b128 {vr(KA,4)}, v{vK}")
    k.e("s_waitcnt lgkmcnt(0)")
    k.e(f"s_branch {k.L('setm')}")
    k.label("fin")
    for i in range(8):
        k.e(f"v_mul_f32 v{O+i}, v{vt0}, v{O+i}")
    for i in range(4):
        k.e(f"v_cvt_pk_bf16_f32 v{O+i}, v{O+2*i}, v{O+2*i+1}")
    k.e(f"buffer_store_dwordx4 {vr(O,4)}, v{vL16}, s[20:23], s47 offen{SC}")
    if FUSED:
        k.bar()
    publish(k, 1, 46, vP, vt0)
    k.stamp(24)
    if FUSED:
        k.bar()
    k.label("done")
    k.first = False
```

```python
from base import *
from p2 import STG
G_DA = opt("G_DA", 5)
P4_PRE = opt("P4_PRE", 2)
from streams import *
def x_resid_setup(k, vt0, vt1, sw):
    k.e(f"v_lshrrev_b32 v{vt0}, 3, v0")
    k.e(f"v_xor_b32 v{vt1}, v{vt0}, v0")
    k.e(f"v_and_b32 v{vt1}, 7, v{vt1}")
    k.e(f"v_lshlrev_b32 v{vt0}, 10, v{vt0}")
    k.e(f"v_lshl_add_u32 v{vt0}, v{vt1}, 4, v{vt0}")
    k.e("s_lshl_b32 s56, s25, 16")
    k.e(f"s_lshl_b32 s57, s{sw}, 14")
    k.e("s_add_u32 s56, s56, s57")
    k.e("s_lshl_b32 s57, s26, 7")
    k.e("s_add_u32 s56, s56, s57")
    k.e(f"s_lshl_b32 s57, s{sw}, 11")
    args_ready(k)
    srd(k, 12, S_X, 2048 * 1024)
def x_resid_issue(k, vt0):
    k.e(f"s_add_u32 m0, s57, {P3_RES}")
    k.e(f"s_add_u32 s58, s56, {8192-1024}")
    k.e(f"buffer_load_dwordx4 v{vt0}, s[12:15], s56 offen lds")
    k.e(f"buffer_load_dwordx4 v{vt0}, s[12:15], s58 offen offset:1024 lds")

def p3_preload(k, ctx):
    k.e("s_cmp_lt_u32 s24, 2")
    k.e(f"s_cbranch_scc1 {k.L('pre01')}")
    ctx.w3.setup()
    ctx.w3.issue(4)
    ctx.w4.setup()
    k.stamp(27)
    k.bar()
    k.stamp(28)
    ctx.w3.issue(4)
    k.bar()
    k.e(f"s_branch {k.L('done')}")
    k.label("pre01")
    k.e("s_lshl_b32 s59, s24, 1")
    x_resid_setup(k, 1, 2, 59)
    for i in range(4):
        k.e(f"s_add_u32 s58, s56, {i*8192}")
        k.e(f"buffer_load_dword v{4+i}, v1, s[12:15], s58 offen")
    k.stamp(27)
    k.bar()
    k.stamp(28)
    x_resid_issue(k, 1)
    k.e("s_add_u32 s56, s56, 16384")
    k.e("s_add_u32 s57, s57, 2048")
    x_resid_issue(k, 1)
    k.bar()

def phase_g64(k, mode, ctx):
    k.phase("p3" if mode == "wo" else "p5")
    W = ctx.w3 if mode == "wo" else ctx.w5
    A = G64Stream(k, mode, "a", VQ(k))
    nst = A.nst; NA = len(A.slots); NW = len(W.slots)
    RES = P3_RES if mode == "wo" else P5_RES
    k.use_lds(160 * KB)
    sb = 30 if mode == "wo" else 50
    vl = k.v(); vt0 = k.v(); vt1 = k.v(); vL16 = k.v(); vA = [k.v() for _ in range(3)]; vW = [k.v() for _ in range(3)]
    assert vL16 == 3
    vS = k.v(); vQ = k.v(); vO = k.v(); vt2 = k.v()
    vP = k.v(2)
    vRa = k.v(4)
    R = k.v(8)
    acc = k.v(16)
    T = k.v(16)
    sets = [dict(A=[k.v(4) for _ in range(4)], W=[k.v(4) for _ in range(4)]) for _ in range(2)]
    endF = FUSED and mode == "wo"
    tile_map_32x8(k)
    k.e(f"v_lshlrev_b32 v{vL16}, 4, v0")
    k.e("s_and_b32 s33, s24, 1")
    k.e("s_bfe_u32 s34, s24, 0x10001")
    def hf_offset():
        k.e("s_lshr_b32 s35, s25, 1")
        k.e("s_lshl_b32 s35, s35, 5")
        k.e("s_lshl_b32 s30, s26, 2")
        k.e("s_add_u32 s35, s35, s30")
        k.e("s_lshl_b32 s30, s34, 1")
        k.e("s_add_u32 s35, s35, s30")
        k.e("s_lshl_b32 s35, s35, 2")
        k.e("s_and_b32 s30, s25, 1")
        k.e("s_lshl_b32 s30, s30, 1")
        k.e("s_add_u32 s35, s35, s30")
        k.e("s_add_u32 s35, s35, s33")
        k.e("s_lshl_b32 s35, s35, 10")
        k.e(f"s_add_u32 s35, s35, {hex(WS_H)}")
    k.e("s_cmp_ge_u32 s24, 4")
    k.e(f"s_cbranch_scc1 {k.L('cons')}")
    k.e("s_cmp_ge_u32 s24, 2")
    k.e(f"s_cbranch_scc1 {k.L('wld')}")
    if FUSED:
        if mode == "wo":
            k.e(f"v_lshrrev_b32 v{vt0}, 5, v0")
            k.e(f"v_lshlrev_b32 v{vt0}, 7, v{vt0}")
            k.e(f"v_bfe_u32 v{vt1}, v0, 1, 4")
            k.e(f"v_lshl_add_u32 v{vt0}, v{vt1}, 10, v{vt0}")
            k.e(f"v_and_b32 v{vt1}, 1, v0")
            k.e(f"v_lshl_add_u32 v{vt0}, v{vt1}, 3, v{vt0}")
            k.e("s_lshr_b32 s36, s25, 3")
            k.e("s_lshl_b32 s36, s36, 8")
            k.e("s_bfe_u32 s37, s25, 0x10002")
            k.e("s_lshl_b32 s37, s37, 14")
            k.e("s_add_u32 s36, s36, s37")
            k.e("s_and_b32 s37, s25, 3")
            k.e("s_lshl_b32 s37, s37, 4")
            k.e("s_add_u32 s36, s36, s37")
            k.e(f"s_add_u32 s36, s36, {hex(WS_FL + 0x8000)}")
        else:
            k.e(f"v_lshrrev_b32 v{vt1}, 1, v0")
            k.e(f"v_min_u32 v{vt1}, 14, v{vt1}")
            k.e(f"v_lshrrev_b32 v{vt0}, 3, v{vt1}")
            k.e(f"v_lshlrev_b32 v{vt0}, 7, v{vt0}")
            k.e(f"v_and_b32 v{vt1}, 7, v{vt1}")
            k.e(f"v_lshl_add_u32 v{vt0}, v{vt1}, 12, v{vt0}")
            k.e(f"v_and_b32 v{vt1}, 1, v0")
            k.e(f"v_lshl_add_u32 v{vt0}, v{vt1}, 4, v{vt0}")
            k.e("s_lshr_b32 s36, s25, 3")
            k.e("s_lshl_b32 s36, s36, 8")
            k.e("s_bfe_u32 s37, s25, 0x20001")
            k.e("s_lshl_b32 s37, s37, 10")
            k.e("s_add_u32 s36, s36, s37")
            k.e("s_and_b32 s37, s25, 1")
            k.e("s_lshl_b32 s37, s37, 3")
            k.e("s_add_u32 s36, s36, s37")
            k.e(f"s_add_u32 s36, s36, {hex(WS_FL + 3*0x8000)}")
    A.setup()
    poll0(k, "act", vt0, vP, "s36", sb)
    DA = min(G_DA, NA - 2) if NA < nst else G_DA
    A.issue(DA)
    for s in range(nst):
        A.wait(s); k.bar()
        if s in (0, nst - 1): k.stamp(sb + 2 + (s > 0))
        if A.nxt < nst: A.issue()
    if endF: k.bar(2)
    k.e(f"s_branch {k.L('done')}")
    k.label("wld")
    if FUSED:
        k.bar()
    else:
        W.setup()
        W.issue(G_DA)
    for s in range(nst):
        W.wait(s); k.bar()
        if W.nxt < nst and W.nxt <= s - 2 + NW:
            W.issue()
        if endF and s == 3: ctx.w4.issue(2)
        if endF and s == 5: ctx.w4.issue(1)
    assert W.nxt == nst
    if endF:
        k.bar()
        ctx.w4.issue(P4_PRE)
        k.bar()
    k.e(f"s_branch {k.L('done')}")
    k.label("res")
    k.e("s_and_b32 s36, s24, 3")
    def resid():
        if mode == "wo":
            x_resid_issue(k, vt0)
        else:
            k.e("s_lshl_b32 s27, s36, 11")
            k.e(f"s_add_u32 m0, s27, {RES}")
            k.e(f"s_add_u32 s37, s35, {4096-1024}")
            k.e(f"buffer_load_dwordx4 v{vL16}, s[20:23], s35 offen{SC} lds")
            k.e(f"buffer_load_dwordx4 v{vL16}, s[20:23], s37 offen offset:1024{SC} lds")
    if mode == "wo":
        if not FUSED: x_resid_setup(k, vt0, vt1, 36)
    else:
        hf_offset()
        args_ready(k)
    rat = nst - opt("RES_AT", 5)
    if FUSED: k.bar()
    for s in range(nst):
        if s == nst - 1:
            k.e("s_waitcnt vmcnt(0)")
        k.bar()
        if s == rat and not endF: resid()
    if endF: k.bar(2)
    k.e(f"s_branch {k.L('done')}")
    k.label("cons")
    k.e("s_cmp_ge_u32 s24, 8")
    k.e(f"s_cbranch_scc1 {k.L('res')}")
    k.e("s_lshl_b32 s27, s33, 10")
    k.e(f"v_add_u32 v{vA[0]}, s27, v{vL16}")
    k.e("s_lshl_b32 s27, s34, 10")
    k.e(f"v_add_u32 v{vW[0]}, s27, v{vL16}")
    for i in (1, 2):
        k.e(f"v_add_u32 v{vA[i]}, {hex(i*65536)}, v{vA[0]}")
        k.e(f"v_add_u32 v{vW[i]}, {hex(i*65536)}, v{vW[0]}")
    k.e("s_mov_b32 s41, 0xffff0000")
    k.e("s_and_b32 s46, s24, 3")
    k.e(f"v_and_b32 v{vt0}, 31, v0")
    k.e(f"v_lshrrev_b32 v{vt1}, 5, v0")
    if mode == "wo":
        hf_offset()
        k.e("s_add_u32 s36, s35, 4096")
        k.e("s_lshl_b32 s37, s25, 1")
        k.e("s_add_u32 s37, s37, s33")
        k.e("s_lshl_b32 s37, s37, 12")
        k.e("s_lshl_b32 s28, s26, 9")
        k.e("s_add_u32 s37, s37, s28")
        k.e("s_lshl_b32 s28, s34, 3")
        k.e("s_add_u32 s37, s37, s28")
        k.e(f"s_add_u32 s37, s37, {hex(WS_ST)}")
        k.e(f"v_and_b32 v{vt2}, 7, v0")
        k.e("s_lshl_b32 s27, s34, 2")
        k.e(f"v_xor_b32 v{vt2}, s27, v{vt2}")
        k.e(f"v_lshlrev_b32 v{vt2}, 4, v{vt2}")
        k.e(f"v_lshl_add_u32 v{vt2}, v{vt0}, 7, v{vt2}")
        k.e(f"v_lshl_add_u32 v{vt2}, v{vt1}, 3, v{vt2}")
        k.e("s_lshl_b32 s27, s33, 12")
        k.e(f"s_add_u32 s27, s27, {RES}")
        k.e(f"v_add_u32 v{vRa}, s27, v{vt2}")
        for j in range(1, 4):
            k.e(f"v_xor_b32 v{vRa+j}, {j*16}, v{vRa}")
        k.e(f"v_lshlrev_b32 v{vt0}, 4, v{vt0}")
        k.e(f"v_lshl_add_u32 v{vt0}, v{vt1}, 2, v{vt0}")
        k.e(f"v_mov_b32 v{vS}, 0")
        k.e(f"v_mov_b32 v{vQ}, 0")
        k.e("s_mov_b32 s42, 0x3f803f80")
        args_ready(k)
    else:
        k.e(f"v_lshlrev_b32 v{vO}, 10, v{vt0}")
        k.e(f"v_lshl_add_u32 v{vO}, v{vt1}, 4, v{vO}")
        k.e("s_lshl_b32 s29, s25, 16")
        k.e("s_lshl_b32 s30, s33, 15")
        k.e("s_add_u32 s29, s29, s30")
        k.e("s_lshl_b32 s30, s26, 7")
        k.e("s_add_u32 s29, s29, s30")
        k.e("s_lshl_b32 s30, s34, 6")
        k.e("s_add_u32 s29, s29, s30")
        k.e("s_lshl_b32 s27, s46, 11")
        k.e(f"s_add_u32 s27, s27, {RES}")
        k.e(f"v_add_u32 v{vRa}, s27, v{vL16}")
        args_ready(k)
        srd(k, 12, S_OUT, 2048 * 1024)
    def mf(s):
        S = sets[s & 1]
        return [mfma32(acc, S['W'][j], S['A'][j], "0" if (s == 0 and j == 0) else None) for j in range(4)]
    def reads(s):
        S = sets[s & 1]
        ao = A.slots[s % NA]; w = W.slots[s % NW]
        rd = []
        for j in range(4):
            rd.append(f"ds_read_b128 {vr(S['A'][j],4)}, v{vA[ao >> 16]} offset:{(ao & 65535) + j*2048}")
            rd.append(f"ds_read_b128 {vr(S['W'][j],4)}, v{vW[w >> 16]} offset:{(w & 65535) + j*2048}")
        return rd
    k.bar(2 if FUSED else 1)
    for x in reads(0): k.e(x)
    for s in range(1, nst):
        k.bar()
        rd = reads(s); m = mf(s - 1)
        k.e(rd[0]); k.e(rd[1])
        k.e("s_waitcnt lgkmcnt(2)")
        for j in range(4):
            k.e(m[j])
            for x in rd[2+2*j:4+2*j]: k.e(x)
    k.stamp(sb + 2)
    if mode == "wo":
        for j in range(4):
            k.e(f"ds_read_b64 {vr(R+2*j,2)}, v{vRa+j}")
        nr = 4
    else:
        k.e(f"ds_read_b128 {vr(R,4)}, v{vRa}")
        k.e(f"ds_read_b128 {vr(R+4,4)}, v{vRa} offset:1024")
        nr = 2
    m = mf(nst - 1)
    for j in range(4):
        k.e(f"s_waitcnt lgkmcnt({6-2*j+nr})")
        k.e(m[j])
    k.e("s_waitcnt lgkmcnt(0)")
    for i in range(8):
        k.e(f"v_lshlrev_b32 v{T+2*i}, 16, v{R+i}")
        k.e(f"v_and_b32 v{T+2*i+1}, s41, v{R+i}")
    for i in range(8):
        k.e(f"v_cvt_pk_bf16_f32 v{R+i}, v{acc+2*i}, v{acc+2*i+1}")
    for i in range(8):
        k.e(f"v_lshlrev_b32 v{acc+2*i}, 16, v{R+i}")
        k.e(f"v_and_b32 v{acc+2*i+1}, s41, v{R+i}")
    for i in range(0, 16, 2):
        k.e(f"v_pk_add_f32 {vr(acc+i,2)}, {vr(acc+i,2)}, {vr(T+i,2)}")
    for i in range(8):
        k.e(f"v_cvt_pk_bf16_f32 v{R+i}, v{acc+2*i}, v{acc+2*i+1}")
    if mode == "wo":
        k.e(f"buffer_store_dwordx4 {vr(R,4)}, v{vL16}, s[20:23], s35 offen{SC}")
        k.e(f"buffer_store_dwordx4 {vr(R+4,4)}, v{vL16}, s[20:23], s36 offen{SC}")
        for i in range(8):
            k.e(f"v_dot2c_f32_bf16 v{vS}, s42, v{R+i}")
            k.e(f"v_dot2c_f32_bf16 v{vQ}, v{R+i}, v{R+i}")
        k.e("s_nop 2")
        k.e(f"v_permlane32_swap_b32 v{vS}, v{vQ}")
        k.e(f"v_add_f32 v{vS}, v{vS}, v{vQ}")
        k.e(f"buffer_store_dword v{vS}, v{vt0}, s[20:23], s37 offen{SC}")
        k.stamp(sb + 3)
        if endF: k.bar()
        publish(k, 2, 46, vP, vt1)
        k.stamp(sb + 4)
        if endF: k.bar()
    else:
        k.e(f"v_permlane32_swap_b32 v{R}, v{R+2}")
        k.e(f"v_permlane32_swap_b32 v{R+1}, v{R+3}")
        k.e(f"buffer_store_dwordx4 {vr(R,4)}, v{vO}, s[12:15], s29 offen")
        k.e(f"v_permlane32_swap_b32 v{R+4}, v{R+6}")
        k.e(f"v_permlane32_swap_b32 v{R+5}, v{R+7}")
        k.e(f"buffer_store_dwordx4 {vr(R+4,4)}, v{vO}, s[12:15], s29 offen offset:32")
    k.label("done")
    k.first = False
```

```python
from base import *
from streams import *
LEAD = opt('P4_LEAD', 6 if FUSED else 4)
ST_AT = opt('ST_AT', 3 if FUSED else 5)
def phase4(k, ctx):
    k.phase("p4")
    NX = 6; NW = 8
    MISC = P4_MISC
    MISC2 = MISC + 2048
    k.use_lds(160 * KB)
    vl = k.v(); vt0 = k.v(); vt1 = k.v(); vL16 = k.v(); vX = k.v(); vW = [k.v(), k.v()]
    vP = k.v(2)
    acc = [[k.v(16) for _ in range(3)] for _ in range(2)]
    sets = [dict(X=[k.v(4) for _ in range(2)], W=[k.v(4) for _ in range(3)]) for _ in range(2)]
    CC = [k.v(4), k.v(4)]
    T = k.v(8)
    S0 = sets[0]['X'][0]
    BP = [S0, S0 + 4]; AP = [S0 + 8, S0 + 12, S0 + 16]
    k.e("s_and_b32 s26, s2, 1")
    k.e("s_lshl_b32 s26, s26, 3")
    k.e("s_lshr_b32 s28, s2, 5")
    k.e("s_add_u32 s26, s26, s28")
    k.e("s_cmp_ge_u32 s26, 15")
    k.e(f"s_cbranch_scc1 {k.L('empty')}")
    k.e("s_and_b32 s25, s2, 6")
    k.e("s_lshl_b32 s25, s25, 1")
    k.e("s_bfe_u32 s27, s2, 0x20003")
    k.e("s_add_u32 s25, s25, s27")
    k.e(f"v_lshlrev_b32 v{vL16}, 4, v0")
    k.e("s_and_b32 s33, s24, 1")
    k.e("s_cmp_ge_u32 s24, 4")
    k.e(f"s_cbranch_scc1 {k.L('cons')}")
    k.e("s_cmp_ge_u32 s24, 2")
    k.e(f"s_cbranch_scc1 {k.L('wld')}")
    bars = [0, 1] + list(range(3, 16, 2))
    def loader(S, D0, sb, extra=None):
        N = len(S.slots)
        if S.nxt < D0: S.issue(D0 - S.nxt)
        for bi, last in enumerate(bars):
            S.wait(last); k.bar()
            if sb and bi in (0, len(bars) - 1): k.stamp(sb + (bi > 0))
            free = bars[bi - 1] if bi >= 1 else -1
            lim = min(15, free + N, last + LEAD)
            if S.nxt <= lim: S.issue(lim + 1 - S.nxt)
            if extra: extra(bi)
        assert S.nxt == 16
        if FUSED: k.bar()
        k.e(f"s_branch {k.L('done')}")
    X = P4Stream(k, "x", VQ(k))
    if FUSED:
        k.e(f"v_bfe_u32 v{vt0}, v0, 4, 1")
        k.e(f"v_lshlrev_b32 v{vt0}, 7, v{vt0}")
        k.e(f"v_bfe_u32 v{vt1}, v0, 2, 2")
        k.e(f"v_lshl_add_u32 v{vt0}, v{vt1}, 13, v{vt0}")
        k.e(f"v_lshrrev_b32 v{vt1}, 5, v0")
        k.e(f"v_lshl_add_u32 v{vt0}, v{vt1}, 10, v{vt0}")
        k.e(f"v_and_b32 v{vt1}, 3, v0")
        k.e(f"v_lshl_add_u32 v{vt0}, v{vt1}, 3, v{vt0}")
        k.e("s_lshr_b32 s36, s25, 2")
        k.e("s_lshl_b32 s36, s36, 8")
        k.e("s_lshl_b32 s37, s27, 11")
        k.e("s_add_u32 s36, s36, s37")
        k.e(f"s_add_u32 s36, s36, {hex(WS_FL + 2*0x8000)}")
    X.setup()
    poll0(k, "h", vt0, vP, "s36", 40)
    loader(X, 4 if FUSED else 3, 42)
    k.label("wld")
    def pre5(bi):
        if not FUSED: return
        if bi == 5: ctx.w5.setup(); ctx.w5.issue(1)
        if bi == 6: ctx.w5.issue(3)
        if bi == 7: ctx.w5.issue(5)
        if bi == 8: ctx.w5.issue(3)
    if FUSED:
        k.bar()
    else:
        ctx.w4.setup()
    loader(ctx.w4, 3, 0, pre5)
    k.label("stat")
    k.e("s_setprio 3")
    ST = acc[0][0]; CS = acc[0][1]
    k.e("s_and_b32 s29, s24, 3")
    k.e("s_lshl_b32 s27, s25, 2")
    k.e("s_add_u32 s27, s27, s29")
    k.e("s_lshl_b32 s27, s27, 12")
    k.e(f"s_add_u32 s30, s27, {hex(WS_ST)}")
    k.e("s_mul_i32 s27, s26, 3")
    k.e("s_min_u32 s28, s29, 2")
    k.e("s_add_u32 s27, s27, s28")
    k.e("s_lshl_b32 s27, s27, 12")
    k.e(f"s_add_u32 s31, s27, {hex(WS_CS)}")
    args_ready(k)
    def cs_issue():
        for qq in range(4):
            k.e(f"buffer_load_dwordx4 {vr(CS+4*qq,4)}, v{vL16}, s[20:23], s31 offen offset:{qq*1024}{SC}")
    def st_issue():
        for qq in range(4):
            k.e(f"buffer_load_dwordx4 {vr(ST+4*qq,4)}, v{vL16}, s[20:23], s30 offen offset:{qq*1024}{SC}")
    def st_proc():
        s = ST; t2 = T; C = CC[0]; RS = T + 2
        k.e("s_waitcnt vmcnt(0)")
        for i in range(2, 16, 2):
            k.e(f"v_add_f32 v{s}, v{s}, v{s+i}")
            k.e(f"v_add_f32 v{s+1}, v{s+1}, v{s+i+1}")
        k.e(f"v_mov_b32 v{s+2}, v{s}")
        k.e(f"v_mov_b32 v{s+3}, v{s+1}")
        k.e("s_nop 1")
        k.e(f"v_permlane32_swap_b32 v{s}, v{s+2}")
        k.e(f"v_permlane32_swap_b32 v{s+1}, v{s+3}")
        k.e(f"v_add_f32 v{s}, v{s}, v{s+2}")
        k.e(f"v_add_f32 v{s+1}, v{s+1}, v{s+3}")
        ln_finish(k, s, s + 1, C, RS, t2)
        A_ = -2.0 * 1.4426950408889634 * 0.7978845608028654
        k.e(f"v_mul_f32 v{C+3}, v{t2}, v{t2}")
        k.e(f"v_mul_f32 v{C+1}, {f32(A_)}, v{RS}")
        k.e(f"v_mul_f32 v{C+2}, v{RS}, v{RS}")
        k.e(f"v_mul_f32 v{C+2}, v{C+2}, v{C+1}")
        k.e(f"v_mul_f32 v{C+2}, {f32(0.044715)}, v{C+2}")
        k.e(f"v_and_b32 v{vt0}, 0x1ff, v{vL16}")
        k.e("s_lshl_b32 s27, s29, 9")
        k.e(f"s_add_u32 s27, s27, {MISC}")
        k.e(f"v_add_u32 v{vt0}, s27, v{vt0}")
        k.e(f"ds_write_b128 v{vt0}, {vr(C,4)}")
        for u in range(2):
            c = CS + 8 * u
            for i in range(1, 8):
                k.e(f"v_add_f32 v{c}, v{c}, v{c+i}")
        k.e("s_nop 1")
        k.e(f"v_permlane32_swap_b32 v{CS}, v{CS+8}")
        k.e(f"v_add_f32 v{CS}, v{CS}, v{CS+8}")
        split2(k, CS, CS + 1, t2)
        k.e("s_lshl_b32 s27, s28, 8")
        k.e(f"s_add_u32 s27, s27, {MISC2}")
        k.e(f"v_lshl_add_u32 v{vt0}, v0, 2, s27")
        k.e(f"ds_write_b32 v{vt0}, v{CS+1}")
        k.e("s_waitcnt lgkmcnt(0)")
    if FUSED: k.bar()
    for bi in range(len(bars)):
        k.bar()
        if bi == ST_AT: st_issue()
        if bi == ST_AT + 1: cs_issue()
        if bi == 7: st_proc()
    k.e("s_setprio 0")
    if FUSED: k.bar()
    k.e(f"s_branch {k.L('done')}")
    k.label("empty")
    if FUSED:
        k.e("s_waitcnt vmcnt(0)")
        k.bar()
        k.e("s_sub_u32 s27, s24, 2")
        k.e("s_cmp_ge_u32 s27, 2")
        k.e(f"s_cbranch_scc1 {k.L('done')}")
        w5 = G64Stream(k, "dn", "w", VQ(k))
        w5.setup(); w5.issue(12)
    k.e(f"s_branch {k.L('done')}")
    k.label("cons")
    k.e("s_cmp_ge_u32 s24, 8")
    k.e(f"s_cbranch_scc1 {k.L('stat')}")
    k.e("s_bfe_u32 s34, s24, 0x10001")
    k.e("s_lshl_b32 s27, s33, 11")
    k.e(f"v_add_u32 v{vX}, s27, v{vL16}")
    k.e("s_mul_i32 s27, s34, 3072")
    k.e(f"s_add_u32 s27, s27, {P4_W[0]}")
    k.e(f"v_add_u32 v{vW[0]}, s27, v{vL16}")
    k.e(f"v_subrev_u32 v{vW[1]}, {P4_W[0]-P4_W[4]}, v{vW[0]}")
    k.e("s_mul_i32 s42, s26, 6")
    k.e("s_mul_i32 s43, s34, 3")
    k.e("s_add_u32 s42, s42, s43")
    k.e("s_lshl_b32 s27, s25, 1")
    k.e("s_add_u32 s27, s27, s33")
    k.e("s_mul_i32 s27, s27, 86")
    k.e("s_add_u32 s27, s27, s42")
    k.e("s_lshl_b32 s27, s27, 11")
    k.e(f"s_add_u32 s45, s27, {hex(WS_A)}")
    k.e("s_and_b32 s46, s24, 3")
    k.e("v_cmp_gt_u32 vcc, 32, v0")
    k.e(f"v_and_b32 v{vt0}, 0x1ff, v{vL16}")
    k.e("s_lshl_b32 s27, s33, 10")
    k.e(f"s_add_u32 s27, s27, {MISC}")
    k.e(f"v_add_u32 v{vt0}, s27, v{vt0}")
    k.e(f"v_and_b32 v{vt1}, 31, v0")
    k.e("s_mul_i32 s27, s34, 384")
    k.e(f"s_add_u32 s27, s27, {MISC2}")
    k.e(f"v_lshl_add_u32 v{vt1}, v{vt1}, 2, s27")
    args_ready(k)
    def mf(ks):
        S = sets[ks & 1]
        return [mfma32(acc[b][u], S['W'][u], S['X'][b], "0" if ks == 0 else None) for u in range(3) for b in range(2)]
    def reads(ks):
        S = sets[ks & 1]
        h, kk = ks >> 1, ks & 1
        xo = (h % NX) * 8192 + kk * 4096
        sl = h % NW
        i, wo = (0, sl * 12288) if sl < 4 else (1, (sl - 4) * 12288)
        wo += kk * 6144
        return [f"ds_read_b128 {vr(S['W'][0],4)}, v{vW[i]} offset:{wo}",
                f"ds_read_b128 {vr(S['X'][0],4)}, v{vX} offset:{xo}",
                f"ds_read_b128 {vr(S['X'][1],4)}, v{vX} offset:{xo+1024}",
                f"ds_read_b128 {vr(S['W'][1],4)}, v{vW[i]} offset:{wo+1024}",
                f"ds_read_b128 {vr(S['W'][2],4)}, v{vW[i]} offset:{wo+2048}"]
    firsts = {0} | {2 * (b + 1) for b in bars[:-1]}
    k.bar(2 if FUSED else 1)
    for x in reads(0): k.e(x)
    k.e("s_waitcnt lgkmcnt(0)")
    for ks in range(31):
        if ks + 1 in firsts:
            k.bar()
        m = mf(ks)
        spread(k, m[:-1], reads(ks + 1), [], 2, 0)
        k.e("s_waitcnt lgkmcnt(0)")
        k.e(m[-1])
    k.stamp(42)
    for b in range(2):
        k.e(f"ds_read_b128 {vr(CC[b],4)}, v{vt0} offset:{b*512}")
    m = mf(31)
    k.e(m[0])
    for u in range(3):
        k.e(f"ds_read_b32 v{AP[u]}, v{vt1} offset:{u*128}")
    z = [r + i for r in BP + AP for i in (1, 2, 3)]
    for j in range(1, 6):
        k.e(m[j])
        for r in z[(j-1)*3:(j-1)*3+3]:
            k.e(f"v_mov_b32 v{r}, 0")
    k.e("s_waitcnt lgkmcnt(0)")
    for b in range(2):
        k.e(f"v_cndmask_b32 v{BP[b]}, 0, v{CC[b]}, vcc")
    k.e("s_nop 0")
    for u in range(3):
        for b in range(2):
            k.e(mfma32(acc[b][u], AP[u], BP[b]))
    k.e("s_nop 2")
    for u in range(3):
        k.e("s_cmp_lt_u32 s42, 86")
        k.e(f"s_cselect_b32 s28, s45, {hex(OOB)}")
        k.e("s_add_u32 s42, s42, 1")
        k.e("s_add_u32 s45, s45, 2048")
        for b in range(2):
            a = acc[b][u]; C = CC[b]
            for i in range(0, 8, 2):
                k.e(f"v_pk_mul_f32 {vr(T+i,2)}, {vr(a+i,2)}, {vr(a+i,2)}")
            for i in range(0, 8, 2):
                k.e(f"v_pk_fma_f32 {vr(T+i,2)}, {vr(T+i,2)}, {vr(C+2,2)}, {vr(C,2)} op_sel:[0,0,1] op_sel_hi:[1,0,1]")
            for i in range(0, 8, 2):
                k.e(f"v_pk_mul_f32 {vr(T+i,2)}, {vr(T+i,2)}, {vr(a+i,2)}")
            for i in range(8):
                k.e(f"v_exp_f32 v{T+i}, v{T+i}")
            for i in range(0, 8, 2):
                k.e(f"v_pk_mul_f32 {vr(a+i,2)}, {vr(a+i,2)}, {vr(a+8+i,2)}")
            for i in range(0, 8, 2):
                k.e(f"v_pk_fma_f32 {vr(T+i,2)}, {vr(T+i,2)}, {vr(C+2,2)}, {vr(C+2,2)} op_sel:[0,1,1]")
            for i in range(8):
                k.e(f"v_rcp_f32 v{T+i}, v{T+i}")
            for i in range(0, 8, 2):
                k.e(f"v_pk_mul_f32 {vr(a+i,2)}, {vr(a+i,2)}, {vr(T+i,2)}")
            for i in range(4):
                k.e(f"v_cvt_pk_bf16_f32 v{a+i}, v{a+2*i}, v{a+2*i+1}")
            k.e(f"buffer_store_dwordx4 {vr(a,4)}, v{vL16}, s[20:23], s28 offen offset:{b*1024}{SC}")
    k.stamp(43)
    publish(k, 3, 46, vP, vt0)
    k.stamp(44)
    if FUSED: k.bar()
    k.label("done")
    k.first = False
```

```python
from base import *
class G64Stream:
    def __init__(self, k, mode, sd, q):
        self.k, self.mode, self.sd, self.q = k, mode, sd, q
        self.nks, self.nst, self.split = (32, 8, 4) if mode == "wo" else (86, 22, 12)
        self.slots = {("wo", "w"): P3_W, ("wo", "a"): P3_A, ("dn", "w"): P5_W, ("dn", "a"): P5_A}[(mode, sd)]
        self.nxt = 0
        self.ph = 3 if mode == "wo" else 5
    def setup(self):
        k = self.k
        off = {("wo", "w"): WS_WO, ("wo", "a"): WS_O, ("dn", "w"): WS_WD, ("dn", "a"): WS_A}[(self.mode, self.sd)]
        if self.sd == "w":
            k.e("s_and_b32 s54, s2, 1")
            k.e("s_lshl_b32 s54, s54, 2")
            k.e("s_lshr_b32 s55, s2, 6")
        else:
            k.e("s_and_b32 s54, s2, 6")
            k.e("s_lshl_b32 s54, s54, 2")
            k.e("s_bfe_u32 s55, s2, 0x30003")
        k.e("s_add_u32 s54, s54, s55")
        k.e(f"s_mul_i32 s54, s54, {self.nks*2048}")
        k.e(f"s_add_u32 s54, s54, {hex(off)}")
        k.e("s_and_b32 s52, s24, 1")
        k.e("s_lshl_b32 s52, s52, 12")
        k.e("s_bitcmp1_b32 s2, 0")
        k.e(f"s_cselect_b32 s53, {self.split*8192}, 0")
        k.e("s_add_u32 s53, s53, s52")
        k.e(f"s_mov_b32 s18, {self.nks*2048}")
        k.e("s_mov_b32 s19, 0x00020000")
        args_ready(k)
        k.e(f"s_add_u32 s16, s{S_WS}, s54")
        k.e(f"s_addc_u32 s17, s{S_WS+1}, 0")
    def issue(self, n=1):
        k = self.k
        for _ in range(n):
            s = self.nxt
            assert s < self.nst
            k.e(f"s_add_u32 m0, s52, {self.slots[s % len(self.slots)]}")
            if s == 0:
                k.e("s_nop 0")
            else:
                k.e("s_add_u32 s53, s53, 8192")
                if s == self.nst - self.split:
                    k.e("s_bitcmp1_b32 s2, 0")
                    k.e("s_cselect_b32 s53, s52, s53")
            for g in range(4):
                k.e(f"buffer_load_dwordx4 v3, s[16:19], s53 offen offset:{g*1024}{SC} lds")
            self.q.add((self.ph, s), 4)
            self.nxt += 1
    def wait(self, s):
        self.q.wait(lambda t: t <= (self.ph, s))

class P4Stream:
    def __init__(self, k, sd, q):
        self.k, self.sd, self.q = k, sd, q
        self.slots = P4_W if sd == "w" else P4_X
        self.stride = 12288 if sd == "w" else 8192
        self.nxt = 0
    def setup(self):
        k = self.k
        k.e("s_and_b32 s48, s24, 1")
        k.e(f"s_mul_i32 s48, s48, {self.stride//2}")
        if self.sd == "w":
            k.e("s_and_b32 s49, s2, 1")
            k.e("s_lshl_b32 s49, s49, 3")
            k.e("s_lshr_b32 s51, s2, 5")
            k.e("s_add_u32 s49, s49, s51")
            k.e(f"s_mul_i32 s49, s49, {32*6144}")
            k.e(f"s_add_u32 s49, s49, {hex(WS_WGU)}")
        else:
            k.e("s_and_b32 s49, s2, 6")
            k.e("s_lshl_b32 s49, s49, 1")
            k.e("s_bfe_u32 s51, s2, 0x20003")
            k.e("s_add_u32 s49, s49, s51")
            k.e("s_lshl_b32 s49, s49, 17")
            k.e(f"s_add_u32 s49, s49, {hex(WS_H)}")
        k.e("s_add_u32 s49, s49, s48")
        k.e("s_bitcmp1_b32 s2, 0")
        k.e(f"s_cselect_b32 s50, {8*self.stride}, 0")
        k.e("s_add_u32 s50, s50, s49")
        args_ready(k)
    def issue(self, n=1):
        k = self.k
        for _ in range(n):
            h = self.nxt
            assert h < 16
            k.e(f"s_add_u32 m0, s48, {self.slots[h % len(self.slots)]}")
            if h:
                k.e(f"s_add_u32 s50, s50, {self.stride}")
                if h == 8:
                    k.e("s_bitcmp1_b32 s2, 0")
                    k.e("s_cselect_b32 s50, s49, s50")
            else:
                k.e("s_nop 0")
            n_i = self.stride // 2048
            for g in range(n_i):
                if g == 4:
                    k.e("s_add_u32 m0, m0, 4096")
                    k.e("s_add_u32 s51, s50, 4096")
                k.e(f"buffer_load_dwordx4 v3, s[20:23], s{50 if g < 4 else 51} offen offset:{(g%4)*1024}{SC} lds")
            self.q.add((4, h), n_i)
            self.nxt += 1
    def wait(self, h):
        self.q.wait(lambda t: t <= (4, h))

class Ctx:
    def __init__(self, k):
        self.q = VQ(k)
        self.w3 = G64Stream(k, "wo", "w", self.q)
        self.w4 = P4Stream(k, "w", self.q)
        self.w5 = G64Stream(k, "dn", "w", self.q)
```

```python
from base import *
from p1 import phase1
from p2 import phase2
from p35 import phase_g64, p3_preload
from p4 import phase4
from streams import Ctx

def build():
    ref = open(f"cdna_kernels/{NAME}.s.ref").read().splitlines()
    head = [l for l in ref if l.startswith(";") and "@launch" not in l and "Override" not in l and "grid=ceil" not in l]
    out = "\n".join(head) + "\n"
    phases = [phase1, lambda k: phase2(k, lambda: p3_preload(k, k.ctx)), lambda k: phase_g64(k, "wo", k.ctx),
              lambda k: phase4(k, k.ctx), lambda k: phase_g64(k, "dn", k.ctx)]
    ks = []
    if FUSED:
        k = K(NAME + "_kernel")
        k.ctx = Ctx(k)
        entry(k)
        for p in phases: p(k)
        finish(k, 0)
        ks.append(k)
        out += f"; @launch grid=(256,1,1) block=(768,1,1) lds={k.lds}\n"
    else:
        for i, p in enumerate(phases):
            k = K(f"k{i+1}_kernel")
            k.ctx = Ctx(k)
            entry(k)
            p(k)
            finish(k, i)
            ks.append(k)
            out += f"; @launch kernel={k.name} grid=(256,1,1) block=(768,1,1) lds={k.lds}\n"
    out += '.amdgcn_target "amdgcn-amd-amdhsa--gfx950"\n'
    for k in ks:
        out += k.text()
    return out

if __name__ == "__main__":
    out = build()
    open(sys.argv[1], "w").write(out)
    bad = hazard.check(out)
    print("hazards:", len(bad))
```

```python
import sys, struct, os
sys.path.insert(0, "g3")
import hazard

NAME = "sequential_preLN__softmax_full_mha__geglu_ffn__prompt"
def opt(n, d): return int(os.environ.get(n, str(d)))
FUSED = opt("FUSED", 1)
STAMP = opt("STAMP", 0)
NODMA = opt("NODMA", 0)

WS_Q   = 0x000000
WS_KV  = 0x200000
WS_O   = 0x600000
WS_H   = 0x800000
WS_ST  = 0xA00000
WS_CS  = 0xA40000
WS_FL  = 0x1780000
WS_FT  = 0xAC0000
WS_WO  = 0xB00000
WS_WD  = 0xC00000
WS_WGU = 0xE00000
WS_A   = 0x1200000
WS_END = 0x1800000
WS_DBG = 0x2000000
OOB    = 0x7FFF0000
SC = " sc1" if FUSED else ""

S_X, S_WQKV, S_WO, S_WG, S_WU, S_WD, S_OUT, S_DBG, S_WS = 64, 66, 68, 72, 74, 76, 78, 80, 82
S_NONCE = 84
SRD_WS = 20

def f32(x):
    return "0x%08x" % struct.unpack("<I", struct.pack("<f", x))[0]
def vr(b, n):
    return f"v[{b}:{b+n-1}]" if n > 1 else f"v{b}"

class K:
    def __init__(self, name):
        self.name = name
        self.lines = []
        self.nv = 0
        self.maxv = 0
        self.lds = 0
        self.ph = "p"
        self.bars = {}
        self.role = None
        self.nst = {}
    def phase(self, p):
        self.ph = p
        self.nv = 0
    def e(self, s):
        if NODMA and s.endswith(" lds"):
            s = "s_nop 0"
        self.lines.append("    " + s)
    def bar(self, n=1):
        for _ in range(n):
            self.e("s_barrier")
    def label(self, l):
        self.lines.append(f"{self.L(l)}:")
    def L(self, l):
        return f"{self.name}_{self.ph}_{l}"
    def v(self, n=1):
        align = 1 if n == 1 else (2 if n == 2 else 4)
        self.nv = (self.nv + align - 1) // align * align
        r = self.nv
        self.nv += n
        self.maxv = max(self.maxv, self.nv)
        return r
    def use_lds(self, n):
        assert n <= 163840, n
        self.lds = max(self.lds, n)
    def stamp(self, idx):
        if not STAMP:
            return
        self.e("s_memtime s[86:87]" if STAMP == 1 else "s_memrealtime s[86:87]")
        self.e("s_waitcnt lgkmcnt(0)")
        self.e(f"v_writelane_b32 v167, s86, {idx}")
        self.maxv = 168
    def stamp_rt(self, idx):
        if not STAMP:
            return
        self.e("s_memrealtime s[86:87]")
        self.e("s_waitcnt lgkmcnt(0)")
        self.e(f"v_writelane_b32 v167, s86, {idx}")
    def stamp_flush(self, kidx):
        if not STAMP:
            return
        self.e("s_waitcnt vmcnt(0) lgkmcnt(0)")
        self.stamp(62)
        self.stamp_rt(63)
        self.e(f"s_add_u32 s56, s{S_WS}, {hex(WS_DBG + kidx*0x100000)}")
        self.e(f"s_addc_u32 s57, s{S_WS+1}, 0")
        self.e("s_mov_b32 s58, 0x100000")
        self.e("s_mov_b32 s59, 0x00020000")
        self.e("s_lshl_b32 s60, s2, 4")
        self.e("s_add_u32 s60, s60, s24")
        self.e("s_lshl_b32 s60, s60, 8")
        self.e("v_lshlrev_b32 v1, 2, v0")
        self.e("buffer_store_dword v167, v1, s[56:59], s60 offen")
    def text(self):
        nv = max(self.maxv, 8)
        assert nv <= 168, nv
        acc = (nv + 3) // 4 * 4
        head = f""".text
.globl {self.name}
.p2align 8
.type {self.name},@function
{self.name}:
"""
        tail = f"""
.section .rodata,"a"
.p2align 6
.amdhsa_kernel {self.name}
  .amdhsa_next_free_vgpr {nv}
  .amdhsa_next_free_sgpr 96
  .amdhsa_accum_offset {acc}
  .amdhsa_group_segment_fixed_size 0
  .amdhsa_kernarg_size 80
  .amdhsa_user_sgpr_count 2
  .amdhsa_user_sgpr_kernarg_segment_ptr 1
  .amdhsa_system_sgpr_workgroup_id_x 1
.end_amdhsa_kernel
"""
        return head + "\n".join(self.lines) + tail

def srd(k, d, base, nbytes):
    k.e(f"s_mov_b64 s[{d}:{d+1}], s[{base}:{base+1}]")
    k.e(f"s_mov_b32 s{d+2}, {hex(nbytes)}")
    k.e(f"s_mov_b32 s{d+3}, 0x00020000")

def mfma32(d, a, b, c=None):
    cs = vr(d, 16) if c is None else (c if isinstance(c, str) else vr(c, 16))
    return f"v_mfma_f32_32x32x16_bf16 {vr(d,16)}, {vr(a,4)}, {vr(b,4)}, {cs}"

def spread(k, mains, reads, others, rper, oper):
    ri = oi = 0
    for m in mains:
        k.e(m)
        n = 0
        while ri < len(reads) and n < rper:
            k.e(reads[ri]); ri += 1; n += 1
        if ri >= len(reads):
            while oi < len(others) and n < oper:
                k.e(others[oi]); oi += 1; n += 1
    for x in reads[ri:] + others[oi:]:
        k.e(x)

def entry(k):
    k.e("s_cmp_ge_u32 s2, 256")
    k.e(f"s_cbranch_scc1 {k.name}_exit")
    k.e("s_load_dwordx16 s[64:79], s[0:1], 0")
    k.e("s_load_dwordx4 s[80:83], s[0:1], 64")
    k.e("v_lshrrev_b32 v1, 6, v0")
    k.e("v_and_b32 v0, 63, v0")
    k.e("v_readfirstlane_b32 s24, v1")
    k.e(f"s_mov_b32 s22, {hex(WS_END)}")
    k.e("s_mov_b32 s23, 0x00020000")
    if STAMP:
        k.e("v_mov_b32 v167, 0")
        k.e("s_memtime s[88:89]" if STAMP == 1 else "s_memrealtime s[88:89]")
    k.first = True

def args_ready(k):
    if k.first:
        k.e("s_waitcnt lgkmcnt(0)")
        k.e(f"s_mov_b64 s[20:21], s[{S_WS}:{S_WS+1}]")
        if STAMP:
            k.e("v_writelane_b32 v167, s88, 0")

def finish(k, kidx):
    k.stamp_flush(kidx)
    k.lines.append(f"{k.name}_exit:")
    k.e("s_endpgm")

def tile_map_32x8(k):
    k.e("s_and_b32 s25, s2, 6")
    k.e("s_lshl_b32 s25, s25, 2")
    k.e("s_bfe_u32 s27, s2, 0x30003")
    k.e("s_add_u32 s25, s25, s27")
    k.e("s_and_b32 s26, s2, 1")
    k.e("s_lshl_b32 s26, s26, 2")
    k.e("s_lshr_b32 s28, s2, 6")
    k.e("s_add_u32 s26, s26, s28")

def ln_finish(k, vS, vQ, vNegM, vRstd, t0):
    k.e(f"v_mul_f32 v{vS}, {f32(1.0/512)}, v{vS}")
    k.e(f"v_mul_f32 v{vQ}, {f32(1.0/512)}, v{vQ}")
    k.e(f"v_fma_f32 v{vQ}, -v{vS}, v{vS}, v{vQ}")
    k.e(f"v_max_f32 v{vQ}, 0, v{vQ}")
    k.e(f"v_cvt_pk_bf16_f32 v{vNegM}, -v{vS}, -v{vS}")
    k.e(f"v_cvt_pk_bf16_f32 v{t0}, v{vQ}, v{vQ}")
    k.e(f"v_lshlrev_b32 v{t0}, 16, v{t0}")
    k.e(f"v_add_f32 v{t0}, {f32(1e-5)}, v{t0}")
    k.e(f"v_cvt_pk_bf16_f32 v{t0}, v{t0}, v{t0}")
    k.e(f"v_lshlrev_b32 v{t0}, 16, v{t0}")
    k.e(f"v_sqrt_f32 v{t0}, v{t0}")
    k.e("s_nop 0")
    k.e(f"v_cvt_pk_bf16_f32 v{t0}, v{t0}, v{t0}")
    k.e(f"v_lshlrev_b32 v{t0}, 16, v{t0}")
    k.e(f"v_rcp_f32 v{vRstd}, v{t0}")
    k.e("s_nop 0")

def split2(k, vcs, vdst, t0):
    k.e(f"v_cvt_pk_bf16_f32 v{t0}, v{vcs}, v{vcs}")
    k.e(f"v_lshlrev_b32 v{t0}, 16, v{t0}")
    k.e(f"v_sub_f32 v{t0}, v{vcs}, v{t0}")
    k.e(f"v_cvt_pk_bf16_f32 v{vdst}, v{vcs}, v{t0}")

def pkmul_bcast(k, d, s):
    if s % 2 == 0:
        k.e(f"v_pk_mul_f32 {vr(d,2)}, {vr(d,2)}, {vr(s,2)} op_sel_hi:[1,0]")
    else:
        k.e(f"v_pk_mul_f32 {vr(d,2)}, {vr(d,2)}, {vr(s-1,2)} op_sel:[0,1]")

class VQ:
    def __init__(self, k):
        self.k = k; self.q = []
    def add(self, tag, n=1):
        self.q += [tag] * n
    def wait(self, pred):
        idx = [i for i, t in enumerate(self.q) if pred(t)]
        if not idx:
            return
        n = len(self.q) - 1 - max(idx)
        assert n <= 63
        self.k.e(f"s_waitcnt vmcnt({n})")
        self.q = self.q[max(idx) + 1:]
    def drain(self):
        self.q = []

def publish(k, ph, vaddr, nlanes, va):
    if not FUSED:
        return
    k.e(f"s_mov_b32 s62, {hex(WS_FL + ph*0x20000)}")
    k.e(f"v_mov_b32 v{va}, s{S_NONCE}")
    k.e(f"v_mov_b32 v{va+1}, s{S_NONCE+1}")
    k.e(f"s_mov_b64 exec, {hex((1 << nlanes) - 1)}")
    k.e("s_waitcnt vmcnt(0)")
    k.e(f"buffer_store_dwordx2 {vr(va,2)}, v{vaddr}, s[20:23], s62 offen sc1")
    k.e("s_mov_b64 exec, -1")

def mbox_g64(k, vd, vt, s_tm, s_slot):
    if not FUSED:
        return
    k.e(f"v_bfe_u32 v{vd}, v0, 2, 1")
    k.e(f"v_lshlrev_b32 v{vd}, 9, v{vd}")
    k.e(f"v_and_b32 v{vt}, 3, v0")
    k.e(f"v_lshl_add_u32 v{vd}, v{vt}, 15, v{vd}")
    k.e(f"s_lshr_b32 s62, s{s_tm}, 3")
    k.e("s_lshl_b32 s62, s62, 10")
    k.e(f"s_and_b32 s63, s{s_tm}, 7")
    k.e("s_lshl_b32 s63, s63, 12")
    k.e("s_add_u32 s62, s62, s63")
    k.e(f"s_lshl_b32 s63, s{s_slot}, 3")
    k.e("s_add_u32 s62, s62, s63")
    k.e(f"v_add_u32 v{vd}, s62, v{vd}")

def poll(k, tag, vaddr, vd, soff, sleep=0, atomic=False):
    if not FUSED:
        return
    k.e("s_mov_b32 s63, 0x8000")
    k.label("poll_" + tag)
    if atomic:
        k.e(f"v_mov_b32 v{vd}, 0")
        k.e(f"v_mov_b32 v{vd+1}, 0")
        k.e(f"buffer_atomic_or_x2 {vr(vd,2)}, v{vaddr}, s[20:23], {soff} offen sc0 sc1")
    else:
        k.e(f"buffer_load_dwordx2 {vr(vd,2)}, v{vaddr}, s[20:23], {soff} offen sc1")
    k.e("s_sub_u32 s63, s63, 1")
    k.e("s_waitcnt vmcnt(0)")
    k.e(f"v_cmp_ne_u64 vcc, s[{S_NONCE}:{S_NONCE+1}], {vr(vd,2)}")
    k.e(f"s_cbranch_scc1 {k.L('polld_' + tag)}")
    k.e(f"s_cbranch_vccz {k.L('polld_' + tag)}")
    k.e("s_mov_b64 exec, vcc")
    if sleep:
        k.e(f"s_sleep {sleep}")
    k.e(f"s_branch {k.L('poll_' + tag)}")
    k.label("polld_" + tag)
    k.e("s_mov_b64 exec, -1")

def pollp(k, tag, vaddr, vd, soff):
    n = NPIPE
    def iss(j):
        k.e(f"v_mov_b32 v{vd+2*j}, 0")
        k.e(f"v_mov_b32 v{vd+2*j+1}, 0")
        k.e(f"buffer_atomic_or_x2 {vr(vd+2*j,2)}, v{vaddr}, s[20:23], {soff} offen sc0 sc1")
    k.e("s_mov_b32 s63, 0x8000")
    for i in range(n - 1):
        iss(i)
        k.e(f"s_sleep {PGAP}")
    k.label("poll_" + tag)
    for i in range(n):
        iss((i + n - 1) % n)
        k.e(f"s_waitcnt vmcnt({n-1})")
        k.e(f"v_cmp_ne_u64 vcc, s[{S_NONCE}:{S_NONCE+1}], {vr(vd+2*i,2)}")
        k.e(f"s_cbranch_vccz {k.L('polld_' + tag)}")
        k.e("s_mov_b64 exec, vcc")
        k.e(f"s_sleep {PGAP}")
    k.e("s_sub_u32 s63, s63, 1")
    k.e(f"s_cbranch_scc0 {k.L('poll_' + tag)}")
    k.label("polld_" + tag)
    k.e("s_mov_b64 exec, -1")

def mbox_own(k, ph, vaddr, sreg):
    if not FUSED:
        return
    k.e(f"v_lshlrev_b32 v{vaddr}, 3, v0")
    k.e(f"s_lshl_b32 s{sreg}, s2, 9")
    k.e(f"s_add_u32 s{sreg}, s{sreg}, {hex(WS_FL + ph*0x20000)}")

def poll0(k, tag, vaddr, vd, soff, st, mask=None):
    if not FUSED:
        return
    k.e("s_cmp_lg_u32 s24, 0")
    k.e(f"s_cbranch_scc1 {k.L('nop_' + tag)}")
    k.stamp(st)
    if mask:
        k.e(f"s_mov_b64 exec, {mask}")
    if NPIPE > 1:
        pollp(k, tag, vaddr, 32, soff)
    else:
        poll(k, tag, vaddr, vd, soff, sleep=POLLSLEEP, atomic=True)
    k.label("nop_" + tag)
    k.bar()
    k.stamp(st + 1)

NPIPE = opt("NPIPE", 1)
PGAP = opt("PGAP", 2)
POLLSLEEP = opt("POLLSLEEP", 1)
KB = 1024
P4_X = [i * 8 * KB for i in range(6)]
P4_W = [104*KB, 116*KB, 128*KB, 140*KB, 48*KB, 60*KB, 72*KB, 84*KB]
P4_MISC = 96 * KB
P5_W = [x * KB for x in (152, 104, 112, 120, 128, 136, 144, 32, 40, 48, 56, 64)]
P5_A = [x * KB for x in (0, 8, 16, 24, 72, 80, 88)]
P5_RES = 96 * KB
P3_W = [x * KB for x in (128, 136, 144, 152, 64, 72, 80, 88)]
P3_A = [i * 8 * KB for i in range(8)]
P3_RES = 96 * KB
```

```python
import re, sys

TRANS = ("v_exp_", "v_log_", "v_rcp_", "v_rsq_", "v_sqrt_", "v_sin_", "v_cos_")

def parse_regs(tok):
    tok = tok.strip()
    tok = tok.replace("abs(", "").replace(")", "").lstrip("-").strip("|")
    m = re.fullmatch(r"([vsa])(\d+)", tok)
    if m:
        return [(m.group(1), int(m.group(2)))]
    m = re.fullmatch(r"([vsa])\[(\d+):(\d+)\]", tok)
    if m:
        return [(m.group(1), i) for i in range(int(m.group(2)), int(m.group(3)) + 1)]
    if tok == "vcc":
        return [("s", 106), ("s", 107)]
    if tok == "vcc_lo":
        return [("s", 106)]
    if tok == "vcc_hi":
        return [("s", 107)]
    if tok == "exec":
        return [("s", 126), ("s", 127)]
    if tok == "m0":
        return [("s", 124)]
    return []

class Ins:
    def __init__(self, text, lineno):
        self.text = text
        self.lineno = lineno
        parts = text.split(None, 1)
        self.op = parts[0]
        rest = parts[1] if len(parts) > 1 else ""
        ops = [o.strip() for o in re.split(r",(?![^\[]*\])", rest)] if rest else []
        self.mods = ""
        if ops:
            sp = ops[-1].split(None, 1)
            if len(sp) > 1:
                ops[-1] = sp[0]
                self.mods = sp[1]
        self.ops = ops
        op = self.op
        self.is_mfma = op.startswith("v_mfma") or op.startswith("v_smfmac")
        self.is_valu = op.startswith("v_") and not self.is_mfma
        self.is_trans = any(op.startswith(t) for t in TRANS)
        self.is_dot = op.startswith("v_dot")
        self.is_salu = op.startswith("s_")
        self.is_vmem = op.startswith(("buffer_", "global_", "flat_", "scratch_"))
        self.is_ds = op.startswith("ds_")
        self.is_lds_dma = self.is_vmem and (" lds" in (" " + self.mods) or "load_lds" in op)
        self.is_store = self.is_vmem and ("store" in op or "atomic" in op)
        self.writes, self.reads = [], []
        R = [parse_regs(o) for o in ops]
        if self.is_mfma:
            self.writes = R[0]
            self.srcA, self.srcB, self.srcC = R[1], R[2], (R[3] if len(R) > 3 else [])
            if op.startswith("v_smfmac"):
                self.srcB = self.srcB + self.srcC
                self.srcC = R[0]
            self.reads = self.srcA + self.srcB + self.srcC
            self.passes = 8 if ("32x32x16" in op or "smfmac_f32_32x32x32" in op) else 4 if "16x16x32" in op else 16
        elif self.is_valu:
            if op.startswith("v_cmp"):
                self.writes = R[0]
                self.reads = sum(R[1:], [])
                if op.startswith("v_cmpx"):
                    self.writes = self.writes + parse_regs("exec")
            elif op.startswith("v_permlane") and "swap" in op:
                self.writes = R[0] + R[1]
                self.reads = R[0] + R[1]
            elif op.startswith(("v_add_co", "v_sub_co", "v_addc_co", "v_subb_co", "v_subrev_co", "v_div_scale", "v_mad_u64")):
                self.writes = R[0] + R[1]
                self.reads = sum(R[2:], [])
            else:
                self.writes = R[0]
                self.reads = sum(R[1:], [])
                if op.startswith(("v_fmac", "v_dot2c", "v_pk_fmac", "v_mac")) or "sdwa" in op or "d16" in op:
                    self.reads = self.reads + R[0]
                if op.startswith("v_cndmask") and len(ops) == 3:
                    self.reads = self.reads + parse_regs("vcc")
        elif self.is_vmem:
            if self.is_lds_dma:
                self.reads = sum(R, []) + parse_regs("m0")
            elif self.is_store:
                self.reads = sum(R, [])
                if "atomic" in op and "sc0" in self.mods:
                    self.writes = R[0]
                if op.startswith("buffer_"):
                    self.data = R[0]
                else:
                    self.data = R[1]
            else:
                self.writes = R[0]
                self.reads = sum(R[1:], [])
        elif self.is_ds:
            if op.startswith(("ds_read", "ds_bpermute", "ds_permute", "ds_swizzle")):
                self.writes = R[0]
                self.reads = sum(R[1:], [])
            else:
                self.reads = sum(R, [])
        elif self.is_salu:
            if op.startswith(("s_cmp", "s_cbranch", "s_branch", "s_waitcnt", "s_barrier", "s_nop", "s_endpgm", "s_setprio", "s_sleep")):
                self.reads = sum(R, [])
            else:
                self.writes = R[0] if R else []
                self.reads = sum(R[1:], [])
                if "saveexec" in op:
                    self.writes = self.writes + parse_regs("exec")
        self.wset = set(self.writes)
        self.rset = set(self.reads)
        self.states = 1
        if op == "s_nop":
            self.states = int(ops[0], 0) + 1

def required(p, c):
    need = 0
    why = ""
    def upd(n, w):
        nonlocal need, why
        if n > need:
            need, why = n, w
    vw = {r for r in p.wset if r[0] in "va"}
    sw = {r for r in p.wset if r[0] == "s"}
    if p.is_valu:
        if c.is_mfma and vw & c.rset:
            upd(3 if p.is_dot else 2, "valu->mfma src")
        if p.is_trans and c.is_valu and not c.is_trans and vw & c.rset:
            upd(1, "trans->valu")
        if p.is_trans and (c.is_vmem or c.is_ds or c.is_mfma) and vw & c.rset:
            upd(2 if c.is_mfma else 1, "trans->mem")
        if c.op.startswith(("v_readlane", "v_readfirstlane")) and vw & c.rset:
            upd(1, "valu->readlane")
        if c.op.startswith("v_permlane") and vw & c.rset:
            upd(2, "valu->permlane")
        if ("dpp" in c.op or "row_" in c.mods or "quad_perm" in c.mods) and vw & c.rset:
            upd(2, "valu->dpp")
        if c.is_vmem and sw & c.rset:
            upd(5, "valu sgpr->vmem")
        if c.is_valu and sw & c.rset:
            upd(2, "valu sgpr->valu")
        if c.op.startswith(("v_readlane", "v_writelane")) and sw & c.rset:
            upd(4, "valu sgpr->lane select")
        if c.is_salu and sw & c.rset:
            upd(1, "valu sgpr->salu (pad)")
        if p.is_dot:
            if (c.is_valu or c.is_vmem or c.is_ds) and (vw & (c.rset | c.wset)):
                same_c = c.op == p.op and c.is_dot and not (vw & set(sum([parse_regs(o) for o in c.ops[1:3]], [])))
                if not same_c:
                    upd(3, "dot->other")
        if ("s", 126) in sw and (c.is_mfma):
            upd(4, "valu exec->mfma")
        if "sdwa" in p.op or "op_sel" in p.mods:
            if c.is_valu and vw & (c.rset | c.wset):
                upd(1, "sdwa/opsel->valu")
    if p.is_mfma:
        n = p.passes
        tab_other = {2: 5, 4: 8, 8: 12, 16: 20}[n]
        tab_c = {2: 4, 4: 6, 8: 10, 16: 18}[n]
        if c.is_mfma:
            if vw & (set(c.srcA) | set(c.srcB)):
                upd(tab_other, "mfma->mfma AB")
            if vw & set(c.srcC):
                if not (list(c.srcC) == list(p.writes) and c.passes == p.passes):
                    upd(tab_c, "mfma->mfma C overlap")
            elif vw & c.wset:
                upd(tab_c, "mfma->mfma WAW (pad)")
        elif (c.is_valu or c.is_vmem or c.is_ds) and (vw & (c.rset | c.wset)):
            upd(tab_other, "mfma->valu/mem")
        if c.is_valu and set(p.srcC) & c.wset:
            upd({2: 1, 4: 3, 8: 7, 16: 15}[n], "mfma C WAR")
        if (c.is_ds or c.is_vmem) and set(p.srcC) & c.wset:
            upd({2: 1, 4: 3, 8: 7, 16: 15}[n], "mfma C WAR(mem)")
    if p.is_salu and ("s", 124) in sw and (c.is_lds_dma or "addtid" in c.op):
        upd(1, "m0->dma")
    if p.is_store and len(getattr(p, "data", [])) >= 3:
        if set(p.data) & c.wset:
            upd(2 if c.is_valu else 1, "store data WAR")
    if p.is_ds and p.op.startswith("ds_write") and False:
        pass
    return need, why

def check(asm, verbose=True):
    lines = asm.splitlines()
    ins = []
    labels = {}
    for i, ln in enumerate(lines, 1):
        s = ln.split(";")[0].strip()
        if not s or s.startswith("."):
            continue
        m = re.match(r"^([\w.$]+):\s*(.*)$", s)
        if m:
            labels[m.group(1)] = len(ins)
            s = m.group(2).strip()
            if not s:
                continue
        if re.match(r"^(amdhsa|\-|\{|---|\.\.\.)", s):
            continue
        ins.append(Ins(s, i))
    n = len(ins)
    preds = [[] for _ in range(n + 1)]
    for i, x in enumerate(ins):
        if x.op == "s_endpgm":
            continue
        if x.op == "s_branch":
            preds[labels[x.ops[0]]].append(i)
            continue
        if x.op.startswith("s_cbranch"):
            preds[labels[x.ops[0]]].append(i)
        preds[i + 1].append(i)
    bad = []
    for ci, c in enumerate(ins):
        stack = [(p, 0) for p in preds[ci]]
        seen = {}
        while stack:
            pi, dist = stack.pop()
            if dist >= 20:
                continue
            if pi in seen and seen[pi] <= dist:
                continue
            seen[pi] = dist
            p = ins[pi]
            need, why = required(p, c)
            if need > dist:
                bad.append((c.lineno, p.lineno, need, dist, why, p.text, c.text))
            for q in preds[pi]:
                stack.append((q, dist + p.states))
    if verbose:
        for b in bad:
            print(f"HAZARD line {b[0]} (producer line {b[1]}): need {b[2]} have {b[3]} [{b[4]}]\n    P: {b[5]}\n    C: {b[6]}")
    return bad

if __name__ == "__main__":
    b = check(open(sys.argv[1]).read())
    print(len(b), "hazards")
```

```python
from base import *
K1_D = opt("K1_D", 4)
TLBW = opt("TLBW", 2)
TLBG = opt("TLBG", 0x10000)
def phase1(k):
    k.phase("p1")
    XP = 1040
    XH = 32 * XP
    WBASE = 2 * XH
    NSLOT = 7
    D = K1_D
    SLOT = 12288
    MISC = 0
    MISC2 = 2048
    k.use_lds(WBASE + NSLOT * SLOT)
    vl = k.v(); vt0 = k.v(); vt1 = k.v(); vt2 = k.v()
    vL16 = k.v()
    vXp = [k.v(), k.v()]; vXm = [k.v(), k.v()]
    vW0 = [k.v(), k.v()]; vW1 = [k.v(), k.v()]
    vR = k.v(2); vR2 = vR + 1
    sel = k.v(4)
    cs = [k.v(4) for _ in range(3)]
    acc = [k.v(16) for _ in range(3)]
    sets = [dict(XA=k.v(4), XB=k.v(4), WA=[k.v(4) for _ in range(3)], WB=[k.v(4) for _ in range(3)]) for _ in range(2)]
    BP = k.v(4); AP = [k.v(4) for _ in range(3)]
    vN = k.v(2)
    vMB = k.v()
    RR = sets[0]['WA'][0]
    def tag_read():
        if FUSED:
            k.e(f"v_mov_b32 v{vN}, {MISC+512}")
            k.e(f"ds_read_b64 {vr(vN,2)}, v{vN}")
    def tag_take():
        if FUSED:
            k.e(f"v_readfirstlane_b32 s{S_NONCE}, v{vN}")
            k.e(f"v_readfirstlane_b32 s{S_NONCE+1}, v{vN+1}")
    tile_map_32x8(k)
    k.e(f"v_lshrrev_b32 v{vt1}, 5, v0")
    k.e("s_cmp_ge_u32 s24, 4")
    k.e(f"s_cbranch_scc1 {k.L('cons')}")
    vWg = vXp[0]; vXg = vXp[1]
    k.e(f"v_lshrrev_b32 v{vt0}, 3, v0")
    k.e(f"v_mul_u32_u24 v{vWg}, 3072, v{vt0}")
    k.e(f"v_lshrrev_b32 v{vt0}, 2, v0")
    k.e(f"v_and_b32 v{vt0}, 4, v{vt0}")
    k.e(f"v_xor_b32 v{vt0}, v{vt0}, v0")
    k.e(f"v_and_b32 v{vt0}, 7, v{vt0}")
    k.e(f"v_lshl_add_u32 v{vWg}, v{vt0}, 4, v{vWg}")
    k.e(f"v_lshlrev_b32 v{vt0}, 3, v{vt1}")
    k.e(f"v_xor_b32 v{vt0}, v{vt0}, v0")
    k.e(f"v_lshl_add_u32 v{vt0}, s27, 2, v{vt0}")
    k.e(f"v_and_b32 v{vt0}, 31, v{vt0}")
    k.e(f"v_lshlrev_b32 v{vXg}, 10, v{vt1}")
    k.e(f"v_lshl_add_u32 v{vXg}, v{vt0}, 4, v{vXg}")
    k.e("s_lshl_b32 s31, s25, 16")
    k.e("s_lshl_b32 s36, s24, 11")
    k.e("s_add_u32 s31, s31, s36")
    k.e(f"s_mul_i32 s29, s24, {XP}")
    for g in range(4):
        k.e(f"s_add_u32 s36, s28, {g}")
        k.e("s_and_b32 s36, s36, 3")
        k.e(f"s_mul_i32 s{44+g}, s36, {8*XP}")
        k.e(f"s_add_u32 s{44+g}, s{44+g}, s29")
        k.e("s_lshl_b32 s36, s36, 14")
        k.e(f"s_add_u32 s{48+g}, s36, s31")
    k.e(f"s_mul_i32 s32, s24, {8*3072}")
    k.e("s_lshl_b32 s33, s26, 7")
    k.e("s_add_u32 s32, s32, s33")
    k.e(f"s_mul_i32 s33, s27, {32*3072}")
    k.e("s_add_u32 s33, s33, s32")
    k.e(f"s_add_u32 s35, s32, {256*3072}")
    k.e("s_mul_i32 s34, s24, 3072")
    k.e(f"s_add_u32 s34, s34, {WBASE}")
    k.e(f"s_mov_b32 s14, {2048*1024}")
    k.e("s_mov_b32 s15, 0x00020000")
    k.e(f"s_mov_b32 s18, {512*3072}")
    k.e("s_mov_b32 s19, 0x00020000")
    args_ready(k)
    k.e(f"s_mov_b64 s[12:13], s[{S_X}:{S_X+1}]")
    k.e(f"s_mov_b64 s[16:17], s[{S_WQKV}:{S_WQKV+1}]")
    q = VQ(k)
    def xgrp(g, half):
        k.e(f"s_add_u32 m0, s{44+g}, {half*(XH-512)}")
        k.e(f"s_add_u32 s36, s{48+g}, 8192")
        k.e(f"buffer_load_dwordx4 v{vXg}, s[12:15], s{48+g} offen offset:{half*512} lds")
        k.e(f"s_add_u32 m0, s{44+g}, {half*(XH-512) + 4*XP}")
        k.e("s_nop 0")
        k.e(f"buffer_load_dwordx4 v{vXg}, s[12:15], s36 offen offset:{half*512} lds")
        q.add(0 if half == 0 else 5, 2)
    def wstage(s):
        k.e(f"s_add_u32 m0, s34, {(s % NSLOT)*SLOT}")
        k.e(f"s_add_u32 s36, s33, {32*3072}")
        for g in range(3):
            k.e(f"buffer_load_dwordx4 v{vWg}, s[16:19], s33 offen offset:{g*1024} lds")
        if s < 15:
            k.e("s_cmp_eq_u32 s36, s35")
            k.e("s_cselect_b32 s33, s32, s36")
        if s == 7:
            k.e(f"s_add_u32 s33, s33, {256*3072}")
            k.e("s_mov_b32 s32, s35")
            k.e(f"s_add_u32 s35, s35, {256*3072}")
        q.add(s, 3)
    xgrp(0, 0); wstage(0)
    for g in (1, 2, 3): xgrp(g, 0)
    for s in range(1, D): wstage(s)
    for s in range(16):
        q.wait(lambda t: t <= s)
        k.bar()
        if STAMP == 1 or s in (0, 15): k.stamp(1 + s)
        if s < 2:
            xgrp(2*s, 1); xgrp(2*s+1, 1)
        if s + D < 16:
            wstage(s + D)
        if s == TLBW:
            k.e("s_lshr_b32 s37, s2, 3")
            k.e("s_lshl_b32 s37, s37, 2")
            k.e("s_add_u32 s37, s37, s24")
            k.e("s_mul_i32 s36, s37, 0x30000")
            k.e(f"s_add_u32 s38, s{S_WS}, s36")
            k.e(f"s_addc_u32 s39, s{S_WS+1}, 0")
            for i in range(0, 0x30000, TLBG):
                k.e(f"s_load_dword s40, s[38:39], {hex(i)}")
            for p, sz in ((S_WO, 512*1024), (S_WG, 512*2752), (S_WU, 512*2752), (S_WD, 1376*1024), (S_OUT, 2048*1024)):
                k.e(f"s_mul_i32 s36, s37, {(sz // 128) & ~63}")
                k.e(f"s_load_dword s40, s[{p}:{p+1}], s36")
    k.label("tail")
    tag_read()
    if FUSED:
        k.e("s_waitcnt lgkmcnt(0)")
        tag_take()
        k.bar()
        k.e("s_cmp_lt_u32 s24, 4")
        k.e(f"s_cbranch_scc1 {k.L('done')}")
        k.bar()
    k.e(f"s_branch {k.L('done')}")
    k.label("stat")
    k.e("s_setprio 3")
    vSum = vXp[0]; vSq = vXp[1]; vSum2 = vXm[0]; vSq2 = vXm[1]; vXs = vW0[0]
    k.e("s_and_b32 s29, s24, 3")
    k.e(f"v_and_b32 v{vt0}, 15, v0")
    k.e(f"v_lshrrev_b32 v{vt2}, 1, v{vt0}")
    k.e(f"v_mul_u32_u24 v{vXs}, {XP}, v{vt2}")
    k.e(f"v_and_b32 v{vt2}, 1, v0")
    k.e(f"v_lshl_add_u32 v{vXs}, v{vt2}, 9, v{vXs}")
    k.e(f"v_lshrrev_b32 v{vt1}, 4, v0")
    k.e(f"v_xor_b32 v{vt1}, v{vt1}, v{vt2}")
    k.e(f"v_lshl_add_u32 v{vXs}, v{vt1}, 7, v{vXs}")
    k.e(f"s_mul_i32 s36, s29, {8*XP}")
    k.e(f"v_add_u32 v{vXs}, s36, v{vXs}")
    for z in (vSum, vSq, vSum2, vSq2):
        k.e(f"v_mov_b32 v{z}, 0")
    k.e("s_mov_b32 s41, 0xffff0000")
    k.e("s_mov_b32 s40, 0")
    args_ready(k)
    vZ = vW0[1]
    if FUSED:
        srd(k, 12, S_DBG, 256)
        k.e(f"v_mov_b32 v{vZ}, 0")
        k.e("s_lshl_b32 s36, s2, 4")
        k.e("s_add_u32 s36, s36, s24")
        k.e("s_cmp_lg_u32 s36, 8")
        k.e(f"s_cbranch_scc1 {k.L('notag')}")
        k.e("s_memrealtime s[36:37]")
        k.e("s_waitcnt lgkmcnt(0)")
        k.e("s_or_b32 s37, s37, 0x40000000")
        k.e(f"v_mov_b32 v{vN}, s36")
        k.e(f"v_mov_b32 v{vN+1}, s37")
        k.e(f"buffer_store_dwordx2 {vr(vN,2)}, v{vZ}, s[12:15], 0 offen sc1")
        k.e("s_waitcnt vmcnt(0)")
        k.label("notag")
    XS = [sets[0]['XA'], sets[0]['XB']]
    tl = [sets[1]['XA'] + i for i in range(4)]
    def proc(X):
        for i in range(4):
            a, b = tl[(2*i) % 4], tl[(2*i+1) % 4]
            x = X + i
            for ln in [f"v_lshlrev_b32 v{a}, 16, v{x}", f"v_and_b32 v{b}, s41, v{x}",
                       f"v_fmac_f32 v{vSq}, v{a}, v{a}", f"v_fmac_f32 v{vSq2}, v{b}, v{b}",
                       f"v_add_f32 v{vSum}, v{vSum}, v{a}", f"v_add_f32 v{vSum2}, v{vSum2}, v{b}"]:
                k.e(ln)
    k.bar()
    k.e(f"ds_read_b128 {vr(XS[0],4)}, v{vXs}")
    if FUSED:
        k.e(f"buffer_load_dwordx2 {vr(vN,2)}, v{vZ}, s[12:15], 0 offen sc1")
    k.label("sloop")
    k.e("s_waitcnt lgkmcnt(0)")
    k.e(f"ds_read_b128 {vr(XS[1],4)}, v{vXs} offset:16")
    k.e("s_cmp_eq_u32 s40, 3")
    k.e(f"s_cselect_b32 s36, {XH-96}, 32")
    k.e(f"v_add_u32 v{vXs}, s36, v{vXs}")
    k.e("s_cmp_lt_u32 s40, 2")
    proc(XS[0])
    k.e(f"s_cbranch_scc1 {k.L('snb')}")
    k.bar()
    k.label("snb")
    k.e("s_waitcnt lgkmcnt(0)")
    k.e(f"ds_read_b128 {vr(XS[0],4)}, v{vXs}")
    k.e("s_add_u32 s40, s40, 1")
    k.e("s_cmp_lt_u32 s40, 8")
    proc(XS[1])
    k.bar()
    k.e(f"s_cbranch_scc1 {k.L('sloop')}")
    k.e(f"v_add_f32 v{vSum}, v{vSum}, v{vSum2}")
    k.e(f"v_add_f32 v{vSq}, v{vSq}, v{vSq2}")
    k.e("s_nop 1")
    k.e(f"v_permlane32_swap_b32 v{vSum}, v{vSq}")
    k.e(f"v_add_f32 v{vSum}, v{vSum}, v{vSq}")
    k.e(f"v_mov_b32 v{vSq}, v{vSum}")
    k.e("s_nop 1")
    k.e(f"v_permlane16_swap_b32 v{vSum}, v{vSq}")
    k.e(f"v_add_f32 v{vSum}, v{vSum}, v{vSq}")
    k.e(f"v_mov_b32 v{vSq}, v{vSum}")
    k.e("s_nop 1")
    k.e(f"v_permlane32_swap_b32 v{vSum}, v{vSq}")
    ln_finish(k, vSum, vSq, vSum2, vSq2, vt2)
    k.e("s_lshl_b32 s36, s29, 6")
    k.e(f"v_lshl_add_u32 v{vt0}, v{vt0}, 2, s36")
    k.e(f"ds_write2_b32 v{vt0}, v{vSum2}, v{vSq2} offset0:{MISC//4} offset1:{MISC//4+64}")
    if FUSED:
        k.e("s_mov_b32 s63, 0x8000")
        k.label("tagw")
        k.e("s_waitcnt vmcnt(0)")
        k.e(f"v_cmp_eq_u32 vcc, 0, v{vN+1}")
        k.e("s_sub_u32 s63, s63, 1")
        k.e(f"s_cbranch_scc1 {k.L('tagok')}")
        k.e(f"s_cbranch_vccz {k.L('tagok')}")
        k.e(f"buffer_load_dwordx2 {vr(vN,2)}, v{vZ}, s[12:15], 0 offen sc1")
        k.e(f"s_branch {k.L('tagw')}")
        k.label("tagok")
        k.e(f"ds_write_b64 v{vZ}, {vr(vN,2)} offset:{MISC+512}")
    k.e("s_waitcnt lgkmcnt(0)")
    k.e("s_setprio 0")
    k.bar()
    k.e(f"s_branch {k.L('tail')}")
    k.label("cons")
    k.e("s_cmp_ge_u32 s24, 8")
    k.e(f"s_cbranch_scc1 {k.L('stat')}")
    k.e(f"v_lshlrev_b32 v{vL16}, 4, v0")
    k.e("s_and_b32 s33, s24, 1")
    k.e("s_bfe_u32 s34, s24, 0x10001")
    k.e("s_xor_b32 s35, s33, s34")
    k.e(f"v_bfe_u32 v{vt0}, v0, 1, 4")
    k.e(f"v_mul_u32_u24 v{vt2}, {XP}, v{vt0}")
    k.e(f"v_lshl_add_u32 v{vt2}, v{vt1}, 4, v{vt2}")
    k.e(f"v_and_b32 v{vt0}, 1, v0")
    k.e(f"v_mul_u32_u24 v{vXp[0]}, {512+128}, v{vt0}")
    k.e(f"v_mul_u32_u24 v{vXm[0]}, {512-128}, v{vt0}")
    k.e(f"s_mul_i32 s36, s33, {16*XP}")
    k.e("s_lshl_b32 s37, s35, 5")
    k.e("s_add_u32 s38, s36, s37")
    k.e("s_xor_b32 s37, s37, 32")
    k.e("s_add_u32 s39, s36, s37")
    k.e(f"v_add3_u32 v{vXp[1]}, v{vXp[0]}, v{vt2}, s39")
    k.e(f"v_add3_u32 v{vXm[1]}, v{vXm[0]}, v{vt2}, s39")
    k.e(f"v_add3_u32 v{vXp[0]}, v{vXp[0]}, v{vt2}, s38")
    k.e(f"v_add3_u32 v{vXm[0]}, v{vXm[0]}, v{vt2}, s38")
    w = vW1[1]
    k.e(f"v_mul_u32_u24 v{w}, 3072, v{vt1}")
    k.e(f"v_bfe_u32 v{vt0}, v0, 2, 2")
    k.e(f"v_lshl_add_u32 v{w}, v{vt0}, 7, v{w}")
    k.e(f"v_bfe_u32 v{vt0}, v0, 3, 1")
    k.e(f"v_xor_b32 v{vt0}, s34, v{vt0}")
    k.e(f"v_lshl_add_u32 v{w}, v{vt0}, 6, v{w}")
    k.e(f"v_bfe_u32 v{vt0}, v0, 4, 1")
    k.e(f"v_lshl_add_u32 v{w}, v{vt0}, 5, v{w}")
    k.e(f"v_and_b32 v{vt2}, 3, v0")
    k.e(f"v_lshl_add_u32 v{w}, v{vt2}, 3, v{w}")
    k.e("s_mul_i32 s28, s35, 6144")
    k.e(f"s_add_u32 s36, s28, {WBASE}")
    k.e(f"s_sub_u32 s37, {WBASE+6144}, s28")
    k.e(f"v_add_u32 v{vW0[0]}, s36, v{w}")
    k.e(f"v_add_u32 v{vW0[1]}, s37, v{w}")
    k.e(f"v_add_u32 v{vW1[0]}, {4*SLOT}, v{vW0[0]}")
    k.e(f"v_add_u32 v{vW1[1]}, {4*SLOT}, v{vW0[1]}")
    k.e(f"v_bfe_u32 v{vt2}, v0, 2, 1")
    k.e(f"v_cmp_eq_u32 vcc, v{vt0}, v{vt2}")
    k.e(f"v_mov_b32 v{vt2}, 0x3f803f80")
    k.e("s_nop 0")
    k.e(f"v_cndmask_b32 v{sel}, 0, v{vt2}, vcc")
    for i in range(1, 4):
        k.e(f"v_mov_b32 v{sel+i}, v{sel}")
    for z in list(range(BP, BP + 16)):
        k.e(f"v_mov_b32 v{z}, 0")
    k.e("s_lshl_b32 s27, s26, 2")
    k.e("s_lshl_b32 s28, s34, 1")
    k.e("s_add_u32 s27, s27, s28")
    k.e("s_lshl_b32 s27, s27, 6")
    k.e("s_lshl_b32 s28, s25, 1")
    k.e("s_add_u32 s27, s27, s28")
    k.e("s_add_u32 s27, s27, s33")
    k.e("s_lshl_b32 s42, s27, 10")
    k.e("s_add_u32 s43, s42, 0x10000")
    k.e("s_lshl_b32 s44, s27, 11")
    k.e(f"s_add_u32 s44, s44, {hex(WS_KV)}")
    k.e("s_add_u32 s45, s44, 0x20000")
    k.e("s_and_b32 s46, s24, 3")
    if FUSED:
        k.e(f"v_bfe_u32 v{vMB}, v0, 2, 2")
        k.e(f"v_lshlrev_b32 v{vMB}, 10, v{vMB}")
        k.e(f"v_bfe_u32 v{vt2}, v0, 1, 1")
        k.e(f"v_lshl_add_u32 v{vMB}, v{vt2}, 16, v{vMB}")
        k.e(f"v_and_b32 v{vt2}, 1, v0")
        k.e(f"v_lshl_add_u32 v{vMB}, v{vt2}, 12, v{vMB}")
        k.e("s_lshr_b32 s27, s26, 2")
        k.e("s_lshl_b32 s27, s27, 9")
        k.e("s_and_b32 s28, s26, 3")
        k.e("s_lshl_b32 s28, s28, 14")
        k.e("s_add_u32 s27, s27, s28")
        k.e("s_lshl_b32 s28, s34, 13")
        k.e("s_add_u32 s27, s27, s28")
        k.e("s_lshl_b32 s28, s25, 4")
        k.e("s_add_u32 s27, s27, s28")
        k.e("s_lshl_b32 s28, s33, 3")
        k.e("s_add_u32 s27, s27, s28")
        k.e(f"v_add_u32 v{vMB}, s27, v{vMB}")
    args_ready(k)
    def big(S, first=False):
        r = []
        for n, (X, W) in enumerate(((S['XA'], S['WA']), (S['XB'], S['WB']))):
            c = "0" if (first and n == 0) else None
            r += [mfma32(acc[0], W[0], X, c), mfma32(acc[1], W[1], X, c), mfma32(acc[2], X, W[2], c)]
        return r
    def small(S, first=False):
        return [f"v_mfma_f32_16x16x32_bf16 {vr(cs[g],4)}, {vr(sel,4)}, {vr(S['WA'][g],4)}, {'0' if first else vr(cs[g],4)}" for g in range(3)]
    def reads(s):
        S = sets[s & 1]
        koff = (s & 7) * 64
        xb = vXm if (koff & 128) else vXp
        xo = (s >> 3) * XH + koff
        sl = s % NSLOT
        wb, wo = (vW0, sl * SLOT) if sl < 4 else (vW1, (sl - 4) * SLOT)
        r = []
        for n, (X, W) in enumerate((('XA', 'WA'), ('XB', 'WB'))):
            r.append(f"ds_read_b128 {vr(S[X],4)}, v{xb[n]} offset:{xo}")
            for g in range(3):
                r.append(f"ds_read_b64_tr_b16 {vr(S[W][g],2)}, v{wb[n]} offset:{wo+g*1024}")
                r.append(f"ds_read_b64_tr_b16 {vr(S[W][g]+2,2)}, v{wb[n]} offset:{wo+g*1024+512}")
        return r
    k.bar()
    for x in reads(0): k.e(x)
    k.e("s_waitcnt lgkmcnt(0)")
    for s in range(15):
        k.bar()
        b = big(sets[s & 1], s == 0); sm = small(sets[s & 1], s == 0)
        m = b[:5] + sm + b[5:]
        spread(k, m[:-1], reads(s + 1), [], 3, 5)
        k.e("s_waitcnt lgkmcnt(0)")
        k.e(m[-1])
    k.stamp(1)
    for m in small(sets[1]): k.e(m)
    k.e(f"v_and_b32 v{vt0}, 31, v0")
    k.e("s_lshl_b32 s27, s33, 7")
    k.e(f"v_lshl_add_u32 v{vt0}, v{vt0}, 2, s27")
    k.e(f"v_lshl_add_u32 v{vt1}, v{vt1}, 4, s27")
    bg = big(sets[1])
    k.e(bg[0])
    k.e(f"ds_read_b32 v{BP}, v{vt0} offset:{MISC}")
    k.e(f"ds_read_b32 v{vR}, v{vt0} offset:{MISC+256}")
    tag_read()
    for j in range(4):
        k.e(f"ds_read_b128 {vr(RR+4*j,4)}, v{vt1} offset:{MISC+256+j*32}")
    T = sets[0]['XA']; B = sets[0]['XB']
    k.e(bg[1])
    k.e("s_lshl_b32 s27, s46, 10")
    k.e(f"v_add_u32 v{vt1}, s27, v{vL16}")
    for g in range(3):
        k.e(f"v_mov_b32 v{T+g}, v{cs[g]}")
    k.e(f"ds_write_b128 v{vt1}, {vr(T,4)} offset:{MISC2}")
    k.e(bg[2])
    k.e(f"v_xor_b32 v{vt1}, 1024, v{vt1}")
    k.e("v_cmp_gt_u32 vcc, 32, v0")
    k.e("s_waitcnt lgkmcnt(0)")
    k.e(bg[3])
    k.bar()
    k.e(f"ds_read_b128 {vr(B,4)}, v{vt1} offset:{MISC2}")
    k.e(bg[4])
    k.e(f"v_cndmask_b32 v{BP}, 0, v{BP}, vcc")
    k.e(f"v_mul_f32 v{vR2}, {f32(0.25*1.4426950408889634)}, v{vR}")
    k.e(f"v_bfe_u32 v{vt0}, v0, 4, 1")
    k.e(f"v_lshlrev_b32 v{vt0}, 17, v{vt0}")
    k.e(f"v_lshrrev_b32 v{vt1}, 5, v0")
    k.e(bg[5])
    k.e(f"v_lshl_add_u32 v{vt0}, v{vt1}, 8, v{vt0}")
    k.e(f"v_and_b32 v{vt1}, 15, v0")
    k.e(f"v_lshl_add_u32 v{vt0}, v{vt1}, 4, v{vt0}")
    tag_take()
    k.e("s_waitcnt lgkmcnt(0)")
    order = [1, 2, 0]
    for n, g in enumerate(order):
        k.e(f"v_add_f32 v{T+g}, v{T+g}, v{B+g}")
        split2(k, T + g, AP[g], vt2)
        if n:
            p = order[n-1]
            k.e(mfma32(acc[p], BP, AP[p]) if p == 2 else mfma32(acc[p], AP[p], BP))
    k.e("s_nop 0")
    k.e(mfma32(acc[0], AP[0], BP))
    k.e("s_nop 4")
    def qk(b, sc, soffs, plain):
        for i in range(0, 16, 2):
            if i < plain:
                k.e(f"v_mul_f32 v{acc[b]+i}, v{sc}, v{acc[b]+i}")
                k.e(f"v_mul_f32 v{acc[b]+i+1}, v{sc}, v{acc[b]+i+1}")
            else:
                pkmul_bcast(k, acc[b] + i, sc)
        for i in range(8):
            k.e(f"v_cvt_pk_bf16_f32 v{acc[b]+i}, v{acc[b]+2*i}, v{acc[b]+2*i+1}")
        k.e(f"buffer_store_dwordx4 {vr(acc[b],4)}, v{vL16}, s[20:23], s{soffs[0]} offen{SC}")
        k.e(f"buffer_store_dwordx4 {vr(acc[b]+4,4)}, v{vL16}, s[20:23], s{soffs[1]} offen{SC}")
    qk(1, vR, (44, 45), 8)
    a = acc[2]
    for i in range(0, 16, 2):
        k.e(f"v_pk_mul_f32 {vr(a+i,2)}, {vr(a+i,2)}, {vr(RR+i,2)}")
    for i in range(8):
        k.e(f"v_cvt_pk_bf16_f32 v{a+i}, v{a+2*i}, v{a+2*i+1}")
    k.e(f"v_permlane32_swap_b32 v{a}, v{a+2}")
    k.e(f"v_permlane32_swap_b32 v{a+1}, v{a+3}")
    k.e(f"buffer_store_dwordx4 {vr(a,4)}, v{vt0}, s[20:23], s44 offen offset:1024{SC}")
    k.e(f"v_permlane32_swap_b32 v{a+4}, v{a+6}")
    k.e(f"v_permlane32_swap_b32 v{a+5}, v{a+7}")
    k.e(f"buffer_store_dwordx4 {vr(a+4,4)}, v{vt0}, s[20:23], s44 offen offset:1536{SC}")
    qk(0, vR2, (42, 43), 0)
    k.stamp(2)
    publish(k, 0, vMB, 16, vN)
    k.stamp(3)
    if FUSED: k.bar()
    k.label("done")
    k.first = False
```

```python
from base import *
PREFETCH = opt("PREFETCH", 1)
STG = 131072
def ft_poll(k, tag, vA, vD, kind):
    if not FUSED:
        return
    if kind in "od":
        k.e(f"v_min_u32 v{vA}, {15 if kind == 'o' else 42}, v0")
        k.e(f"v_lshlrev_b32 v{vA}, 6, v{vA}")
        k.e("s_lshl_b32 s62, s26, 3")
        k.e(f"s_add_u32 s62, s62, {hex(WS_FT + (1048 if kind == 'o' else 704)*8)}")
    else:
        k.e("s_mul_i32 s62, s26, 3")
        k.e(f"v_lshrrev_b32 v{vA}, 5, v0")
        k.e(f"v_lshl_add_u32 v{vA}, v{vA}, 1, s62")
        k.e(f"v_lshrrev_b32 v{vA}, 1, v{vA}")
        k.e(f"v_min_u32 v{vA}, 21, v{vA}")
        k.e(f"v_lshlrev_b32 v{vA}, 4, v{vA}")
        k.e(f"v_bfe_u32 v{vD}, v0, 4, 1")
        k.e(f"v_mul_u32_u24 v{vD}, 352, v{vD}")
        k.e(f"v_and_b32 v{vD+1}, 15, v0")
        k.e(f"v_add3_u32 v{vA}, v{vA}, v{vD}, v{vD+1}")
        k.e(f"v_lshlrev_b32 v{vA}, 3, v{vA}")
        k.e(f"s_mov_b32 s62, {hex(WS_FT)}")
    poll(k, tag, vA, vD, "s62", sleep=32)

def phase2(k, p3_preload):
    k.phase("p2")
    k.use_lds(STG + 32768)
    PST = STG + 8192
    vl = k.v(); vt0 = k.v(); vt1 = k.v(); vL16 = k.v(); vK = k.v(); vV = k.v(); vSrc = k.v(); vDst = k.v()
    vIdx = k.v(); vCs = k.v(); vt2 = k.v(); vt3 = k.v()
    vP = k.v(2)
    Q = k.v(4); KA = k.v(4); KB = k.v(4)
    VA = [k.v(4), k.v(4)]; VB = [k.v(4), k.v(4)]
    NM = k.v(16); SA = k.v(16); SB = k.v(16); O = k.v(16)
    PR = [NM + 4*i for i in range(4)]
    k.e(f"v_lshlrev_b32 v{vL16}, 4, v0")
    k.e("s_and_b32 s25, s2, 1")
    k.e("s_lshl_b32 s25, s25, 4")
    k.e("s_bfe_u32 s27, s2, 0x40003")
    k.e("s_add_u32 s25, s25, s27")
    k.e("s_and_b32 s40, s2, 6")
    k.e("s_lshr_b32 s26, s2, 7")
    k.e("s_add_u32 s26, s26, s40")
    k.e("s_cmp_ge_u32 s24, 4")
    k.e(f"s_cbranch_scc1 {k.L('comp')}")
    def prepA(r, dma=True, slot4=False):
        k.e(f"v_lshrrev_b32 v{vt1}, 5, v0")
        k.e("s_mov_b32 s27, s46")
        k.e(f"v_and_b32 v{vt0}, 31, v0")
        k.e("s_cmp_lt_u32 s27, 704")
        k.e(f"s_cbranch_scc0 {k.L('prepB' + r)}")
        k.e("s_cmp_ge_u32 s27, 352")
        k.e("s_cselect_b32 s47, 256, 0")
        k.e(f"s_cselect_b64 s[16:17], s[{S_WU}:{S_WU+1}], s[{S_WG}:{S_WG+1}]")
        k.e("s_cselect_b32 s28, 352, 0")
        k.e("s_sub_u32 s27, s27, s28")
        k.e("s_and_b32 s34, s27, 15")
        k.e("s_lshr_b32 s32, s27, 4")
        k.e(f"s_mov_b32 s18, {512*2752}")
        k.e("s_mov_b32 s33, 2752")
        for p in range(2):
            k.e("s_lshl_b32 s27, s32, 1")
            if p: k.e("s_add_u32 s27, s27, 1")
            k.e("s_mul_i32 s28, s27, 43691")
            k.e("s_lshr_b32 s28, s28, 17")
            k.e("s_mul_i32 s35, s28, 186")
            k.e("s_lshl_b32 s28, s27, 1")
            k.e("s_add_u32 s35, s35, s28")
            k.e("s_mul_i32 s28, s34, 12")
            k.e("s_add_u32 s35, s35, s28")
            k.e("s_lshl_b32 s35, s35, 10")
            k.e(f"s_add_u32 s{36+p}, s35, {hex(WS_WGU)}")
        k.e("s_cmp_eq_u32 s32, 21")
        k.e(f"s_cselect_b32 s37, {hex(OOB)}, s37")
        k.e("s_mov_b32 s38, 6144")
        k.e(f"v_lshrrev_b32 v{vt2}, 4, v{vt0}")
        k.e(f"v_and_b32 v{vt3}, 15, v0")
        k.e(f"v_lshlrev_b32 v{vt3}, 4, v{vt3}")
        k.e(f"v_add_u32 v{vt3}, s47, v{vt3}")
        k.e(f"v_lshl_add_u32 v{vDst}, v{vt2}, 10, v{vt3}")
        k.e(f"v_lshl_add_u32 v{vDst}, v{vt1}, 9, v{vDst}")
        k.e(f"v_lshl_add_u32 v{vCs}, v{vt2}, 11, v{vt3}")
        k.e(f"v_lshl_add_u32 v{vCs}, v{vt1}, 12, v{vCs}")
        k.e("s_lshl_b32 s39, s32, 13")
        k.e("s_lshr_b32 s27, s34, 2")
        k.e("s_lshl_b32 s27, s27, 9")
        k.e("s_add_u32 s39, s39, s27")
        k.e("s_and_b32 s27, s34, 3")
        k.e("s_lshl_b32 s27, s27, 2")
        k.e("s_add_u32 s39, s39, s27")
        k.e(f"s_add_u32 s39, s39, {hex(WS_CS)}")
        k.e(f"s_branch {k.L('prepC' + r)}")
        k.label("prepB" + r)
        k.e("s_cmp_lt_u32 s27, 1048")
        k.e(f"s_cselect_b64 s[16:17], s[{S_WD}:{S_WD+1}], s[{S_WO}:{S_WO+1}]")
        k.e(f"s_mov_b32 s18, {512*1024}")
        k.e(f"s_cselect_b32 s18, {1376*1024}, s18")
        k.e("s_cselect_b32 s35, 86, 32")
        k.e("s_movk_i32 s28, 1048")
        k.e("s_cselect_b32 s28, 704, s28")
        k.e(f"s_mov_b32 s36, {hex(WS_WO)}")
        k.e(f"s_cselect_b32 s36, {hex(WS_WD)}, s36")
        k.e("s_sub_u32 s27, s27, s28")
        k.e("s_and_b32 s32, s27, 7")
        k.e("s_lshr_b32 s34, s27, 3")
        k.e("s_mov_b32 s33, 1024")
        k.e("s_mul_i32 s27, s32, s35")
        k.e("s_lshl_b32 s28, s34, 1")
        k.e("s_add_u32 s27, s27, s28")
        k.e("s_lshl_b32 s27, s27, 11")
        k.e("s_add_u32 s36, s36, s27")
        k.e("s_add_u32 s37, s36, 1024")
        k.e("s_mov_b32 s38, 2048")
        k.e(f"v_mov_b32 v{vDst}, v{vL16}")
        k.e(f"v_mov_b32 v{vCs}, 0")
        k.e(f"s_mov_b32 s39, {hex(OOB)}")
        k.label("prepC" + r)
        k.e("s_mov_b32 s19, 0x00020000")
        k.e(f"v_lshrrev_b32 v{vt2}, 3, v0")
        k.e(f"v_mul_u32_u24 v{vSrc}, s33, v{vt2}")
        k.e(f"v_lshrrev_b32 v{vt2}, 2, v0")
        k.e(f"v_and_b32 v{vt2}, 4, v{vt2}")
        k.e(f"v_xor_b32 v{vt2}, v{vt2}, v0")
        k.e(f"v_and_b32 v{vt2}, 7, v{vt2}")
        k.e(f"v_lshl_add_u32 v{vSrc}, v{vt2}, 4, v{vSrc}")
        k.e("s_lshl_b32 s27, s34, 5")
        k.e("s_mul_i32 s27, s27, s33")
        k.e("s_lshl_b32 s28, s32, 7")
        k.e("s_add_u32 s27, s27, s28")
        k.e("s_lshl_b32 s33, s33, 3")
        k.e("s_lshl_b32 s28, s24, 12")
        k.e(f"s_add_u32 s28, s28, {PST + (4096 if slot4 else 0)}")
        for rb in range(4 if dma else 0):
            k.e(f"s_add_u32 m0, s28, {rb*1024}")
            k.e("s_nop 0")
            k.e(f"buffer_load_dwordx4 v{vSrc}, s[16:19], s27 offen lds")
            k.e("s_add_u32 s27, s27, s33")
        k.e(f"v_and_b32 v{vt2}, 3, v0")
        k.e(f"v_lshlrev_b32 v{vSrc}, 3, v{vt2}")
        k.e(f"v_lshl_add_u32 v{vSrc}, v{vt1}, 9, v{vSrc}")
        k.e(f"v_bfe_u32 v{vt2}, v0, 2, 2")
        k.e(f"v_lshl_add_u32 v{vSrc}, v{vt2}, 7, v{vSrc}")
        k.e(f"v_bfe_u32 v{vt2}, v0, 3, 1")
        k.e(f"v_lshl_add_u32 v{vSrc}, v{vt2}, 6, v{vSrc}")
        k.e(f"v_bfe_u32 v{vt2}, v0, 4, 1")
        k.e(f"v_lshl_add_u32 v{vSrc}, v{vt2}, 5, v{vSrc}")
        k.e(f"v_add_u32 v{vSrc}, s28, v{vSrc}")
    def prepB():
        k.e(f"v_xor_b32 v{vt2}, 64, v{vSrc}")
        k.e(f"v_mov_b32 v{vt0}, 0")
        k.e(f"v_mov_b32 v{vt3}, 0")
        k.e("s_mov_b32 s27, 0x3f803f80")
        k.e("s_waitcnt vmcnt(0)")
        for ksl in range(2):
            for p in range(2):
                r = PR[ksl*2+p]
                a = vSrc if p == 0 else vt2
                k.e(f"ds_read_b64_tr_b16 {vr(r,2)}, v{a} offset:{ksl*2048}")
                k.e(f"ds_read_b64_tr_b16 {vr(r+2,2)}, v{a} offset:{ksl*2048+1024}")
        k.e("s_waitcnt lgkmcnt(0)")
        for ksl in range(2):
            for p in range(2):
                r = PR[ksl*2+p]
                k.e(f"buffer_store_dwordx4 {vr(r,4)}, v{vDst}, s[20:23], s{36+p} offen sc1")
                if ksl == 0:
                    k.e(f"s_add_u32 s{36+p}, s{36+p}, s38")
                for i in range(4):
                    k.e(f"v_dot2c_f32_bf16 v{vt0 if p == 0 else vt3}, s27, v{r+i}")
        k.e("s_nop 2")
        k.e(f"v_permlane32_swap_b32 v{vt0}, v{vt3}")
        k.e(f"v_add_f32 v{vt0}, v{vt0}, v{vt3}")
        k.e(f"buffer_store_dword v{vt0}, v{vCs}, s[20:23], s39 offen sc1")
        if FUSED:
            k.e("s_lshl_b32 s27, s46, 3")
            k.e(f"s_add_u32 s27, s27, {hex(WS_FT)}")
            k.e(f"v_mov_b32 v{vP}, s{S_NONCE}")
            k.e(f"v_mov_b32 v{vP+1}, s{S_NONCE+1}")
            k.e(f"v_mov_b32 v{vt2}, 0")
            k.e("s_mov_b64 exec, 1")
            k.e("s_waitcnt vmcnt(0)")
            k.e(f"buffer_store_dwordx2 {vr(vP,2)}, v{vt2}, s[20:23], s27 offen sc1")
            k.e("s_mov_b64 exec, -1")
    k.e("s_setprio 3")
    k.e("s_sub_u32 s46, 3, s24")
    k.e("s_lshl_b32 s46, s46, 8")
    k.e("s_add_u32 s46, s46, s2")
    k.e("s_lshl_b32 s27, s25, 6")
    k.e("s_lshl_b32 s28, s26, 3")
    k.e("s_add_u32 s27, s27, s28")
    k.e("s_lshl_b32 s28, s27, 10")
    k.e("s_lshl_b32 s30, s24, 11")
    k.e("s_add_u32 s28, s28, s30")
    k.e(f"s_add_u32 s31, s30, {STG}")
    k.e("s_lshl_b32 s29, s25, 17")
    k.e(f"s_add_u32 s29, s29, {hex(WS_KV)}")
    k.e("s_lshl_b32 s30, s24, 12")
    k.e("s_add_u32 s29, s29, s30")
    k.e("s_lshl_b32 s40, s40, 14")
    mbox_own(k, 0, vK, 32)
    args_ready(k)
    if FUSED:
        k.e("s_lshr_b32 s33, s40, 11")
        k.e("s_lshl_b64 s[34:35], 0xffff, s33")
        k.bar()
        poll0(k, "kv", vK, vP, "s32", 20, mask="s[34:35]")
    q = VQ(k)
    def chunk(c):
        k.e(f"s_add_u32 m0, s30, {c*16384}")
        k.e("s_add_u32 s27, s29, s40")
        for g in range(4):
            k.e(f"buffer_load_dwordx4 v{vL16}, s[20:23], s27 offen offset:{g*1024}{SC} lds")
        k.e("s_add_u32 s40, s40, 16384")
        k.e("s_and_b32 s40, s40, 0x1ffff")
        q.add(c, 4)
    k.e("s_mov_b32 m0, s31")
    k.e("s_nop 0")
    k.e(f"buffer_load_dwordx4 v{vL16}, s[20:23], s28 offen{SC} lds")
    k.e(f"buffer_load_dwordx4 v{vL16}, s[20:23], s28 offen offset:1024{SC} lds")
    q.add(0, 2)
    chunk(0); chunk(1)
    q.wait(lambda t: t <= 0); k.bar()
    k.stamp(22)
    poll(k, "kv2", vK, vP, "s32", sleep=2, atomic=True)
    for c in range(2, 6): chunk(c)
    q.wait(lambda t: t <= 1); k.bar()
    chunk(6); chunk(7)
    k.e("s_cmp_lt_u32 s46, 152")
    k.e(f"s_cbranch_scc0 {k.L('one')}")
    k.e("s_add_u32 s46, s46, 1024")
    prepA("2", slot4=True)
    k.e("s_sub_u32 s46, s46, 1024")
    k.label("one")
    prepA("0")
    k.e("s_waitcnt vmcnt(8)")
    k.e("s_cmp_lt_u32 s46, 152")
    k.e(f"s_cbranch_scc1 {k.L('two')}")
    k.e("s_waitcnt vmcnt(4)")
    k.label("two")
    k.bar()
    k.stamp(23)
    prepB()
    k.e("s_add_u32 s46, s46, 1024")
    k.e("s_cmp_lt_u32 s46, 1176")
    k.e(f"s_cbranch_scc0 {k.L('notask')}")
    prepA("1", dma=False, slot4=True)
    prepB()
    k.label("notask")
    k.stamp(24)
    if FUSED:
        k.e("s_and_b32 s26, s2, 1")
        k.e("s_lshl_b32 s26, s26, 3")
        k.e("s_lshr_b32 s28, s2, 5")
        k.e("s_add_u32 s26, s26, s28")
        ft_poll(k, "ftg", vt0, vP, "g")
        tile_map_32x8(k)
        ft_poll(k, "ftd", vt0, vP, "d")
        ft_poll(k, "fto", vt0, vP, "o")
    else:
        k.bar()
    if PREFETCH:
        k.e("s_lshr_b32 s27, s2, 3")
        k.e("s_lshl_b32 s27, s27, 2")
        k.e("s_add_u32 s27, s27, s24")
        k.e("s_and_b32 s28, s2, 1")
        lst = [(WS_WGU, 8*32*6144, 12288, 0, 64), (WS_WGU, 8*32*6144, 12288, 8192, 32), (WS_WD, 4*86*2048, 5504, 0, 43)]
        lst = [(WS_WO, 0x40000, 2048, 0, 16)] + lst
        for n, (base, half, per, off, nl) in enumerate(lst):
            k.e(f"s_mul_i32 s32, s28, {half}")
            k.e(f"s_mul_i32 s33, s27, {per}")
            k.e("s_add_u32 s32, s32, s33")
            k.e(f"s_add_u32 s32, s32, {hex(base + off)}")
            k.e(f"v_min_u32 v{vt0}, {nl-1}, v0")
            k.e(f"v_lshlrev_b32 v{vt0}, 7, v{vt0}")
            k.e(f"buffer_load_dword v{PR[0]+n}, v{vt0}, s[20:23], s32 offen{SC}")
    if FUSED:
        k.e("s_setprio 0")
        p3_preload()
    k.e(f"s_branch {k.L('done')}")
    k.label("comp")
    k.e("s_sub_u32 s46, s24, 4")
    k.e("s_lshl_b32 s26, s26, 3")
    k.e("s_add_u32 s26, s26, s46")
    k.e(f"v_lshrrev_b32 v{vt1}, 5, v0")
    k.e(f"v_mov_b32 v{vK}, v{vL16}")
    k.e(f"v_lshlrev_b32 v{vV}, 8, v{vt1}")
    k.e(f"v_and_b32 v{vt0}, 15, v0")
    k.e(f"v_lshl_add_u32 v{vV}, v{vt0}, 4, v{vV}")
    k.e(f"v_mov_b32 v{vt0}, 0x3f803f80")
    k.e(f"v_and_b32 v{vt2}, 11, v0")
    k.e(f"v_cmp_eq_u32 vcc, 0, v{vt2}")
    k.e("s_lshl_b32 s27, s46, 10")
    k.e(f"s_add_u32 s27, s27, {STG}")
    k.e(f"v_cndmask_b32 v{vt0}, 0, v{vt0}, vcc")
    k.e(f"v_add_u32 v{vt2}, s27, v{vL16}")
    for r in VA + VB:
        for i in range(4):
            k.e(f"v_mov_b32 v{r+i}, v{vt0}")
    k.e(f"v_mov_b32 v{vIdx}, 0xdddddddd")
    k.e("s_mov_b32 s42, 0x0000ffff")
    k.e("s_mov_b32 s43, 0x0000ffff")
    k.e(f"s_mov_b32 s44, {3 if FUSED else 0x13}")
    k.e("s_lshr_b32 s27, s26, 1")
    k.e("s_lshl_b32 s27, s27, 5")
    k.e("s_add_u32 s27, s27, s25")
    k.e("s_lshl_b32 s27, s27, 1")
    k.e("s_and_b32 s28, s26, 1")
    k.e("s_add_u32 s27, s27, s28")
    k.e("s_lshl_b32 s27, s27, 10")
    k.e(f"s_add_u32 s47, s27, {hex(WS_O)}")
    k.e("s_lshr_b32 s27, s26, 1")
    k.e("s_lshl_b32 s29, s25, 1")
    k.e("s_add_u32 s28, s28, s29")
    mbox_g64(k, vDst, vt3, 27, 28)
    args_ready(k)
    k.bar(2 if FUSED else 1)
    k.e(f"ds_read_b128 {vr(Q,4)}, v{vt2}")
    k.e(f"ds_read_b128 {vr(KA,4)}, v{vK}")
    k.e("s_waitcnt lgkmcnt(0)")
    k.e(mfma32(SA, KA, Q, "0"))
    k.e("s_nop 7")
    k.e("s_nop 3")
    k.e(f"v_max3_f32 v{vt0}, v{SA}, v{SA+1}, v{SA+2}")
    for i in range(3, 15, 2):
        k.e(f"v_max3_f32 v{vt0}, v{vt0}, v{SA+i}, v{SA+i+1}")
    k.e(f"v_max_f32 v{vt0}, v{vt0}, v{SA+15}")
    k.label("setm")
    k.e(f"ds_read_b128 {vr(KB,4)}, v{vK} offset:2048")
    k.e("s_mov_b64 exec, s[42:43]")
    k.e(f"ds_read_b128 {vr(VA[0],4)}, v{vV} offset:1024")
    k.e(f"ds_read_b128 {vr(VA[1],4)}, v{vV} offset:1536")
    k.e("s_mov_b64 exec, -1")
    k.e(f"v_mov_b32 v{vt1}, v{vt0}")
    k.e("s_nop 1")
    k.e(f"v_permlane32_swap_b32 v{vt0}, v{vt1}")
    k.e(f"v_max_f32 v{vt0}, v{vt0}, v{vt1}")
    for i in range(16):
        k.e(f"v_sub_f32 v{NM+i}, 0, v{vt0}")
    k.e("s_nop 1")
    k.e(mfma32(SA, KA, Q, NM))
    for i in range(16):
        k.e(f"v_mov_b32 v{O+i}, 0")
    for i in range(8, 16):
        k.e(f"v_mov_b32 v{SB+i}, 0")
    k.e("s_mov_b32 s41, 0")
    k.stamp(22); k.stamp_rt(25)
    def smf(a, b):
        k.e(f"v_smfmac_f32_32x32x32_bf16 {vr(O,16)}, {vr(a,4)}, {vr(b,8)}, v{vIdx}")
    k.label("loop")
    for t in range(8):
        half = t & 1
        S, Sn = (SA, SB) if half == 0 else (SB, SA)
        Kn, Knn = (KB, KA) if half == 0 else (KA, KB)
        Vc, Vp = (VA, VB) if half == 0 else (VB, VA)
        base = t * 2048
        if half == 0:
            k.e(f"s_setprio {3 - t//2}")
        if t == 6:
            k.e("s_bitcmp1_b32 s44, s41")
            k.e(f"s_cbranch_scc0 {k.L('nobar')}")
            k.bar()
            k.label("nobar")
        for i in range(0, 3):
            k.e(f"v_exp_f32 v{S+i}, v{S+i}")
        smf(Vp[1], Sn + 8)
        for i in range(3, 8):
            k.e(f"v_exp_f32 v{S+i}, v{S+i}")
        k.e("s_waitcnt lgkmcnt(2)")
        k.e(mfma32(Sn, Kn, Q, NM))
        k.e(f"ds_read_b128 {vr(Knn,4)}, v{vK} offset:{base+4096}")
        for i in range(8, 13):
            k.e(f"v_exp_f32 v{S+i}, v{S+i}")
        k.e("s_waitcnt lgkmcnt(1)")
        smf(Vc[0], S)
        k.e("s_mov_b64 exec, s[42:43]")
        k.e(f"ds_read_b128 {vr(Vp[0],4)}, v{vV} offset:{base+2048+1024}")
        k.e(f"ds_read_b128 {vr(Vp[1],4)}, v{vV} offset:{base+2048+1536}")
        k.e("s_mov_b64 exec, -1")
        if t == 7:
            k.e(f"v_add_u32 v{vK}, 0x4000, v{vK}")
            k.e(f"v_add_u32 v{vV}, 0x4000, v{vV}")
            k.e("s_add_u32 s41, s41, 1")
            k.e("s_cmp_lt_u32 s41, 8")
        for i in range(13, 16):
            k.e(f"v_exp_f32 v{S+i}, v{S+i}")
    k.e(f"s_cbranch_scc1 {k.L('loop')}")
    k.e("s_nop 0")
    smf(VB[1], SB + 8)
    k.stamp(23); k.stamp_rt(26)
    k.e("s_waitcnt lgkmcnt(0)")
    k.e(f"v_mov_b32 v{vt1}, {f32(2.0**60)}")
    k.e("s_nop 7")
    k.e("s_nop 1")
    k.e(f"v_cmp_nlt_f32 vcc, v{O+8}, v{vt1}")
    k.e(f"v_rcp_f32 v{vt0}, v{O+8}")
    k.e(f"s_cbranch_vccz {k.L('fin')}")
    k.e("s_cmp_eq_u32 s44, 0")
    k.e(f"s_cbranch_scc1 {k.L('fin')}")
    k.e("s_mov_b32 s44, 0")
    k.e(f"v_mov_b32 v{vK}, v{vL16}")
    k.e(f"v_subrev_u32 v{vV}, 0x20000, v{vV}")
    k.e(f"v_mov_b32 v{vt0}, 0xff800000")
    k.e("s_mov_b32 s41, 0")
    k.label("fbloop")
    k.e(f"ds_read_b128 {vr(KA,4)}, v{vK}")
    k.e(f"v_add_u32 v{vK}, 2048, v{vK}")
    k.e("s_waitcnt lgkmcnt(0)")
    k.e(mfma32(SA, KA, Q, "0"))
    k.e("s_add_u32 s41, s41, 1")
    k.e("s_cmp_lt_u32 s41, 64")
    k.e("s_nop 7")
    k.e("s_nop 3")
    for i in range(0, 16, 2):
        k.e(f"v_max3_f32 v{vt0}, v{vt0}, v{SA+i}, v{SA+i+1}")
    k.e(f"s_cbranch_scc1 {k.L('fbloop')}")
    k.e(f"v_mov_b32 v{vK}, v{vL16}")
    k.e(f"ds_read_b128 {vr(KA,4)}, v{vK}")
    k.e("s_waitcnt lgkmcnt(0)")
    k.e(f"s_branch {k.L('setm')}")
    k.label("fin")
    for i in range(8):
        k.e(f"v_mul_f32 v{O+i}, v{vt0}, v{O+i}")
    for i in range(4):
        k.e(f"v_cvt_pk_bf16_f32 v{O+i}, v{O+2*i}, v{O+2*i+1}")
    k.e(f"buffer_store_dwordx4 {vr(O,4)}, v{vL16}, s[20:23], s47 offen{SC}")
    if FUSED:
        k.bar()
    publish(k, 1, vDst, 8, vP)
    k.stamp(24)
    if FUSED:
        k.bar()
    k.label("done")
    k.first = False
```

```python
from base import *
from p2 import STG
G_DA = opt("G_DA", 5)
P4_PRE = opt("P4_PRE", 2)
from streams import *
def x_resid_setup(k, vt0, vt1, sw):
    k.e(f"v_lshrrev_b32 v{vt0}, 3, v0")
    k.e(f"v_xor_b32 v{vt1}, v{vt0}, v0")
    k.e(f"v_and_b32 v{vt1}, 7, v{vt1}")
    k.e(f"v_lshlrev_b32 v{vt0}, 10, v{vt0}")
    k.e(f"v_lshl_add_u32 v{vt0}, v{vt1}, 4, v{vt0}")
    k.e("s_lshl_b32 s56, s25, 16")
    k.e(f"s_lshl_b32 s57, s{sw}, 14")
    k.e("s_add_u32 s56, s56, s57")
    k.e("s_lshl_b32 s57, s26, 7")
    k.e("s_add_u32 s56, s56, s57")
    k.e(f"s_lshl_b32 s57, s{sw}, 11")
    args_ready(k)
    srd(k, 12, S_X, 2048 * 1024)
def x_resid_issue(k, vt0):
    k.e(f"s_add_u32 m0, s57, {P3_RES}")
    k.e(f"s_add_u32 s58, s56, {8192-1024}")
    k.e(f"buffer_load_dwordx4 v{vt0}, s[12:15], s56 offen lds")
    k.e(f"buffer_load_dwordx4 v{vt0}, s[12:15], s58 offen offset:1024 lds")

def p3_preload(k, ctx):
    k.e("s_cmp_lt_u32 s24, 2")
    k.e(f"s_cbranch_scc1 {k.L('pre01')}")
    ctx.w3.setup()
    ctx.w3.issue(4)
    ctx.w4.setup()
    k.stamp(27)
    k.bar()
    k.stamp(28)
    ctx.w3.issue(4)
    k.bar()
    k.e(f"s_branch {k.L('done')}")
    k.label("pre01")
    k.e("s_lshl_b32 s59, s24, 1")
    x_resid_setup(k, 1, 2, 59)
    for i in range(4):
        k.e(f"s_add_u32 s58, s56, {i*8192}")
        k.e(f"buffer_load_dword v{4+i}, v1, s[12:15], s58 offen")
    k.stamp(27)
    k.bar()
    k.stamp(28)
    x_resid_issue(k, 1)
    k.e("s_add_u32 s56, s56, 16384")
    k.e("s_add_u32 s57, s57, 2048")
    x_resid_issue(k, 1)
    k.bar()

def phase_g64(k, mode, ctx):
    k.phase("p3" if mode == "wo" else "p5")
    W = ctx.w3 if mode == "wo" else ctx.w5
    A = G64Stream(k, mode, "a", VQ(k))
    nst = A.nst; NA = len(A.slots); NW = len(W.slots)
    RES = P3_RES if mode == "wo" else P5_RES
    k.use_lds(160 * KB)
    sb = 30 if mode == "wo" else 50
    vl = k.v(); vt0 = k.v(); vt1 = k.v(); vL16 = k.v(); vA = [k.v() for _ in range(3)]; vW = [k.v() for _ in range(3)]
    assert vL16 == 3
    vS = k.v(); vQ = k.v(); vO = k.v(); vt2 = k.v()
    vP = k.v(2)
    vRa = k.v(4)
    R = k.v(8)
    acc = k.v(16)
    T = k.v(16)
    sets = [dict(A=[k.v(4) for _ in range(4)], W=[k.v(4) for _ in range(4)]) for _ in range(2)]
    endF = FUSED and mode == "wo"
    tile_map_32x8(k)
    k.e(f"v_lshlrev_b32 v{vL16}, 4, v0")
    k.e("s_and_b32 s33, s24, 1")
    k.e("s_bfe_u32 s34, s24, 0x10001")
    def hf_offset():
        k.e("s_lshr_b32 s35, s25, 1")
        k.e("s_lshl_b32 s35, s35, 5")
        k.e("s_lshl_b32 s30, s26, 2")
        k.e("s_add_u32 s35, s35, s30")
        k.e("s_lshl_b32 s30, s34, 1")
        k.e("s_add_u32 s35, s35, s30")
        k.e("s_lshl_b32 s35, s35, 2")
        k.e("s_and_b32 s30, s25, 1")
        k.e("s_lshl_b32 s30, s30, 1")
        k.e("s_add_u32 s35, s35, s30")
        k.e("s_add_u32 s35, s35, s33")
        k.e("s_lshl_b32 s35, s35, 10")
        k.e(f"s_add_u32 s35, s35, {hex(WS_H)}")
    k.e("s_cmp_ge_u32 s24, 4")
    k.e(f"s_cbranch_scc1 {k.L('cons')}")
    k.e("s_cmp_ge_u32 s24, 2")
    k.e(f"s_cbranch_scc1 {k.L('wld')}")
    mbox_own(k, 1 if mode == "wo" else 3, vt0, 36)
    A.setup()
    poll0(k, "act", vt0, vP, "s36", sb, mask=None if mode == "wo" else "0x3fffffff")
    DA = min(G_DA, NA - 2) if NA < nst else G_DA
    A.issue(DA)
    for s in range(nst):
        A.wait(s); k.bar()
        if s in (0, nst - 1): k.stamp(sb + 2 + (s > 0))
        if A.nxt < nst: A.issue()
    if endF: k.bar(2)
    k.e(f"s_branch {k.L('done')}")
    k.label("wld")
    if FUSED:
        k.bar()
    else:
        W.setup()
        W.issue(G_DA)
    for s in range(nst):
        W.wait(s); k.bar()
        if W.nxt < nst and W.nxt <= s - 2 + NW:
            W.issue()
        if endF and s == 3: ctx.w4.issue(2)
        if endF and s == 5: ctx.w4.issue(1)
    assert W.nxt == nst
    if endF:
        k.bar()
        ctx.w4.issue(P4_PRE)
        k.bar()
    k.e(f"s_branch {k.L('done')}")
    k.label("res")
    k.e("s_and_b32 s36, s24, 3")
    def resid():
        if mode == "wo":
            x_resid_issue(k, vt0)
        else:
            k.e("s_lshl_b32 s27, s36, 11")
            k.e(f"s_add_u32 m0, s27, {RES}")
            k.e(f"s_add_u32 s37, s35, {4096-1024}")
            k.e(f"buffer_load_dwordx4 v{vL16}, s[20:23], s35 offen{SC} lds")
            k.e(f"buffer_load_dwordx4 v{vL16}, s[20:23], s37 offen offset:1024{SC} lds")
    if mode == "wo":
        if not FUSED: x_resid_setup(k, vt0, vt1, 36)
    else:
        hf_offset()
        args_ready(k)
    rat = nst - opt("RES_AT", 5)
    if FUSED: k.bar()
    for s in range(nst):
        if s == nst - 1:
            k.e("s_waitcnt vmcnt(0)")
        k.bar()
        if s == rat and not endF: resid()
    if endF: k.bar(2)
    k.e(f"s_branch {k.L('done')}")
    k.label("cons")
    k.e("s_cmp_ge_u32 s24, 8")
    k.e(f"s_cbranch_scc1 {k.L('res')}")
    k.e("s_lshl_b32 s27, s33, 10")
    k.e(f"v_add_u32 v{vA[0]}, s27, v{vL16}")
    k.e("s_lshl_b32 s27, s34, 10")
    k.e(f"v_add_u32 v{vW[0]}, s27, v{vL16}")
    for i in (1, 2):
        k.e(f"v_add_u32 v{vA[i]}, {hex(i*65536)}, v{vA[0]}")
        k.e(f"v_add_u32 v{vW[i]}, {hex(i*65536)}, v{vW[0]}")
    k.e("s_mov_b32 s41, 0xffff0000")
    k.e("s_and_b32 s46, s24, 3")
    k.e(f"v_and_b32 v{vt0}, 31, v0")
    k.e(f"v_lshrrev_b32 v{vt1}, 5, v0")
    if mode == "wo":
        hf_offset()
        k.e("s_add_u32 s36, s35, 4096")
        k.e("s_lshl_b32 s37, s25, 1")
        k.e("s_add_u32 s37, s37, s33")
        k.e("s_lshl_b32 s37, s37, 12")
        k.e("s_lshl_b32 s28, s26, 9")
        k.e("s_add_u32 s37, s37, s28")
        k.e("s_lshl_b32 s28, s34, 3")
        k.e("s_add_u32 s37, s37, s28")
        k.e(f"s_add_u32 s37, s37, {hex(WS_ST)}")
        k.e(f"v_and_b32 v{vt2}, 7, v0")
        k.e("s_lshl_b32 s27, s34, 2")
        k.e(f"v_xor_b32 v{vt2}, s27, v{vt2}")
        k.e(f"v_lshlrev_b32 v{vt2}, 4, v{vt2}")
        k.e(f"v_lshl_add_u32 v{vt2}, v{vt0}, 7, v{vt2}")
        k.e(f"v_lshl_add_u32 v{vt2}, v{vt1}, 3, v{vt2}")
        k.e("s_lshl_b32 s27, s33, 12")
        k.e(f"s_add_u32 s27, s27, {RES}")
        k.e(f"v_add_u32 v{vRa}, s27, v{vt2}")
        for j in range(1, 4):
            k.e(f"v_xor_b32 v{vRa+j}, {j*16}, v{vRa}")
        k.e(f"v_lshlrev_b32 v{vt0}, 4, v{vt0}")
        k.e(f"v_lshl_add_u32 v{vt0}, v{vt1}, 2, v{vt0}")
        k.e(f"v_mov_b32 v{vS}, 0")
        k.e(f"v_mov_b32 v{vQ}, 0")
        k.e("s_mov_b32 s42, 0x3f803f80")
        if FUSED:
            k.e(f"v_bfe_u32 v{vO}, v0, 3, 1")
            k.e(f"v_lshlrev_b32 v{vO}, 9, v{vO}")
            k.e(f"v_and_b32 v{vt2}, 7, v0")
            k.e(f"v_lshl_add_u32 v{vO}, v{vt2}, 14, v{vO}")
            k.e("s_lshr_b32 s27, s25, 3")
            k.e("s_lshl_b32 s27, s27, 10")
            k.e("s_bfe_u32 s28, s25, 0x20001")
            k.e("s_lshl_b32 s28, s28, 12")
            k.e("s_add_u32 s27, s27, s28")
            k.e("s_and_b32 s28, s25, 1")
            k.e("s_lshl_b32 s28, s28, 8")
            k.e("s_add_u32 s27, s27, s28")
            k.e("s_lshl_b32 s28, s26, 5")
            k.e("s_add_u32 s27, s27, s28")
            k.e("s_lshl_b32 s28, s46, 3")
            k.e("s_add_u32 s27, s27, s28")
            k.e(f"v_add_u32 v{vO}, s27, v{vO}")
        args_ready(k)
    else:
        k.e(f"v_lshlrev_b32 v{vO}, 10, v{vt0}")
        k.e(f"v_lshl_add_u32 v{vO}, v{vt1}, 4, v{vO}")
        k.e("s_lshl_b32 s29, s25, 16")
        k.e("s_lshl_b32 s30, s33, 15")
        k.e("s_add_u32 s29, s29, s30")
        k.e("s_lshl_b32 s30, s26, 7")
        k.e("s_add_u32 s29, s29, s30")
        k.e("s_lshl_b32 s30, s34, 6")
        k.e("s_add_u32 s29, s29, s30")
        k.e("s_lshl_b32 s27, s46, 11")
        k.e(f"s_add_u32 s27, s27, {RES}")
        k.e(f"v_add_u32 v{vRa}, s27, v{vL16}")
        args_ready(k)
        srd(k, 12, S_OUT, 2048 * 1024)
    def mf(s):
        S = sets[s & 1]
        return [mfma32(acc, S['W'][j], S['A'][j], "0" if (s == 0 and j == 0) else None) for j in range(4)]
    def reads(s):
        S = sets[s & 1]
        ao = A.slots[s % NA]; w = W.slots[s % NW]
        rd = []
        for j in range(4):
            rd.append(f"ds_read_b128 {vr(S['A'][j],4)}, v{vA[ao >> 16]} offset:{(ao & 65535) + j*2048}")
            rd.append(f"ds_read_b128 {vr(S['W'][j],4)}, v{vW[w >> 16]} offset:{(w & 65535) + j*2048}")
        return rd
    k.bar(2 if FUSED else 1)
    for x in reads(0): k.e(x)
    for s in range(1, nst):
        k.bar()
        rd = reads(s); m = mf(s - 1)
        k.e(rd[0]); k.e(rd[1])
        k.e("s_waitcnt lgkmcnt(2)")
        for j in range(4):
            k.e(m[j])
            for x in rd[2+2*j:4+2*j]: k.e(x)
    k.stamp(sb + 2)
    if mode == "wo":
        for j in range(4):
            k.e(f"ds_read_b64 {vr(R+2*j,2)}, v{vRa+j}")
        nr = 4
    else:
        k.e(f"ds_read_b128 {vr(R,4)}, v{vRa}")
        k.e(f"ds_read_b128 {vr(R+4,4)}, v{vRa} offset:1024")
        nr = 2
    m = mf(nst - 1)
    for j in range(4):
        k.e(f"s_waitcnt lgkmcnt({6-2*j+nr})")
        k.e(m[j])
    k.e("s_waitcnt lgkmcnt(0)")
    for i in range(8):
        k.e(f"v_lshlrev_b32 v{T+2*i}, 16, v{R+i}")
        k.e(f"v_and_b32 v{T+2*i+1}, s41, v{R+i}")
    for i in range(8):
        k.e(f"v_cvt_pk_bf16_f32 v{R+i}, v{acc+2*i}, v{acc+2*i+1}")
    for i in range(8):
        k.e(f"v_lshlrev_b32 v{acc+2*i}, 16, v{R+i}")
        k.e(f"v_and_b32 v{acc+2*i+1}, s41, v{R+i}")
    for i in range(0, 16, 2):
        k.e(f"v_pk_add_f32 {vr(acc+i,2)}, {vr(acc+i,2)}, {vr(T+i,2)}")
    for i in range(8):
        k.e(f"v_cvt_pk_bf16_f32 v{R+i}, v{acc+2*i}, v{acc+2*i+1}")
    if mode == "wo":
        k.e(f"buffer_store_dwordx4 {vr(R,4)}, v{vL16}, s[20:23], s35 offen{SC}")
        k.e(f"buffer_store_dwordx4 {vr(R+4,4)}, v{vL16}, s[20:23], s36 offen{SC}")
        for i in range(8):
            k.e(f"v_dot2c_f32_bf16 v{vS}, s42, v{R+i}")
            k.e(f"v_dot2c_f32_bf16 v{vQ}, v{R+i}, v{R+i}")
        k.e("s_nop 2")
        k.e(f"v_permlane32_swap_b32 v{vS}, v{vQ}")
        k.e(f"v_add_f32 v{vS}, v{vS}, v{vQ}")
        k.e(f"buffer_store_dword v{vS}, v{vt0}, s[20:23], s37 offen{SC}")
        k.stamp(sb + 3)
        if endF: k.bar()
        publish(k, 2, vO, 15, vP)
        k.stamp(sb + 4)
        if endF: k.bar()
    else:
        k.e(f"v_permlane32_swap_b32 v{R}, v{R+2}")
        k.e(f"v_permlane32_swap_b32 v{R+1}, v{R+3}")
        k.e(f"buffer_store_dwordx4 {vr(R,4)}, v{vO}, s[12:15], s29 offen")
        k.e(f"v_permlane32_swap_b32 v{R+4}, v{R+6}")
        k.e(f"v_permlane32_swap_b32 v{R+5}, v{R+7}")
        k.e(f"buffer_store_dwordx4 {vr(R+4,4)}, v{vO}, s[12:15], s29 offen offset:32")
    k.label("done")
    k.first = False
```

```python
from base import *
from streams import *
LEAD = opt('P4_LEAD', 6 if FUSED else 4)
ST_AT = opt('ST_AT', 3 if FUSED else 5)
def phase4(k, ctx):
    k.phase("p4")
    NX = 6; NW = 8
    MISC = P4_MISC
    MISC2 = MISC + 2048
    k.use_lds(160 * KB)
    vl = k.v(); vt0 = k.v(); vt1 = k.v(); vL16 = k.v(); vX = k.v(); vW = [k.v(), k.v()]
    vMB = k.v()
    vP = k.v(2)
    acc = [[k.v(16) for _ in range(3)] for _ in range(2)]
    sets = [dict(X=[k.v(4) for _ in range(2)], W=[k.v(4) for _ in range(3)]) for _ in range(2)]
    CC = [k.v(4), k.v(4)]
    T = k.v(8)
    S0 = sets[0]['X'][0]
    BP = [S0, S0 + 4]; AP = [S0 + 8, S0 + 12, S0 + 16]
    k.e("s_and_b32 s26, s2, 1")
    k.e("s_lshl_b32 s26, s26, 3")
    k.e("s_lshr_b32 s28, s2, 5")
    k.e("s_add_u32 s26, s26, s28")
    k.e("s_cmp_ge_u32 s26, 15")
    k.e(f"s_cbranch_scc1 {k.L('empty')}")
    k.e("s_and_b32 s25, s2, 6")
    k.e("s_lshl_b32 s25, s25, 1")
    k.e("s_bfe_u32 s27, s2, 0x20003")
    k.e("s_add_u32 s25, s25, s27")
    k.e(f"v_lshlrev_b32 v{vL16}, 4, v0")
    k.e("s_and_b32 s33, s24, 1")
    k.e("s_cmp_ge_u32 s24, 4")
    k.e(f"s_cbranch_scc1 {k.L('cons')}")
    k.e("s_cmp_ge_u32 s24, 2")
    k.e(f"s_cbranch_scc1 {k.L('wld')}")
    bars = [0, 1] + list(range(3, 16, 2))
    def loader(S, D0, sb, extra=None):
        N = len(S.slots)
        if S.nxt < D0: S.issue(D0 - S.nxt)
        for bi, last in enumerate(bars):
            S.wait(last); k.bar()
            if sb and bi in (0, len(bars) - 1): k.stamp(sb + (bi > 0))
            free = bars[bi - 1] if bi >= 1 else -1
            lim = min(15, free + N, last + LEAD)
            if S.nxt <= lim: S.issue(lim + 1 - S.nxt)
            if extra: extra(bi)
        assert S.nxt == 16
        if FUSED: k.bar()
        k.e(f"s_branch {k.L('done')}")
    X = P4Stream(k, "x", VQ(k))
    mbox_own(k, 2, vt0, 36)
    X.setup()
    poll0(k, "h", vt0, vP, "s36", 40)
    loader(X, 4 if FUSED else 3, 42)
    k.label("wld")
    def pre5(bi):
        if not FUSED: return
        if bi == 5: ctx.w5.setup(); ctx.w5.issue(1)
        if bi == 6: ctx.w5.issue(3)
        if bi == 7: ctx.w5.issue(5)
        if bi == 8: ctx.w5.issue(3)
    if FUSED:
        k.bar()
    else:
        ctx.w4.setup()
    loader(ctx.w4, 3, 0, pre5)
    k.label("stat")
    k.e("s_setprio 3")
    ST = acc[0][0]; CS = acc[0][1]
    k.e("s_and_b32 s29, s24, 3")
    k.e("s_lshl_b32 s27, s25, 2")
    k.e("s_add_u32 s27, s27, s29")
    k.e("s_lshl_b32 s27, s27, 12")
    k.e(f"s_add_u32 s30, s27, {hex(WS_ST)}")
    k.e("s_mul_i32 s27, s26, 3")
    k.e("s_min_u32 s28, s29, 2")
    k.e("s_add_u32 s27, s27, s28")
    k.e("s_lshl_b32 s27, s27, 12")
    k.e(f"s_add_u32 s31, s27, {hex(WS_CS)}")
    args_ready(k)
    def cs_issue():
        for qq in range(4):
            k.e(f"buffer_load_dwordx4 {vr(CS+4*qq,4)}, v{vL16}, s[20:23], s31 offen offset:{qq*1024}{SC}")
    def st_issue():
        for qq in range(4):
            k.e(f"buffer_load_dwordx4 {vr(ST+4*qq,4)}, v{vL16}, s[20:23], s30 offen offset:{qq*1024}{SC}")
    def st_proc():
        s = ST; t2 = T; C = CC[0]; RS = T + 2
        k.e("s_waitcnt vmcnt(0)")
        for i in range(2, 16, 2):
            k.e(f"v_add_f32 v{s}, v{s}, v{s+i}")
            k.e(f"v_add_f32 v{s+1}, v{s+1}, v{s+i+1}")
        k.e(f"v_mov_b32 v{s+2}, v{s}")
        k.e(f"v_mov_b32 v{s+3}, v{s+1}")
        k.e("s_nop 1")
        k.e(f"v_permlane32_swap_b32 v{s}, v{s+2}")
        k.e(f"v_permlane32_swap_b32 v{s+1}, v{s+3}")
        k.e(f"v_add_f32 v{s}, v{s}, v{s+2}")
        k.e(f"v_add_f32 v{s+1}, v{s+1}, v{s+3}")
        ln_finish(k, s, s + 1, C, RS, t2)
        A_ = -2.0 * 1.4426950408889634 * 0.7978845608028654
        k.e(f"v_mul_f32 v{C+3}, v{t2}, v{t2}")
        k.e(f"v_mul_f32 v{C+1}, {f32(A_)}, v{RS}")
        k.e(f"v_mul_f32 v{C+2}, v{RS}, v{RS}")
        k.e(f"v_mul_f32 v{C+2}, v{C+2}, v{C+1}")
        k.e(f"v_mul_f32 v{C+2}, {f32(0.044715)}, v{C+2}")
        k.e(f"v_and_b32 v{vt0}, 0x1ff, v{vL16}")
        k.e("s_lshl_b32 s27, s29, 9")
        k.e(f"s_add_u32 s27, s27, {MISC}")
        k.e(f"v_add_u32 v{vt0}, s27, v{vt0}")
        k.e(f"ds_write_b128 v{vt0}, {vr(C,4)}")
        for u in range(2):
            c = CS + 8 * u
            for i in range(1, 8):
                k.e(f"v_add_f32 v{c}, v{c}, v{c+i}")
        k.e("s_nop 1")
        k.e(f"v_permlane32_swap_b32 v{CS}, v{CS+8}")
        k.e(f"v_add_f32 v{CS}, v{CS}, v{CS+8}")
        split2(k, CS, CS + 1, t2)
        k.e("s_lshl_b32 s27, s28, 8")
        k.e(f"s_add_u32 s27, s27, {MISC2}")
        k.e(f"v_lshl_add_u32 v{vt0}, v0, 2, s27")
        k.e(f"ds_write_b32 v{vt0}, v{CS+1}")
        k.e("s_waitcnt lgkmcnt(0)")
    if FUSED: k.bar()
    for bi in range(len(bars)):
        k.bar()
        if bi == ST_AT: st_issue()
        if bi == ST_AT + 1: cs_issue()
        if bi == 7: st_proc()
    k.e("s_setprio 0")
    if FUSED: k.bar()
    k.e(f"s_branch {k.L('done')}")
    k.label("empty")
    if FUSED:
        k.e("s_waitcnt vmcnt(0)")
        k.bar()
        k.e("s_sub_u32 s27, s24, 2")
        k.e("s_cmp_ge_u32 s27, 2")
        k.e(f"s_cbranch_scc1 {k.L('done')}")
        w5 = G64Stream(k, "dn", "w", VQ(k))
        w5.setup(); w5.issue(12)
    k.e(f"s_branch {k.L('done')}")
    k.label("cons")
    k.e("s_cmp_ge_u32 s24, 8")
    k.e(f"s_cbranch_scc1 {k.L('stat')}")
    k.e("s_bfe_u32 s34, s24, 0x10001")
    k.e("s_lshl_b32 s27, s33, 11")
    k.e(f"v_add_u32 v{vX}, s27, v{vL16}")
    k.e("s_mul_i32 s27, s34, 3072")
    k.e(f"s_add_u32 s27, s27, {P4_W[0]}")
    k.e(f"v_add_u32 v{vW[0]}, s27, v{vL16}")
    k.e(f"v_subrev_u32 v{vW[1]}, {P4_W[0]-P4_W[4]}, v{vW[0]}")
    k.e("s_mul_i32 s42, s26, 6")
    k.e("s_mul_i32 s43, s34, 3")
    k.e("s_add_u32 s42, s42, s43")
    k.e("s_lshl_b32 s27, s25, 1")
    k.e("s_add_u32 s27, s27, s33")
    k.e("s_mul_i32 s27, s27, 86")
    k.e("s_add_u32 s27, s27, s42")
    k.e("s_lshl_b32 s27, s27, 11")
    k.e(f"s_add_u32 s45, s27, {hex(WS_A)}")
    k.e("s_lshl_b32 s27, s25, 1")
    k.e("s_add_u32 s27, s27, s33")
    k.e("s_lshl_b32 s28, s26, 1")
    k.e("s_add_u32 s28, s28, s34")
    mbox_g64(k, vMB, vt0, 27, 28)
    k.e("v_cmp_gt_u32 vcc, 32, v0")
    k.e(f"v_and_b32 v{vt0}, 0x1ff, v{vL16}")
    k.e("s_lshl_b32 s27, s33, 10")
    k.e(f"s_add_u32 s27, s27, {MISC}")
    k.e(f"v_add_u32 v{vt0}, s27, v{vt0}")
    k.e(f"v_and_b32 v{vt1}, 31, v0")
    k.e("s_mul_i32 s27, s34, 384")
    k.e(f"s_add_u32 s27, s27, {MISC2}")
    k.e(f"v_lshl_add_u32 v{vt1}, v{vt1}, 2, s27")
    args_ready(k)
    def mf(ks):
        S = sets[ks & 1]
        return [mfma32(acc[b][u], S['W'][u], S['X'][b], "0" if ks == 0 else None) for u in range(3) for b in range(2)]
    def reads(ks):
        S = sets[ks & 1]
        h, kk = ks >> 1, ks & 1
        xo = (h % NX) * 8192 + kk * 4096
        sl = h % NW
        i, wo = (0, sl * 12288) if sl < 4 else (1, (sl - 4) * 12288)
        wo += kk * 6144
        return [f"ds_read_b128 {vr(S['W'][0],4)}, v{vW[i]} offset:{wo}",
                f"ds_read_b128 {vr(S['X'][0],4)}, v{vX} offset:{xo}",
                f"ds_read_b128 {vr(S['X'][1],4)}, v{vX} offset:{xo+1024}",
                f"ds_read_b128 {vr(S['W'][1],4)}, v{vW[i]} offset:{wo+1024}",
                f"ds_read_b128 {vr(S['W'][2],4)}, v{vW[i]} offset:{wo+2048}"]
    firsts = {0} | {2 * (b + 1) for b in bars[:-1]}
    k.bar(2 if FUSED else 1)
    for x in reads(0): k.e(x)
    k.e("s_waitcnt lgkmcnt(0)")
    for ks in range(31):
        if ks + 1 in firsts:
            k.bar()
        m = mf(ks)
        spread(k, m[:-1], reads(ks + 1), [], 2, 0)
        k.e("s_waitcnt lgkmcnt(0)")
        k.e(m[-1])
    k.stamp(42)
    for b in range(2):
        k.e(f"ds_read_b128 {vr(CC[b],4)}, v{vt0} offset:{b*512}")
    m = mf(31)
    k.e(m[0])
    for u in range(3):
        k.e(f"ds_read_b32 v{AP[u]}, v{vt1} offset:{u*128}")
    z = [r + i for r in BP + AP for i in (1, 2, 3)]
    for j in range(1, 6):
        k.e(m[j])
        for r in z[(j-1)*3:(j-1)*3+3]:
            k.e(f"v_mov_b32 v{r}, 0")
    k.e("s_waitcnt lgkmcnt(0)")
    for b in range(2):
        k.e(f"v_cndmask_b32 v{BP[b]}, 0, v{CC[b]}, vcc")
    k.e("s_nop 0")
    for u in range(3):
        for b in range(2):
            k.e(mfma32(acc[b][u], AP[u], BP[b]))
    k.e("s_nop 2")
    for u in range(3):
        k.e("s_cmp_lt_u32 s42, 86")
        k.e(f"s_cselect_b32 s28, s45, {hex(OOB)}")
        k.e("s_add_u32 s42, s42, 1")
        k.e("s_add_u32 s45, s45, 2048")
        for b in range(2):
            a = acc[b][u]; C = CC[b]
            for i in range(0, 8, 2):
                k.e(f"v_pk_mul_f32 {vr(T+i,2)}, {vr(a+i,2)}, {vr(a+i,2)}")
            for i in range(0, 8, 2):
                k.e(f"v_pk_fma_f32 {vr(T+i,2)}, {vr(T+i,2)}, {vr(C+2,2)}, {vr(C,2)} op_sel:[0,0,1] op_sel_hi:[1,0,1]")
            for i in range(0, 8, 2):
                k.e(f"v_pk_mul_f32 {vr(T+i,2)}, {vr(T+i,2)}, {vr(a+i,2)}")
            for i in range(8):
                k.e(f"v_exp_f32 v{T+i}, v{T+i}")
            for i in range(0, 8, 2):
                k.e(f"v_pk_mul_f32 {vr(a+i,2)}, {vr(a+i,2)}, {vr(a+8+i,2)}")
            for i in range(0, 8, 2):
                k.e(f"v_pk_fma_f32 {vr(T+i,2)}, {vr(T+i,2)}, {vr(C+2,2)}, {vr(C+2,2)} op_sel:[0,1,1]")
            for i in range(8):
                k.e(f"v_rcp_f32 v{T+i}, v{T+i}")
            for i in range(0, 8, 2):
                k.e(f"v_pk_mul_f32 {vr(a+i,2)}, {vr(a+i,2)}, {vr(T+i,2)}")
            for i in range(4):
                k.e(f"v_cvt_pk_bf16_f32 v{a+i}, v{a+2*i}, v{a+2*i+1}")
            k.e(f"buffer_store_dwordx4 {vr(a,4)}, v{vL16}, s[20:23], s28 offen offset:{b*1024}{SC}")
    k.stamp(43)
    publish(k, 3, vMB, 8, vP)
    k.stamp(44)
    if FUSED: k.bar()
    k.label("done")
    k.first = False
```

```python
from base import *
from p1 import phase1
from p2 import phase2
from p35 import phase_g64, p3_preload
from p4 import phase4
from streams import Ctx

DIAG = os.environ.get("DIAG", "")
def gen_diag():
    k = K("k6_diag_kernel")
    k.maxv = 16
    e = k.e
    e("s_cmp_ge_u32 s2, 1"); e("s_cbranch_scc1 k6_end")
    e("s_load_dwordx4 s[4:7], s[0:1], 64")
    e("v_lshlrev_b32 v1, 2, v0")
    e("s_waitcnt lgkmcnt(0)")
    e(f"s_add_u32 s12, s6, {hex(WS_DBG)}"); e("s_addc_u32 s13, s7, 0"); e("s_mov_b32 s14, 0x100000"); e("s_mov_b32 s15, 0x00020000")
    e("s_mov_b64 s[16:17], s[4:5]"); e("s_mov_b32 s18, 256"); e("s_mov_b32 s19, 0x00020000")
    e("v_mov_b32 v2, 0"); e("v_mov_b32 v3, 0"); e("v_mov_b32 v4, -1"); e("v_mov_b32 v8, 0"); e("v_mov_b32 v9, 0")
    e("s_mov_b32 s20, 0")
    k.lines.append("k6_l:")
    e("buffer_load_dword v5, v1, s[12:15], s20 offen")
    e("buffer_load_dword v6, v1, s[12:15], s20 offen offset:1024")
    e("s_add_u32 s20, s20, 4096")
    e("s_waitcnt vmcnt(0)")
    e("v_max_u32 v2, v2, v5"); e("v_max_u32 v3, v3, v6"); e("v_min_u32 v4, v4, v5")
    e("v_and_b32 v5, 0xffffff, v5"); e("v_and_b32 v6, 0xffffff, v6")
    e("v_add_u32 v8, v8, v5"); e("v_add_u32 v9, v9, v6")
    e("s_cmp_lt_u32 s20, 0xe0000"); e("s_cbranch_scc1 k6_l")
    e("v_readlane_b32 s21, v4, 0")
    e("v_mov_b32 v7, 0")
    e("s_and_b32 s23, s21, 0xffffff")
    e("s_mul_i32 s23, s23, 224")
    sel = [(0,1),(1,1),(1,2),(1,3),(0,21),(1,22),(1,23),(1,24),(0,31),(1,33),(0,41),(1,42),(1,43),(0,51),(1,52),(1,62)]
    for n, (w, i) in enumerate(sel):
        e(f"v_readlane_b32 s22, v{2+w}, {i}")
        e(f"v_readlane_b32 s24, v{8+w}, {i}")
        e("s_sub_u32 s22, s22, s21")
        e("s_sub_u32 s24, s24, s23")
        e("s_mul_i32 s24, s24, 293"); e("s_lshr_b32 s24, s24, 16")
        e("s_mul_i32 s24, s24, 10000")
        e("s_add_u32 s25, s22, s24")
        e(f"v_writelane_b32 v7, s25, {n}")
        if DIAG == f"{w}:{i}":
            e("s_mov_b32 s30, s22")
    e("s_nop 1")
    e("buffer_store_dword v7, v1, s[16:19], 0 offen")
    if DIAG == "0": e("s_mov_b32 s30, 0")
    e("s_min_u32 s30, s30, 10000"); e("s_mul_i32 s30, s30, 10")
    e("s_memrealtime s[22:23]"); e("s_waitcnt lgkmcnt(0)")
    k.lines.append("k6_spin:")
    e("s_memrealtime s[24:25]"); e("s_waitcnt lgkmcnt(0)"); e("s_sub_u32 s26, s24, s22"); e("s_cmp_lt_u32 s26, s30"); e("s_cbranch_scc1 k6_spin")
    k.lines.append("k6_end:")
    e("s_endpgm")
    return k

def build():
    ref = open(f"cdna_kernels/{NAME}.s.ref").read().splitlines()
    head = [l for l in ref if l.startswith(";") and "@launch" not in l and "Override" not in l and "grid=ceil" not in l]
    out = "\n".join(head) + "\n"
    phases = [phase1, lambda k: phase2(k, lambda: p3_preload(k, k.ctx)), lambda k: phase_g64(k, "wo", k.ctx),
              lambda k: phase4(k, k.ctx), lambda k: phase_g64(k, "dn", k.ctx)]
    ks = []
    if FUSED:
        k = K(NAME + "_kernel")
        k.ctx = Ctx(k)
        entry(k)
        for p in phases: p(k)
        finish(k, 0)
        ks.append(k)
        if DIAG:
            out += f"; @launch kernel={k.name} grid=(256,1,1) block=(768,1,1) lds={k.lds}\n"
            out += "; @launch kernel=k6_diag_kernel grid=(1,1,1) block=(64,1,1) lds=0\n"
            ks.append(gen_diag())
        else:
            out += f"; @launch grid=(256,1,1) block=(768,1,1) lds={k.lds}\n"
    else:
        for i, p in enumerate(phases):
            k = K(f"k{i+1}_kernel")
            k.ctx = Ctx(k)
            entry(k)
            p(k)
            finish(k, i)
            ks.append(k)
            out += f"; @launch kernel={k.name} grid=(256,1,1) block=(768,1,1) lds={k.lds}\n"
    out += '.amdgcn_target "amdgcn-amd-amdhsa--gfx950"\n'
    for k in ks:
        out += k.text()
    return out

if __name__ == "__main__":
    out = build()
    open(sys.argv[1], "w").write(out)
    bad = hazard.check(out)
    print("hazards:", len(bad))
```

```python
import sys, struct, os
sys.path.insert(0, "g3")
import hazard

NAME = "sequential_preLN__softmax_full_mha__geglu_ffn__prompt"
def opt(n, d): return int(os.environ.get(n, str(d)))
FUSED = opt("FUSED", 1)
STAMP = opt("STAMP", 0)
NODMA = opt("NODMA", 0)
KEEP = (2, 22, 23, 33, 43, 62)

WS_Q   = 0x000000
WS_KV  = 0x200000
WS_O   = 0x600000
WS_H   = 0x800000
WS_ST  = 0xA00000
WS_CS  = 0xA40000
WS_FL  = 0x1780000
WS_FT  = 0xAC0000
WS_WO  = 0xB00000
WS_WD  = 0xC00000
WS_WGU = 0xE00000
WS_A   = 0x1200000
WS_END = 0x1800000
WS_DBG = 0x2000000
OOB    = 0x7FFF0000
SC = " sc1" if FUSED else ""

S_X, S_WQKV, S_WO, S_WG, S_WU, S_WD, S_OUT, S_DBG, S_WS = 64, 66, 68, 72, 74, 76, 78, 80, 82
S_NONCE = 84
SRD_WS = 20

def f32(x):
    return "0x%08x" % struct.unpack("<I", struct.pack("<f", x))[0]
def vr(b, n):
    return f"v[{b}:{b+n-1}]" if n > 1 else f"v{b}"

class K:
    def __init__(self, name):
        self.name = name
        self.lines = []
        self.nv = 0
        self.maxv = 0
        self.lds = 0
        self.ph = "p"
        self.bars = {}
        self.role = None
        self.nst = {}
    def phase(self, p):
        self.ph = p
        self.nv = 0
    def e(self, s):
        if NODMA and s.endswith(" lds"):
            s = "s_nop 0"
        self.lines.append("    " + s)
    def bar(self, n=1):
        for _ in range(n):
            self.e("s_barrier")
    def label(self, l):
        self.lines.append(f"{self.L(l)}:")
    def L(self, l):
        return f"{self.name}_{self.ph}_{l}"
    def v(self, n=1):
        align = 1 if n == 1 else (2 if n == 2 else 4)
        self.nv = (self.nv + align - 1) // align * align
        r = self.nv
        self.nv += n
        self.maxv = max(self.maxv, self.nv)
        return r
    def use_lds(self, n):
        assert n <= 163840, n
        self.lds = max(self.lds, n)
    def stamp(self, idx):
        if not STAMP or (STAMP == 3 and idx not in KEEP):
            return
        self.e("s_memtime s[86:87]" if STAMP != 2 else "s_memrealtime s[86:87]")
        self.e("s_waitcnt lgkmcnt(0)")
        self.e(f"v_writelane_b32 v167, s86, {idx}")
        self.maxv = 168
    def stamp_rt(self, idx):
        if not STAMP or (STAMP == 3 and idx != 63):
            return
        self.e("s_memrealtime s[86:87]")
        self.e("s_waitcnt lgkmcnt(0)")
        self.e(f"v_writelane_b32 v167, s86, {idx}")
    def stamp_flush(self, kidx):
        if not STAMP:
            return
        self.e("s_waitcnt vmcnt(0) lgkmcnt(0)")
        self.stamp(62)
        self.stamp_rt(63)
        self.e(f"s_add_u32 s56, s{S_WS}, {hex(WS_DBG + kidx*0x100000)}")
        self.e(f"s_addc_u32 s57, s{S_WS+1}, 0")
        self.e("s_mov_b32 s58, 0x100000")
        self.e("s_mov_b32 s59, 0x00020000")
        self.e("s_lshl_b32 s60, s2, 4")
        self.e("s_add_u32 s60, s60, s24")
        self.e("s_lshl_b32 s60, s60, 8")
        self.e("v_lshlrev_b32 v1, 2, v0")
        self.e("buffer_store_dword v167, v1, s[56:59], s60 offen")
    def text(self):
        nv = max(self.maxv, 8)
        assert nv <= 168, nv
        acc = (nv + 3) // 4 * 4
        head = f""".text
.globl {self.name}
.p2align 8
.type {self.name},@function
{self.name}:
"""
        tail = f"""
.section .rodata,"a"
.p2align 6
.amdhsa_kernel {self.name}
  .amdhsa_next_free_vgpr {nv}
  .amdhsa_next_free_sgpr 96
  .amdhsa_accum_offset {acc}
  .amdhsa_group_segment_fixed_size 0
  .amdhsa_kernarg_size 80
  .amdhsa_user_sgpr_count 2
  .amdhsa_user_sgpr_kernarg_segment_ptr 1
  .amdhsa_system_sgpr_workgroup_id_x 1
.end_amdhsa_kernel
"""
        return head + "\n".join(self.lines) + tail

def srd(k, d, base, nbytes):
    k.e(f"s_mov_b64 s[{d}:{d+1}], s[{base}:{base+1}]")
    k.e(f"s_mov_b32 s{d+2}, {hex(nbytes)}")
    k.e(f"s_mov_b32 s{d+3}, 0x00020000")

def mfma32(d, a, b, c=None):
    cs = vr(d, 16) if c is None else (c if isinstance(c, str) else vr(c, 16))
    return f"v_mfma_f32_32x32x16_bf16 {vr(d,16)}, {vr(a,4)}, {vr(b,4)}, {cs}"

def spread(k, mains, reads, others, rper, oper):
    ri = oi = 0
    for m in mains:
        k.e(m)
        n = 0
        while ri < len(reads) and n < rper:
            k.e(reads[ri]); ri += 1; n += 1
        if ri >= len(reads):
            while oi < len(others) and n < oper:
                k.e(others[oi]); oi += 1; n += 1
    for x in reads[ri:] + others[oi:]:
        k.e(x)

def entry(k):
    k.e("s_cmp_ge_u32 s2, 256")
    k.e(f"s_cbranch_scc1 {k.name}_exit")
    k.e("s_load_dwordx16 s[64:79], s[0:1], 0")
    k.e("s_load_dwordx4 s[80:83], s[0:1], 64")
    k.e("v_lshrrev_b32 v1, 6, v0")
    k.e("v_and_b32 v0, 63, v0")
    k.e("v_readfirstlane_b32 s24, v1")
    k.e(f"s_mov_b32 s22, {hex(WS_END)}")
    k.e("s_mov_b32 s23, 0x00020000")
    if STAMP:
        k.e("v_mov_b32 v167, 0")
        k.e("s_memtime s[88:89]" if STAMP != 2 else "s_memrealtime s[88:89]")
    k.first = True

def args_ready(k):
    if k.first:
        k.e("s_waitcnt lgkmcnt(0)")
        k.e(f"s_mov_b64 s[20:21], s[{S_WS}:{S_WS+1}]")
        if STAMP:
            k.e("v_writelane_b32 v167, s88, 0")

def finish(k, kidx):
    k.lines.append(f"{k.name}_fin:")
    k.stamp_flush(kidx)
    k.lines.append(f"{k.name}_exit:")
    k.e("s_endpgm")

def tile_map_32x8(k):
    k.e("s_and_b32 s25, s2, 6")
    k.e("s_lshl_b32 s25, s25, 2")
    k.e("s_bfe_u32 s27, s2, 0x30003")
    k.e("s_add_u32 s25, s25, s27")
    k.e("s_and_b32 s26, s2, 1")
    k.e("s_lshl_b32 s26, s26, 2")
    k.e("s_lshr_b32 s28, s2, 6")
    k.e("s_add_u32 s26, s26, s28")

def tile_map_row(k):
    k.e("s_and_b32 s25, s2, 7")
    k.e("s_lshl_b32 s25, s25, 2")
    k.e("s_bfe_u32 s27, s2, 0x20003")
    k.e("s_add_u32 s25, s25, s27")
    k.e("s_lshr_b32 s26, s2, 5")

def ln_finish(k, vS, vQ, vNegM, vRstd, t0):
    k.e(f"v_mul_f32 v{vS}, {f32(1.0/512)}, v{vS}")
    k.e(f"v_mul_f32 v{vQ}, {f32(1.0/512)}, v{vQ}")
    k.e(f"v_fma_f32 v{vQ}, -v{vS}, v{vS}, v{vQ}")
    k.e(f"v_max_f32 v{vQ}, 0, v{vQ}")
    k.e(f"v_cvt_pk_bf16_f32 v{vNegM}, -v{vS}, -v{vS}")
    k.e(f"v_cvt_pk_bf16_f32 v{t0}, v{vQ}, v{vQ}")
    k.e(f"v_lshlrev_b32 v{t0}, 16, v{t0}")
    k.e(f"v_add_f32 v{t0}, {f32(1e-5)}, v{t0}")
    k.e(f"v_cvt_pk_bf16_f32 v{t0}, v{t0}, v{t0}")
    k.e(f"v_lshlrev_b32 v{t0}, 16, v{t0}")
    k.e(f"v_sqrt_f32 v{t0}, v{t0}")
    k.e("s_nop 0")
    k.e(f"v_cvt_pk_bf16_f32 v{t0}, v{t0}, v{t0}")
    k.e(f"v_lshlrev_b32 v{t0}, 16, v{t0}")
    k.e(f"v_rcp_f32 v{vRstd}, v{t0}")
    k.e("s_nop 0")

def split2(k, vcs, vdst, t0):
    k.e(f"v_cvt_pk_bf16_f32 v{t0}, v{vcs}, v{vcs}")
    k.e(f"v_lshlrev_b32 v{t0}, 16, v{t0}")
    k.e(f"v_sub_f32 v{t0}, v{vcs}, v{t0}")
    k.e(f"v_cvt_pk_bf16_f32 v{vdst}, v{vcs}, v{t0}")

def pkmul_bcast(k, d, s):
    if s % 2 == 0:
        k.e(f"v_pk_mul_f32 {vr(d,2)}, {vr(d,2)}, {vr(s,2)} op_sel_hi:[1,0]")
    else:
        k.e(f"v_pk_mul_f32 {vr(d,2)}, {vr(d,2)}, {vr(s-1,2)} op_sel:[0,1]")

class VQ:
    def __init__(self, k):
        self.k = k; self.q = []
    def add(self, tag, n=1):
        self.q += [tag] * n
    def wait(self, pred):
        idx = [i for i, t in enumerate(self.q) if pred(t)]
        if not idx:
            return
        n = len(self.q) - 1 - max(idx)
        assert n <= 63
        self.k.e(f"s_waitcnt vmcnt({n})")
        self.q = self.q[max(idx) + 1:]
    def drain(self):
        self.q = []

def publish(k, ph, vaddr, nlanes, va):
    if not FUSED:
        return
    k.e(f"s_mov_b32 s62, {hex(WS_FL + ph*0x20000)}")
    k.e(f"v_mov_b32 v{va}, s{S_NONCE}")
    k.e(f"v_mov_b32 v{va+1}, s{S_NONCE+1}")
    k.e(f"s_mov_b64 exec, {hex((1 << nlanes) - 1)}")
    k.e("s_waitcnt vmcnt(0)")
    k.e(f"buffer_store_dwordx2 {vr(va,2)}, v{vaddr}, s[20:23], s62 offen sc1")
    k.e("s_mov_b64 exec, -1")

def mbox_g64(k, vd, vt, s_tm, s_slot):
    if not FUSED:
        return
    k.e(f"v_lshlrev_b32 v{vd}, 14, v0")
    k.e(f"s_lshr_b32 s62, s{s_tm}, 2")
    k.e("s_lshl_b32 s62, s62, 9")
    k.e(f"s_and_b32 s63, s{s_tm}, 3")
    k.e("s_lshl_b32 s63, s63, 12")
    k.e("s_add_u32 s62, s62, s63")
    k.e(f"s_lshl_b32 s63, s{s_slot}, 3")
    k.e("s_add_u32 s62, s62, s63")
    k.e(f"v_add_u32 v{vd}, s62, v{vd}")

def poll(k, tag, vaddr, vd, soff, sleep=0, atomic=False):
    if not FUSED:
        return
    k.e("s_mov_b32 s63, 0x8000")
    k.label("poll_" + tag)
    if atomic:
        k.e(f"v_mov_b32 v{vd}, 0")
        k.e(f"v_mov_b32 v{vd+1}, 0")
        k.e(f"buffer_atomic_or_x2 {vr(vd,2)}, v{vaddr}, s[20:23], {soff} offen sc0 sc1")
    else:
        k.e(f"buffer_load_dwordx2 {vr(vd,2)}, v{vaddr}, s[20:23], {soff} offen sc1")
    k.e("s_sub_u32 s63, s63, 1")
    k.e("s_waitcnt vmcnt(0)")
    k.e(f"v_cmp_ne_u64 vcc, s[{S_NONCE}:{S_NONCE+1}], {vr(vd,2)}")
    k.e(f"s_cbranch_scc1 {k.L('polld_' + tag)}")
    k.e(f"s_cbranch_vccz {k.L('polld_' + tag)}")
    k.e("s_mov_b64 exec, vcc")
    if sleep:
        k.e(f"s_sleep {sleep}")
    k.e(f"s_branch {k.L('poll_' + tag)}")
    k.label("polld_" + tag)
    k.e("s_mov_b64 exec, -1")

def pollp(k, tag, vaddr, vd, soff):
    n = NPIPE
    def iss(j):
        k.e(f"v_mov_b32 v{vd+2*j}, 0")
        k.e(f"v_mov_b32 v{vd+2*j+1}, 0")
        k.e(f"buffer_atomic_or_x2 {vr(vd+2*j,2)}, v{vaddr}, s[20:23], {soff} offen sc0 sc1")
    k.e("s_mov_b32 s63, 0x8000")
    for i in range(n - 1):
        iss(i)
        k.e(f"s_sleep {PGAP}")
    k.label("poll_" + tag)
    for i in range(n):
        iss((i + n - 1) % n)
        k.e(f"s_waitcnt vmcnt({n-1})")
        k.e(f"v_cmp_ne_u64 vcc, s[{S_NONCE}:{S_NONCE+1}], {vr(vd+2*i,2)}")
        k.e(f"s_cbranch_vccz {k.L('polld_' + tag)}")
        k.e("s_mov_b64 exec, vcc")
        k.e(f"s_sleep {PGAP}")
    k.e("s_sub_u32 s63, s63, 1")
    k.e(f"s_cbranch_scc0 {k.L('poll_' + tag)}")
    k.label("polld_" + tag)
    k.e("s_mov_b64 exec, -1")

def mbox_own(k, ph, vaddr, sreg):
    if not FUSED:
        return
    k.e(f"v_lshlrev_b32 v{vaddr}, 3, v0")
    k.e(f"s_lshl_b32 s{sreg}, s2, 9")
    k.e(f"s_add_u32 s{sreg}, s{sreg}, {hex(WS_FL + ph*0x20000)}")

def poll0(k, ph, tag, vaddr, vd, st, mask=None, wave=8, G=True):
    if not FUSED:
        return
    mbox_own(k, ph, vaddr, 61)
    k.e(f"s_cmp_lg_u32 s24, {wave}")
    if G:
        k.bar()
    k.e(f"s_cbranch_scc1 {k.L('nop_' + tag)}")
    k.stamp(st)
    if mask:
        k.e(f"s_mov_b64 exec, {mask}")
    poll(k, tag, vaddr, vd, "s61", sleep=POLLSLEEP, atomic=True)
    k.label("nop_" + tag)
    k.bar()
    k.stamp(st + 1)

NPIPE = opt("NPIPE", 1)
PGAP = opt("PGAP", 2)
POLLSLEEP = opt("POLLSLEEP", 1)
KB = 1024
P4_X = [i * 8 * KB for i in range(6)]
P4_W = [104*KB, 116*KB, 128*KB, 140*KB, 48*KB, 60*KB, 72*KB, 84*KB]
P4_MISC = 96 * KB
P5_W = [x * KB for x in (152, 104, 112, 120, 128, 136, 144, 32, 40, 48, 56, 64)]
P5_A = [x * KB for x in (0, 8, 16, 24, 72, 80, 88, 96)]
P5_RES = 96 * KB
P3_W = [x * KB for x in (128, 136, 144, 152, 64, 72, 80, 88)]
P3_A = [i * 8 * KB for i in range(8)]
P3_RES = 96 * KB

V_AP = 20
def cs_issue(k, s_grp, s_i, va, vt, R):
    k.e(f"s_mul_i32 s62, s{s_grp}, 96")
    k.e(f"s_lshl_b32 s63, s{s_i}, 5")
    k.e("s_add_u32 s62, s62, s63")
    k.e(f"v_lshrrev_b32 v{va}, 5, v0")
    k.e(f"v_lshl_add_u32 v{va}, v{va}, 4, s62")
    k.e(f"v_and_b32 v{vt}, 15, v0")
    k.e(f"v_add_u32 v{va}, v{va}, v{vt}")
    k.e(f"v_and_b32 v{vt}, 63, v{va}")
    k.e(f"v_lshrrev_b32 v{va}, 6, v{va}")
    k.e(f"v_lshlrev_b32 v{va}, 12, v{va}")
    k.e(f"v_lshl_add_u32 v{va}, v{vt}, 2, v{va}")
    k.e(f"v_bfe_u32 v{vt}, v0, 4, 1")
    k.e(f"v_mul_u32_u24 v{vt}, {352*256}, v{vt}")
    k.e(f"v_add_u32 v{va}, v{va}, v{vt}")
    k.e(f"s_mov_b32 s62, {hex(WS_CS)}")
    for kp in range(16):
        k.e(f"buffer_load_dword v{R+kp}, v{va}, s[20:23], s62 offen offset:{kp*256}{SC}")
def cs_reduce(k, R, vdst, vt):
    for i in range(1, 16):
        k.e(f"v_add_f32 v{R}, v{R}, v{R+i}")
    split2(k, R, vdst, vt)

CODEPF = opt("CODEPF", 3)
def code_warm(k, tag, n=2):
    if not (CODEPF and FUSED) or (CODEPF >= 3 and tag == 'a') or (CODEPF == 3):
        return
    k.e("s_lshr_b32 s60, s2, 3")
    k.e("s_lshl_b32 s60, s60, 2")
    k.e("s_add_u32 s60, s60, s24")
    k.e("s_lshl_b32 s60, s60, 7")
    k.e("s_getpc_b64 s[62:63]")
    k.label("cw_" + tag)
    for i in range(n):
        k.e(f"s_min_u32 s61, s60, {k.name}_exit-{k.L('cw_' + tag)}")
        k.e("s_load_dword s90, s[62:63], s61")
        if i + 1 < n:
            k.e("s_add_u32 s60, s60, 16384")
            k.e("s_waitcnt lgkmcnt(0)" if False else "s_nop 0")

def code_warm0(k):
    if not (CODEPF >= 3 and FUSED):
        return
    k.e("s_and_b32 s60, s2, 0xf8")
    k.e("s_add_u32 s60, s60, s24")
    k.e("s_sub_u32 s60, s60, 4")
    k.e("s_lshl_b32 s60, s60, 7")
    k.e("s_getpc_b64 s[62:63]")
    k.label("cw0")
    k.e(f"s_sub_u32 s62, s62, {k.L('cw0')}-{k.name}")
    k.e("s_subb_u32 s63, s63, 0")
    k.e(f"s_min_u32 s61, s60, {k.name}_exit-{k.name}")
    k.e("s_load_dword s90, s[62:63], s61")
```

```python
from base import *
K1_D = opt("K1_D", 4)
TLBW = opt("TLBW", 2)
TLBG = opt("TLBG", 0x10000)
def phase1(k):
    k.phase("p1")
    XP = 1040
    XH = 32 * XP
    WBASE = 2 * XH
    NSLOT = 7
    D = K1_D
    SLOT = 12288
    MISC = 0
    MISC2 = 2048
    k.use_lds(WBASE + NSLOT * SLOT)
    vl = k.v(); vt0 = k.v(); vt1 = k.v(); vt2 = k.v()
    vL16 = k.v()
    vXp = [k.v(), k.v()]; vXm = [k.v(), k.v()]
    vW0 = [k.v(), k.v()]; vW1 = [k.v(), k.v()]
    vR = k.v(2); vR2 = vR + 1
    sel = k.v(4)
    cs = [k.v(4) for _ in range(3)]
    acc = [k.v(16) for _ in range(3)]
    sets = [dict(XA=k.v(4), XB=k.v(4), WA=[k.v(4) for _ in range(3)], WB=[k.v(4) for _ in range(3)]) for _ in range(2)]
    BP = k.v(4); AP = [k.v(4) for _ in range(3)]
    vN = k.v(2)
    vMB = k.v()
    RR = sets[0]['WA'][0]
    def tag_read():
        if FUSED:
            k.e(f"v_mov_b32 v{vN}, {MISC+512}")
            k.e(f"ds_read_b64 {vr(vN,2)}, v{vN}")
    def tag_take():
        if FUSED:
            k.e(f"v_readfirstlane_b32 s{S_NONCE}, v{vN}")
            k.e(f"v_readfirstlane_b32 s{S_NONCE+1}, v{vN+1}")
    tile_map_32x8(k)
    k.e(f"v_lshrrev_b32 v{vt1}, 5, v0")
    k.e("s_cmp_lt_u32 s24, 4")
    k.e(f"s_cbranch_scc1 {k.L('load')}")
    code_warm0(k)
    k.e(f"s_branch {k.L('cons')}")
    k.label("load")
    vWg = vXp[0]; vXg = vXp[1]
    k.e(f"v_lshrrev_b32 v{vt0}, 3, v0")
    k.e(f"v_mul_u32_u24 v{vWg}, 3072, v{vt0}")
    k.e(f"v_lshrrev_b32 v{vt0}, 2, v0")
    k.e(f"v_and_b32 v{vt0}, 4, v{vt0}")
    k.e(f"v_xor_b32 v{vt0}, v{vt0}, v0")
    k.e(f"v_and_b32 v{vt0}, 7, v{vt0}")
    k.e(f"v_lshl_add_u32 v{vWg}, v{vt0}, 4, v{vWg}")
    k.e(f"v_lshlrev_b32 v{vt0}, 3, v{vt1}")
    k.e(f"v_xor_b32 v{vt0}, v{vt0}, v0")
    k.e(f"v_lshl_add_u32 v{vt0}, s27, 2, v{vt0}")
    k.e(f"v_and_b32 v{vt0}, 31, v{vt0}")
    k.e(f"v_lshlrev_b32 v{vXg}, 10, v{vt1}")
    k.e(f"v_lshl_add_u32 v{vXg}, v{vt0}, 4, v{vXg}")
    k.e("s_lshl_b32 s31, s25, 16")
    k.e("s_lshl_b32 s36, s24, 11")
    k.e("s_add_u32 s31, s31, s36")
    k.e(f"s_mul_i32 s29, s24, {XP}")
    for g in range(4):
        k.e(f"s_add_u32 s36, s28, {g}")
        k.e("s_and_b32 s36, s36, 3")
        k.e(f"s_mul_i32 s{44+g}, s36, {8*XP}")
        k.e(f"s_add_u32 s{44+g}, s{44+g}, s29")
        k.e("s_lshl_b32 s36, s36, 14")
        k.e(f"s_add_u32 s{48+g}, s36, s31")
    k.e(f"s_mul_i32 s32, s24, {8*3072}")
    k.e("s_lshl_b32 s33, s26, 7")
    k.e("s_add_u32 s32, s32, s33")
    k.e(f"s_mul_i32 s33, s27, {32*3072}")
    k.e("s_add_u32 s33, s33, s32")
    k.e(f"s_add_u32 s35, s32, {256*3072}")
    k.e("s_mul_i32 s34, s24, 3072")
    k.e(f"s_add_u32 s34, s34, {WBASE}")
    k.e(f"s_mov_b32 s14, {2048*1024}")
    k.e("s_mov_b32 s15, 0x00020000")
    k.e(f"s_mov_b32 s18, {512*3072}")
    k.e("s_mov_b32 s19, 0x00020000")
    args_ready(k)
    k.e(f"s_mov_b64 s[12:13], s[{S_X}:{S_X+1}]")
    k.e(f"s_mov_b64 s[16:17], s[{S_WQKV}:{S_WQKV+1}]")
    q = VQ(k)
    def xgrp(g, half):
        k.e(f"s_add_u32 m0, s{44+g}, {half*(XH-512)}")
        k.e(f"s_add_u32 s36, s{48+g}, 8192")
        k.e(f"buffer_load_dwordx4 v{vXg}, s[12:15], s{48+g} offen offset:{half*512} lds")
        k.e(f"s_add_u32 m0, s{44+g}, {half*(XH-512) + 4*XP}")
        k.e("s_nop 0")
        k.e(f"buffer_load_dwordx4 v{vXg}, s[12:15], s36 offen offset:{half*512} lds")
        q.add(0 if half == 0 else 5, 2)
    def wstage(s):
        k.e(f"s_add_u32 m0, s34, {(s % NSLOT)*SLOT}")
        k.e(f"s_add_u32 s36, s33, {32*3072}")
        for g in range(3):
            k.e(f"buffer_load_dwordx4 v{vWg}, s[16:19], s33 offen offset:{g*1024} lds")
        if s < 15:
            k.e("s_cmp_eq_u32 s36, s35")
            k.e("s_cselect_b32 s33, s32, s36")
        if s == 7:
            k.e(f"s_add_u32 s33, s33, {256*3072}")
            k.e("s_mov_b32 s32, s35")
            k.e(f"s_add_u32 s35, s35, {256*3072}")
        q.add(s, 3)
    xgrp(0, 0); wstage(0)
    for g in (1, 2, 3): xgrp(g, 0)
    for s in range(1, D): wstage(s)
    code_warm(k, "a", 3)
    for s in range(16):
        q.wait(lambda t: t <= s)
        k.bar()
        if STAMP == 1 or s in (0, 15): k.stamp(1 + s)
        if s < 2:
            xgrp(2*s, 1); xgrp(2*s+1, 1)
        if s + D < 16:
            wstage(s + D)
        if s == TLBW:
            k.e("s_lshr_b32 s37, s2, 3")
            k.e("s_lshl_b32 s37, s37, 2")
            k.e("s_add_u32 s37, s37, s24")
            k.e("s_mul_i32 s36, s37, 0x30000")
            k.e(f"s_add_u32 s38, s{S_WS}, s36")
            k.e(f"s_addc_u32 s39, s{S_WS+1}, 0")
            for i in range(0, 0x30000, TLBG):
                k.e(f"s_load_dword s40, s[38:39], {hex(i)}")
            for p, sz in ((S_WO, 512*1024), (S_WG, 512*2752), (S_WU, 512*2752), (S_WD, 1376*1024), (S_OUT, 2048*1024)):
                k.e(f"s_mul_i32 s36, s37, {(sz // 128) & ~63}")
                k.e(f"s_load_dword s40, s[{p}:{p+1}], s36")
    k.label("tail")
    tag_read()
    if FUSED:
        k.e("s_waitcnt lgkmcnt(0)")
        tag_take()
        k.bar()
    k.e(f"s_branch {k.L('done')}")
    k.label("stat")
    k.e("s_setprio 3")
    vSum = vXp[0]; vSq = vXp[1]; vSum2 = vXm[0]; vSq2 = vXm[1]; vXs = vW0[0]
    k.e("s_and_b32 s29, s24, 3")
    k.e(f"v_and_b32 v{vt0}, 15, v0")
    k.e(f"v_lshrrev_b32 v{vt2}, 1, v{vt0}")
    k.e(f"v_mul_u32_u24 v{vXs}, {XP}, v{vt2}")
    k.e(f"v_and_b32 v{vt2}, 1, v0")
    k.e(f"v_lshl_add_u32 v{vXs}, v{vt2}, 9, v{vXs}")
    k.e(f"v_lshrrev_b32 v{vt1}, 4, v0")
    k.e(f"v_xor_b32 v{vt1}, v{vt1}, v{vt2}")
    k.e(f"v_lshl_add_u32 v{vXs}, v{vt1}, 7, v{vXs}")
    k.e(f"s_mul_i32 s36, s29, {8*XP}")
    k.e(f"v_add_u32 v{vXs}, s36, v{vXs}")
    for z in (vSum, vSq, vSum2, vSq2):
        k.e(f"v_mov_b32 v{z}, 0")
    k.e("s_mov_b32 s41, 0xffff0000")
    k.e("s_mov_b32 s40, 0")
    args_ready(k)
    vZ = vW0[1]
    if FUSED:
        srd(k, 12, S_DBG, 256)
        k.e(f"v_mov_b32 v{vZ}, 0")
        k.e("s_lshl_b32 s36, s2, 4")
        k.e("s_add_u32 s36, s36, s24")
        k.e("s_cmp_lg_u32 s36, 8")
        k.e(f"s_cbranch_scc1 {k.L('notag')}")
        k.e("s_memrealtime s[36:37]")
        k.e("s_waitcnt lgkmcnt(0)")
        k.e("s_or_b32 s37, s37, 0x40000000")
        k.e(f"v_mov_b32 v{vN}, s36")
        k.e(f"v_mov_b32 v{vN+1}, s37")
        k.e(f"buffer_store_dwordx2 {vr(vN,2)}, v{vZ}, s[12:15], 0 offen sc1")
        k.e("s_waitcnt vmcnt(0)")
        k.label("notag")
    XS = [sets[0]['XA'], sets[0]['XB']]
    tl = [sets[1]['XA'] + i for i in range(4)]
    def proc(X):
        for i in range(4):
            a, b = tl[(2*i) % 4], tl[(2*i+1) % 4]
            x = X + i
            for ln in [f"v_lshlrev_b32 v{a}, 16, v{x}", f"v_and_b32 v{b}, s41, v{x}",
                       f"v_fmac_f32 v{vSq}, v{a}, v{a}", f"v_fmac_f32 v{vSq2}, v{b}, v{b}",
                       f"v_add_f32 v{vSum}, v{vSum}, v{a}", f"v_add_f32 v{vSum2}, v{vSum2}, v{b}"]:
                k.e(ln)
    k.bar()
    k.e(f"ds_read_b128 {vr(XS[0],4)}, v{vXs}")
    if FUSED:
        k.e(f"buffer_load_dwordx2 {vr(vN,2)}, v{vZ}, s[12:15], 0 offen sc1")
    k.label("sloop")
    k.e("s_waitcnt lgkmcnt(0)")
    k.e(f"ds_read_b128 {vr(XS[1],4)}, v{vXs} offset:16")
    k.e("s_cmp_eq_u32 s40, 3")
    k.e(f"s_cselect_b32 s36, {XH-96}, 32")
    k.e(f"v_add_u32 v{vXs}, s36, v{vXs}")
    k.e("s_cmp_lt_u32 s40, 2")
    proc(XS[0])
    k.e(f"s_cbranch_scc1 {k.L('snb')}")
    k.bar()
    k.label("snb")
    k.e("s_waitcnt lgkmcnt(0)")
    k.e(f"ds_read_b128 {vr(XS[0],4)}, v{vXs}")
    k.e("s_add_u32 s40, s40, 1")
    k.e("s_cmp_lt_u32 s40, 8")
    proc(XS[1])
    k.bar()
    k.e(f"s_cbranch_scc1 {k.L('sloop')}")
    k.e(f"v_add_f32 v{vSum}, v{vSum}, v{vSum2}")
    k.e(f"v_add_f32 v{vSq}, v{vSq}, v{vSq2}")
    k.e("s_nop 1")
    k.e(f"v_permlane32_swap_b32 v{vSum}, v{vSq}")
    k.e(f"v_add_f32 v{vSum}, v{vSum}, v{vSq}")
    k.e(f"v_mov_b32 v{vSq}, v{vSum}")
    k.e("s_nop 1")
    k.e(f"v_permlane16_swap_b32 v{vSum}, v{vSq}")
    k.e(f"v_add_f32 v{vSum}, v{vSum}, v{vSq}")
    k.e(f"v_mov_b32 v{vSq}, v{vSum}")
    k.e("s_nop 1")
    k.e(f"v_permlane32_swap_b32 v{vSum}, v{vSq}")
    ln_finish(k, vSum, vSq, vSum2, vSq2, vt2)
    k.e("s_lshl_b32 s36, s29, 6")
    k.e(f"v_lshl_add_u32 v{vt0}, v{vt0}, 2, s36")
    k.e(f"ds_write2_b32 v{vt0}, v{vSum2}, v{vSq2} offset0:{MISC//4} offset1:{MISC//4+64}")
    if FUSED:
        k.e("s_mov_b32 s63, 0x8000")
        k.label("tagw")
        k.e("s_waitcnt vmcnt(0)")
        k.e(f"v_cmp_eq_u32 vcc, 0, v{vN+1}")
        k.e("s_sub_u32 s63, s63, 1")
        k.e(f"s_cbranch_scc1 {k.L('tagok')}")
        k.e(f"s_cbranch_vccz {k.L('tagok')}")
        k.e(f"buffer_load_dwordx2 {vr(vN,2)}, v{vZ}, s[12:15], 0 offen sc1")
        k.e(f"s_branch {k.L('tagw')}")
        k.label("tagok")
        k.e(f"ds_write_b64 v{vZ}, {vr(vN,2)} offset:{MISC+512}")
    k.e("s_waitcnt lgkmcnt(0)")
    k.e("s_setprio 0")
    k.bar()
    k.e(f"s_branch {k.L('tail')}")
    k.label("cons")
    k.e("s_cmp_ge_u32 s24, 8")
    k.e(f"s_cbranch_scc1 {k.L('stat')}")
    k.e(f"v_lshlrev_b32 v{vL16}, 4, v0")
    k.e("s_and_b32 s33, s24, 1")
    k.e("s_bfe_u32 s34, s24, 0x10001")
    k.e("s_xor_b32 s35, s33, s34")
    k.e(f"v_bfe_u32 v{vt0}, v0, 1, 4")
    k.e(f"v_mul_u32_u24 v{vt2}, {XP}, v{vt0}")
    k.e(f"v_lshl_add_u32 v{vt2}, v{vt1}, 4, v{vt2}")
    k.e(f"v_and_b32 v{vt0}, 1, v0")
    k.e(f"v_mul_u32_u24 v{vXp[0]}, {512+128}, v{vt0}")
    k.e(f"v_mul_u32_u24 v{vXm[0]}, {512-128}, v{vt0}")
    k.e(f"s_mul_i32 s36, s33, {16*XP}")
    k.e("s_lshl_b32 s37, s35, 5")
    k.e("s_add_u32 s38, s36, s37")
    k.e("s_xor_b32 s37, s37, 32")
    k.e("s_add_u32 s39, s36, s37")
    k.e(f"v_add3_u32 v{vXp[1]}, v{vXp[0]}, v{vt2}, s39")
    k.e(f"v_add3_u32 v{vXm[1]}, v{vXm[0]}, v{vt2}, s39")
    k.e(f"v_add3_u32 v{vXp[0]}, v{vXp[0]}, v{vt2}, s38")
    k.e(f"v_add3_u32 v{vXm[0]}, v{vXm[0]}, v{vt2}, s38")
    w = vW1[1]
    k.e(f"v_mul_u32_u24 v{w}, 3072, v{vt1}")
    k.e(f"v_bfe_u32 v{vt0}, v0, 2, 2")
    k.e(f"v_lshl_add_u32 v{w}, v{vt0}, 7, v{w}")
    k.e(f"v_bfe_u32 v{vt0}, v0, 3, 1")
    k.e(f"v_xor_b32 v{vt0}, s34, v{vt0}")
    k.e(f"v_lshl_add_u32 v{w}, v{vt0}, 6, v{w}")
    k.e(f"v_bfe_u32 v{vt0}, v0, 4, 1")
    k.e(f"v_lshl_add_u32 v{w}, v{vt0}, 5, v{w}")
    k.e(f"v_and_b32 v{vt2}, 3, v0")
    k.e(f"v_lshl_add_u32 v{w}, v{vt2}, 3, v{w}")
    k.e("s_mul_i32 s28, s35, 6144")
    k.e(f"s_add_u32 s36, s28, {WBASE}")
    k.e(f"s_sub_u32 s37, {WBASE+6144}, s28")
    k.e(f"v_add_u32 v{vW0[0]}, s36, v{w}")
    k.e(f"v_add_u32 v{vW0[1]}, s37, v{w}")
    k.e(f"v_add_u32 v{vW1[0]}, {4*SLOT}, v{vW0[0]}")
    k.e(f"v_add_u32 v{vW1[1]}, {4*SLOT}, v{vW0[1]}")
    k.e(f"v_bfe_u32 v{vt2}, v0, 2, 1")
    k.e(f"v_cmp_eq_u32 vcc, v{vt0}, v{vt2}")
    k.e(f"v_mov_b32 v{vt2}, 0x3f803f80")
    k.e("s_nop 0")
    k.e(f"v_cndmask_b32 v{sel}, 0, v{vt2}, vcc")
    for i in range(1, 4):
        k.e(f"v_mov_b32 v{sel+i}, v{sel}")
    for z in list(range(BP, BP + 16)):
        k.e(f"v_mov_b32 v{z}, 0")
    k.e("s_lshl_b32 s27, s26, 2")
    k.e("s_lshl_b32 s28, s34, 1")
    k.e("s_add_u32 s27, s27, s28")
    k.e("s_lshl_b32 s27, s27, 6")
    k.e("s_lshl_b32 s28, s25, 1")
    k.e("s_add_u32 s27, s27, s28")
    k.e("s_add_u32 s27, s27, s33")
    k.e("s_lshl_b32 s42, s27, 10")
    k.e("s_add_u32 s43, s42, 0x10000")
    k.e("s_lshl_b32 s44, s27, 11")
    k.e(f"s_add_u32 s44, s44, {hex(WS_KV)}")
    k.e("s_add_u32 s45, s44, 0x20000")
    k.e("s_and_b32 s46, s24, 3")
    if FUSED:
        k.e(f"v_lshrrev_b32 v{vMB}, 1, v0")
        k.e(f"v_lshlrev_b32 v{vMB}, 14, v{vMB}")
        k.e(f"v_and_b32 v{vt2}, 1, v0")
        k.e(f"v_lshl_add_u32 v{vMB}, v{vt2}, 12, v{vMB}")
        k.e("s_lshl_b32 s27, s26, 9")
        k.e("s_lshl_b32 s28, s34, 13")
        k.e("s_add_u32 s27, s27, s28")
        k.e("s_lshl_b32 s28, s25, 4")
        k.e("s_add_u32 s27, s27, s28")
        k.e("s_lshl_b32 s28, s33, 3")
        k.e("s_add_u32 s27, s27, s28")
        k.e(f"v_add_u32 v{vMB}, s27, v{vMB}")
    args_ready(k)
    def big(S, first=False):
        r = []
        for n, (X, W) in enumerate(((S['XA'], S['WA']), (S['XB'], S['WB']))):
            c = "0" if (first and n == 0) else None
            r += [mfma32(acc[0], W[0], X, c), mfma32(acc[1], W[1], X, c), mfma32(acc[2], X, W[2], c)]
        return r
    def small(S, first=False):
        return [f"v_mfma_f32_16x16x32_bf16 {vr(cs[g],4)}, {vr(sel,4)}, {vr(S['WA'][g],4)}, {'0' if first else vr(cs[g],4)}" for g in range(3)]
    def reads(s):
        S = sets[s & 1]
        koff = (s & 7) * 64
        xb = vXm if (koff & 128) else vXp
        xo = (s >> 3) * XH + koff
        sl = s % NSLOT
        wb, wo = (vW0, sl * SLOT) if sl < 4 else (vW1, (sl - 4) * SLOT)
        r = []
        for n, (X, W) in enumerate((('XA', 'WA'), ('XB', 'WB'))):
            r.append(f"ds_read_b128 {vr(S[X],4)}, v{xb[n]} offset:{xo}")
            for g in range(3):
                r.append(f"ds_read_b64_tr_b16 {vr(S[W][g],2)}, v{wb[n]} offset:{wo+g*1024}")
                r.append(f"ds_read_b64_tr_b16 {vr(S[W][g]+2,2)}, v{wb[n]} offset:{wo+g*1024+512}")
        return r
    k.bar()
    for x in reads(0): k.e(x)
    k.e("s_waitcnt lgkmcnt(0)")
    for s in range(15):
        k.bar()
        b = big(sets[s & 1], s == 0); sm = small(sets[s & 1], s == 0)
        m = b[:5] + sm + b[5:]
        spread(k, m[:-1], reads(s + 1), [], 3, 5)
        k.e("s_waitcnt lgkmcnt(0)")
        k.e(m[-1])
    k.stamp(1)
    for m in small(sets[1]): k.e(m)
    k.e(f"v_and_b32 v{vt0}, 31, v0")
    k.e("s_lshl_b32 s27, s33, 7")
    k.e(f"v_lshl_add_u32 v{vt0}, v{vt0}, 2, s27")
    k.e(f"v_lshl_add_u32 v{vt1}, v{vt1}, 4, s27")
    bg = big(sets[1])
    k.e(bg[0])
    k.e(f"ds_read_b32 v{BP}, v{vt0} offset:{MISC}")
    k.e(f"ds_read_b32 v{vR}, v{vt0} offset:{MISC+256}")
    tag_read()
    for j in range(4):
        k.e(f"ds_read_b128 {vr(RR+4*j,4)}, v{vt1} offset:{MISC+256+j*32}")
    T = sets[0]['XA']; B = sets[0]['XB']
    k.e(bg[1])
    k.e("s_lshl_b32 s27, s46, 10")
    k.e(f"v_add_u32 v{vt1}, s27, v{vL16}")
    for g in range(3):
        k.e(f"v_mov_b32 v{T+g}, v{cs[g]}")
    k.e(f"ds_write_b128 v{vt1}, {vr(T,4)} offset:{MISC2}")
    k.e(bg[2])
    k.e(f"v_xor_b32 v{vt1}, 1024, v{vt1}")
    k.e("v_cmp_gt_u32 vcc, 32, v0")
    k.e("s_waitcnt lgkmcnt(0)")
    k.e(bg[3])
    k.bar()
    k.e(f"ds_read_b128 {vr(B,4)}, v{vt1} offset:{MISC2}")
    k.e(bg[4])
    k.e(f"v_cndmask_b32 v{BP}, 0, v{BP}, vcc")
    k.e(f"v_mul_f32 v{vR2}, {f32(0.25*1.4426950408889634)}, v{vR}")
    k.e(f"v_bfe_u32 v{vt0}, v0, 4, 1")
    k.e(f"v_lshlrev_b32 v{vt0}, 17, v{vt0}")
    k.e(f"v_lshrrev_b32 v{vt1}, 5, v0")
    k.e(bg[5])
    k.e(f"v_lshl_add_u32 v{vt0}, v{vt1}, 8, v{vt0}")
    k.e(f"v_and_b32 v{vt1}, 15, v0")
    k.e(f"v_lshl_add_u32 v{vt0}, v{vt1}, 4, v{vt0}")
    tag_take()
    k.e("s_waitcnt lgkmcnt(0)")
    order = [1, 2, 0]
    for n, g in enumerate(order):
        k.e(f"v_add_f32 v{T+g}, v{T+g}, v{B+g}")
        split2(k, T + g, AP[g], vt2)
        if n:
            p = order[n-1]
            k.e(mfma32(acc[p], BP, AP[p]) if p == 2 else mfma32(acc[p], AP[p], BP))
    k.e("s_nop 0")
    k.e(mfma32(acc[0], AP[0], BP))
    k.e("s_nop 4")
    def qk(b, sc, soffs, plain):
        for i in range(0, 16, 2):
            if i < plain:
                k.e(f"v_mul_f32 v{acc[b]+i}, v{sc}, v{acc[b]+i}")
                k.e(f"v_mul_f32 v{acc[b]+i+1}, v{sc}, v{acc[b]+i+1}")
            else:
                pkmul_bcast(k, acc[b] + i, sc)
        for i in range(8):
            k.e(f"v_cvt_pk_bf16_f32 v{acc[b]+i}, v{acc[b]+2*i}, v{acc[b]+2*i+1}")
        k.e(f"buffer_store_dwordx4 {vr(acc[b],4)}, v{vL16}, s[20:23], s{soffs[0]} offen{SC}")
        k.e(f"buffer_store_dwordx4 {vr(acc[b]+4,4)}, v{vL16}, s[20:23], s{soffs[1]} offen{SC}")
    qk(1, vR, (44, 45), 8)
    a = acc[2]
    for i in range(0, 16, 2):
        k.e(f"v_pk_mul_f32 {vr(a+i,2)}, {vr(a+i,2)}, {vr(RR+i,2)}")
    for i in range(8):
        k.e(f"v_cvt_pk_bf16_f32 v{a+i}, v{a+2*i}, v{a+2*i+1}")
    k.e(f"v_permlane32_swap_b32 v{a}, v{a+2}")
    k.e(f"v_permlane32_swap_b32 v{a+1}, v{a+3}")
    k.e(f"buffer_store_dwordx4 {vr(a,4)}, v{vt0}, s[20:23], s44 offen offset:1024{SC}")
    k.e(f"v_permlane32_swap_b32 v{a+4}, v{a+6}")
    k.e(f"v_permlane32_swap_b32 v{a+5}, v{a+7}")
    k.e(f"buffer_store_dwordx4 {vr(a+4,4)}, v{vt0}, s[20:23], s44 offen offset:1536{SC}")
    qk(0, vR2, (42, 43), 0)
    k.stamp(2)
    publish(k, 0, vMB, 16, vN)
    k.stamp(3)
    if FUSED: k.bar()
    k.label("done")
    k.first = False
```

```python
from base import *
PREFETCH = opt("PREFETCH", 2)
STG = 131072
def ft_poll(k, tag, vA, vD, kind):
    if not FUSED:
        return
    if kind in "od":
        k.e(f"v_min_u32 v{vA}, {15 if kind == 'o' else 42}, v0")
        k.e(f"v_lshlrev_b32 v{vA}, 6, v{vA}")
        k.e("s_lshl_b32 s62, s26, 3")
        k.e(f"s_add_u32 s62, s62, {hex(WS_FT + (1048 if kind == 'o' else 704)*8)}")
    else:
        k.e("s_mul_i32 s62, s26, 3")
        k.e(f"v_lshrrev_b32 v{vA}, 5, v0")
        k.e(f"v_lshl_add_u32 v{vA}, v{vA}, 1, s62")
        k.e(f"v_lshrrev_b32 v{vA}, 1, v{vA}")
        k.e(f"v_min_u32 v{vA}, 21, v{vA}")
        k.e(f"v_lshlrev_b32 v{vA}, 4, v{vA}")
        k.e(f"v_bfe_u32 v{vD}, v0, 4, 1")
        k.e(f"v_mul_u32_u24 v{vD}, 352, v{vD}")
        k.e(f"v_and_b32 v{vD+1}, 15, v0")
        k.e(f"v_add3_u32 v{vA}, v{vA}, v{vD}, v{vD+1}")
        k.e(f"v_lshlrev_b32 v{vA}, 3, v{vA}")
        k.e(f"s_mov_b32 s62, {hex(WS_FT)}")
    poll(k, tag, vA, vD, "s62", sleep=32)

def phase2(k, p3_preload, after_helper):
    k.phase("p2")
    k.use_lds(STG + 32768)
    PST = STG + 8192
    vl = k.v(); vt0 = k.v(); vt1 = k.v(); vL16 = k.v(); vK = k.v(); vV = k.v(); vSrc = k.v(); vDst = k.v()
    vIdx = k.v(); vCs = k.v(); vt2 = k.v(); vt3 = k.v()
    vP = k.v(2)
    Q = k.v(4); KA = k.v(4); KB = k.v(4)
    VA = [k.v(4), k.v(4)]; VB = [k.v(4), k.v(4)]
    NM = k.v(16); SA = k.v(16); SB = k.v(16); O = k.v(16)
    PR = [NM + 4*i for i in range(4)]
    nv_save = k.nv
    k.e(f"v_lshlrev_b32 v{vL16}, 4, v0")
    tile_map_row(k)
    k.e("s_cmp_ge_u32 s24, 4")
    k.e(f"s_cbranch_scc1 {k.L('comp')}")
    def prepA(r, dma=True, slot4=False):
        k.e(f"v_lshrrev_b32 v{vt1}, 5, v0")
        k.e("s_mov_b32 s27, s46")
        k.e(f"v_and_b32 v{vt0}, 31, v0")
        k.e("s_cmp_lt_u32 s27, 704")
        k.e(f"s_cbranch_scc0 {k.L('prepB' + r)}")
        k.e("s_cmp_ge_u32 s27, 352")
        k.e("s_cselect_b32 s47, 256, 0")
        k.e(f"s_cselect_b64 s[16:17], s[{S_WU}:{S_WU+1}], s[{S_WG}:{S_WG+1}]")
        k.e("s_cselect_b32 s28, 352, 0")
        k.e("s_sub_u32 s27, s27, s28")
        k.e("s_and_b32 s34, s27, 15")
        k.e("s_lshr_b32 s32, s27, 4")
        k.e(f"s_mov_b32 s18, {512*2752}")
        k.e("s_mov_b32 s33, 2752")
        for p in range(2):
            k.e("s_lshl_b32 s27, s32, 1")
            if p: k.e("s_add_u32 s27, s27, 1")
            k.e("s_mul_i32 s28, s27, 43691")
            k.e("s_lshr_b32 s28, s28, 17")
            k.e("s_mul_i32 s35, s28, 186")
            k.e("s_lshl_b32 s28, s27, 1")
            k.e("s_add_u32 s35, s35, s28")
            k.e("s_mul_i32 s28, s34, 12")
            k.e("s_add_u32 s35, s35, s28")
            k.e("s_lshl_b32 s35, s35, 10")
            k.e(f"s_add_u32 s{36+p}, s35, {hex(WS_WGU)}")
        k.e("s_cmp_eq_u32 s32, 21")
        k.e(f"s_cselect_b32 s37, {hex(OOB)}, s37")
        k.e("s_mov_b32 s38, 6144")
        k.e(f"v_lshrrev_b32 v{vt2}, 4, v{vt0}")
        k.e(f"v_and_b32 v{vt3}, 15, v0")
        k.e(f"v_lshlrev_b32 v{vt3}, 4, v{vt3}")
        k.e(f"v_add_u32 v{vt3}, s47, v{vt3}")
        k.e(f"v_lshl_add_u32 v{vDst}, v{vt2}, 10, v{vt3}")
        k.e(f"v_lshl_add_u32 v{vDst}, v{vt1}, 9, v{vDst}")
        k.e("s_lshl_b32 s39, s46, 8")
        k.e(f"s_add_u32 s39, s39, {hex(WS_CS)}")
        k.e(f"s_branch {k.L('prepC' + r)}")
        k.label("prepB" + r)
        k.e("s_cmp_lt_u32 s27, 1048")
        k.e(f"s_cselect_b64 s[16:17], s[{S_WD}:{S_WD+1}], s[{S_WO}:{S_WO+1}]")
        k.e(f"s_mov_b32 s18, {512*1024}")
        k.e(f"s_cselect_b32 s18, {1376*1024}, s18")
        k.e("s_cselect_b32 s35, 86, 32")
        k.e("s_movk_i32 s28, 1048")
        k.e("s_cselect_b32 s28, 704, s28")
        k.e(f"s_mov_b32 s36, {hex(WS_WO)}")
        k.e(f"s_cselect_b32 s36, {hex(WS_WD)}, s36")
        k.e("s_sub_u32 s27, s27, s28")
        k.e("s_and_b32 s32, s27, 7")
        k.e("s_lshr_b32 s34, s27, 3")
        k.e("s_mov_b32 s33, 1024")
        k.e("s_mul_i32 s27, s32, s35")
        k.e("s_lshl_b32 s28, s34, 1")
        k.e("s_add_u32 s27, s27, s28")
        k.e("s_lshl_b32 s27, s27, 11")
        k.e("s_add_u32 s36, s36, s27")
        k.e("s_add_u32 s37, s36, 1024")
        k.e("s_mov_b32 s38, 2048")
        k.e(f"v_mov_b32 v{vDst}, v{vL16}")
        k.e(f"s_mov_b32 s39, {hex(OOB)}")
        k.label("prepC" + r)
        k.e("s_mov_b32 s19, 0x00020000")
        k.e(f"v_lshlrev_b32 v{vCs}, 2, v0")
        k.e(f"v_lshrrev_b32 v{vt2}, 3, v0")
        k.e(f"v_mul_u32_u24 v{vSrc}, s33, v{vt2}")
        k.e(f"v_lshrrev_b32 v{vt2}, 2, v0")
        k.e(f"v_and_b32 v{vt2}, 4, v{vt2}")
        k.e(f"v_xor_b32 v{vt2}, v{vt2}, v0")
        k.e(f"v_and_b32 v{vt2}, 7, v{vt2}")
        k.e(f"v_lshl_add_u32 v{vSrc}, v{vt2}, 4, v{vSrc}")
        k.e("s_lshl_b32 s27, s34, 5")
        k.e("s_mul_i32 s27, s27, s33")
        k.e("s_lshl_b32 s28, s32, 7")
        k.e("s_add_u32 s27, s27, s28")
        k.e("s_lshl_b32 s33, s33, 3")
        k.e("s_lshl_b32 s28, s24, 12")
        k.e(f"s_add_u32 s28, s28, {PST + (4096 if slot4 else 0)}")
        for rb in range(4 if dma else 0):
            k.e(f"s_add_u32 m0, s28, {rb*1024}")
            k.e("s_nop 0")
            k.e(f"buffer_load_dwordx4 v{vSrc}, s[16:19], s27 offen lds")
            k.e("s_add_u32 s27, s27, s33")
        k.e(f"v_and_b32 v{vt2}, 3, v0")
        k.e(f"v_lshlrev_b32 v{vSrc}, 3, v{vt2}")
        k.e(f"v_lshl_add_u32 v{vSrc}, v{vt1}, 9, v{vSrc}")
        k.e(f"v_bfe_u32 v{vt2}, v0, 2, 2")
        k.e(f"v_lshl_add_u32 v{vSrc}, v{vt2}, 7, v{vSrc}")
        k.e(f"v_bfe_u32 v{vt2}, v0, 3, 1")
        k.e(f"v_lshl_add_u32 v{vSrc}, v{vt2}, 6, v{vSrc}")
        k.e(f"v_bfe_u32 v{vt2}, v0, 4, 1")
        k.e(f"v_lshl_add_u32 v{vSrc}, v{vt2}, 5, v{vSrc}")
        k.e(f"v_add_u32 v{vSrc}, s28, v{vSrc}")
    def prepB():
        k.e(f"v_xor_b32 v{vt2}, 64, v{vSrc}")
        k.e(f"v_mov_b32 v{vt0}, 0")
        k.e(f"v_mov_b32 v{vt3}, 0")
        k.e("s_mov_b32 s27, 0x3f803f80")
        k.e("s_waitcnt vmcnt(0)")
        for ksl in range(2):
            for p in range(2):
                r = PR[ksl*2+p]
                a = vSrc if p == 0 else vt2
                k.e(f"ds_read_b64_tr_b16 {vr(r,2)}, v{a} offset:{ksl*2048}")
                k.e(f"ds_read_b64_tr_b16 {vr(r+2,2)}, v{a} offset:{ksl*2048+1024}")
        k.e("s_waitcnt lgkmcnt(0)")
        for ksl in range(2):
            for p in range(2):
                r = PR[ksl*2+p]
                k.e(f"buffer_store_dwordx4 {vr(r,4)}, v{vDst}, s[20:23], s{36+p} offen sc1")
                if ksl == 0:
                    k.e(f"s_add_u32 s{36+p}, s{36+p}, s38")
                for i in range(4):
                    k.e(f"v_dot2c_f32_bf16 v{vt0 if p == 0 else vt3}, s27, v{r+i}")
        k.e("s_nop 2")
        k.e(f"v_permlane32_swap_b32 v{vt0}, v{vt3}")
        k.e(f"v_add_f32 v{vt0}, v{vt0}, v{vt3}")
        k.e(f"buffer_store_dword v{vt0}, v{vCs}, s[20:23], s39 offen sc1")
        if FUSED:
            k.e("s_lshl_b32 s27, s46, 3")
            k.e(f"s_add_u32 s27, s27, {hex(WS_FT)}")
            k.e(f"v_mov_b32 v{vP}, s{S_NONCE}")
            k.e(f"v_mov_b32 v{vP+1}, s{S_NONCE+1}")
            k.e(f"v_mov_b32 v{vt2}, 0")
            k.e("s_mov_b64 exec, 1")
            k.e("s_waitcnt vmcnt(0)")
            k.e(f"buffer_store_dwordx2 {vr(vP,2)}, v{vt2}, s[20:23], s27 offen sc1")
            k.e("s_mov_b64 exec, -1")
    k.e("s_setprio 3")
    k.e("s_sub_u32 s46, 3, s24")
    k.e("s_lshl_b32 s46, s46, 8")
    k.e("s_add_u32 s46, s46, s2")
    k.e("s_lshl_b32 s27, s25, 6")
    k.e("s_lshl_b32 s28, s26, 3")
    k.e("s_add_u32 s27, s27, s28")
    k.e("s_lshl_b32 s28, s27, 10")
    k.e("s_lshl_b32 s30, s24, 11")
    k.e("s_add_u32 s28, s28, s30")
    k.e(f"s_add_u32 s31, s30, {STG}")
    k.e("s_lshl_b32 s29, s25, 17")
    k.e(f"s_add_u32 s29, s29, {hex(WS_KV)}")
    k.e("s_lshl_b32 s30, s24, 12")
    k.e("s_add_u32 s29, s29, s30")
    mbox_own(k, 0, vK, 32)
    args_ready(k)
    if FUSED:
        k.bar(2)
    q = VQ(k)
    def chunk(c):
        k.e(f"s_add_u32 m0, s30, {c*16384}")
        k.e(f"s_add_u32 s27, s29, {c*16384}")
        for g in range(4):
            k.e(f"buffer_load_dwordx4 v{vL16}, s[20:23], s27 offen offset:{g*1024}{SC} lds")
        q.add(c, 4)
    k.e("s_mov_b32 m0, s31")
    k.e("s_nop 0")
    k.e(f"buffer_load_dwordx4 v{vL16}, s[20:23], s28 offen{SC} lds")
    k.e(f"buffer_load_dwordx4 v{vL16}, s[20:23], s28 offen offset:1024{SC} lds")
    q.add(0, 2)
    chunk(0); chunk(1)
    q.wait(lambda t: t <= 0); k.bar()
    k.stamp(22)
    poll(k, "kv2", vK, vP, "s32", sleep=2, atomic=True)
    for c in range(2, 6): chunk(c)
    q.wait(lambda t: t <= 1); k.bar()
    chunk(6); chunk(7)
    k.e("s_cmp_lt_u32 s46, 152")
    k.e(f"s_cbranch_scc0 {k.L('one')}")
    k.e("s_add_u32 s46, s46, 1024")
    prepA("2", slot4=True)
    k.e("s_sub_u32 s46, s46, 1024")
    k.label("one")
    prepA("0")
    k.e("s_waitcnt vmcnt(8)")
    k.e("s_cmp_lt_u32 s46, 152")
    k.e(f"s_cbranch_scc1 {k.L('two')}")
    k.e("s_waitcnt vmcnt(4)")
    k.label("two")
    k.bar()
    k.stamp(23)
    prepB()
    k.e("s_add_u32 s46, s46, 1024")
    k.e("s_cmp_lt_u32 s46, 1176")
    k.e(f"s_cbranch_scc0 {k.L('notask')}")
    prepA("1", dma=False, slot4=True)
    prepB()
    k.label("notask")
    k.stamp(24)
    def l2_warm():
        if not PREFETCH: return
        k.e("s_lshr_b32 s27, s2, 3")
        k.e("s_lshl_b32 s27, s27, 2")
        k.e("s_add_u32 s27, s27, s24")
        k.e("s_and_b32 s28, s2, 1")
        lst = [(WS_WO, 0, 4096, 0, 32), (WS_WGU, 8*32*6144, 12288, 0, 64), (WS_WGU, 8*32*6144, 12288, 8192, 32)]
        if FUSED:
            lst = []
            k.e("s_lshl_b32 s32, s28, 3")
            k.e("s_lshr_b32 s33, s27, 4")
            k.e("s_add_u32 s32, s32, s33")
            k.e(f"s_mul_i32 s32, s32, {32*6144}")
            k.e("s_and_b32 s33, s27, 15")
            k.e("s_lshl_b32 s33, s33, 13")
            k.e("s_add_u32 s32, s32, s33")
            k.e(f"s_add_u32 s32, s32, {hex(WS_WGU + 16*12288 - 16*8192)}")
            k.e(f"v_lshlrev_b32 v{vt3}, 7, v0")
            k.e(f"buffer_load_dword v163, v{vt3}, s[20:23], s32 offen{SC}")
        if PREFETCH > 1:
            lst += [(WS_WD, 0, 11008, 0, 64), (WS_WD, 0, 11008, 8192, 22)]
        for n, (base, half, per, off, nl) in enumerate(lst):
            k.e(f"s_mul_i32 s32, s28, {half}")
            k.e(f"s_mul_i32 s33, s27, {per}")
            k.e("s_add_u32 s32, s32, s33")
            k.e(f"s_add_u32 s32, s32, {hex(base + off)}")
            k.e(f"v_min_u32 v{vt3}, {nl-1}, v0")
            k.e(f"v_lshlrev_b32 v{vt3}, 7, v{vt3}")
            k.e(f"buffer_load_dword v{160+n}, v{vt3}, s[20:23], s32 offen{SC}")
    if FUSED:
        k.e("s_and_b32 s26, s2, 1")
        k.e("s_lshl_b32 s26, s26, 3")
        k.e("s_lshr_b32 s28, s2, 5")
        k.e("s_add_u32 s26, s26, s28")
        ft_poll(k, "ftg", vt0, vP, "g")
        k.e("s_min_u32 s27, s24, 2")
        cs_issue(k, 26, 27, vt0, vt1, SA)
        tile_map_row(k)
        ft_poll(k, "ftd", vt0, vP, "d")
        ft_poll(k, "fto", vt0, vP, "o")
        cs_reduce(k, SA, V_AP, vt0)
        k.e("s_setprio 0")
        p3_preload(l2_warm)
    else:
        k.bar()
        l2_warm()
    after_helper()
    k.phase("p2"); k.nv = nv_save
    k.label("comp")
    if FUSED:
        k.e("s_lshl_b32 s33, s26, 3")
        k.e("s_lshl_b64 s[34:35], 0xff, s33")
        k.e("s_or_b32 s34, s34, 0xffff")
    k.e("s_sub_u32 s46, s24, 4")
    k.e("s_lshl_b32 s26, s26, 3")
    k.e("s_add_u32 s26, s26, s46")
    k.e(f"v_lshrrev_b32 v{vt1}, 5, v0")
    k.e(f"v_mov_b32 v{vK}, v{vL16}")
    k.e(f"v_lshlrev_b32 v{vV}, 8, v{vt1}")
    k.e(f"v_and_b32 v{vt0}, 15, v0")
    k.e(f"v_lshl_add_u32 v{vV}, v{vt0}, 4, v{vV}")
    k.e(f"v_mov_b32 v{vt0}, 0x3f803f80")
    k.e(f"v_and_b32 v{vt2}, 11, v0")
    k.e(f"v_cmp_eq_u32 vcc, 0, v{vt2}")
    k.e("s_lshl_b32 s27, s46, 10")
    k.e(f"s_add_u32 s27, s27, {STG}")
    k.e(f"v_cndmask_b32 v{vt0}, 0, v{vt0}, vcc")
    k.e(f"v_add_u32 v{vt2}, s27, v{vL16}")
    for r in VA + VB:
        for i in range(4):
            k.e(f"v_mov_b32 v{r+i}, v{vt0}")
    k.e(f"v_mov_b32 v{vIdx}, 0xdddddddd")
    k.e("s_mov_b32 s42, 0x0000ffff")
    k.e("s_mov_b32 s43, 0x0000ffff")
    k.e(f"s_mov_b32 s44, {3 if FUSED else 0x13}")
    k.e("s_lshr_b32 s27, s26, 1")
    k.e("s_lshl_b32 s27, s27, 5")
    k.e("s_add_u32 s27, s27, s25")
    k.e("s_lshl_b32 s27, s27, 1")
    k.e("s_and_b32 s28, s26, 1")
    k.e("s_add_u32 s27, s27, s28")
    k.e("s_lshl_b32 s27, s27, 10")
    k.e(f"s_add_u32 s47, s27, {hex(WS_O)}")
    k.e("s_lshr_b32 s27, s26, 1")
    k.e("s_lshl_b32 s29, s25, 1")
    k.e("s_add_u32 s28, s28, s29")
    mbox_g64(k, vDst, vt3, 27, 28)
    args_ready(k)
    if FUSED:
        k.e("s_cmp_lt_u32 s24, 8")
        k.e(f"s_cbranch_scc1 {k.L('nop_kv')}")
        poll0(k, 0, "kv", vCs, vP, 20, mask="s[34:35]")
    k.bar()
    k.e(f"ds_read_b128 {vr(Q,4)}, v{vt2}")
    k.e(f"ds_read_b128 {vr(KA,4)}, v{vK}")
    k.e("s_waitcnt lgkmcnt(0)")
    k.e(mfma32(SA, KA, Q, "0"))
    k.e("s_nop 7")
    k.e("s_nop 3")
    k.e(f"v_max3_f32 v{vt0}, v{SA}, v{SA+1}, v{SA+2}")
    for i in range(3, 15, 2):
        k.e(f"v_max3_f32 v{vt0}, v{vt0}, v{SA+i}, v{SA+i+1}")
    k.e(f"v_max_f32 v{vt0}, v{vt0}, v{SA+15}")
    k.label("setm")
    k.e(f"ds_read_b128 {vr(KB,4)}, v{vK} offset:2048")
    k.e("s_mov_b64 exec, s[42:43]")
    k.e(f"ds_read_b128 {vr(VA[0],4)}, v{vV} offset:1024")
    k.e(f"ds_read_b128 {vr(VA[1],4)}, v{vV} offset:1536")
    k.e("s_mov_b64 exec, -1")
    k.e(f"v_mov_b32 v{vt1}, v{vt0}")
    k.e("s_nop 1")
    k.e(f"v_permlane32_swap_b32 v{vt0}, v{vt1}")
    k.e(f"v_max_f32 v{vt0}, v{vt0}, v{vt1}")
    for i in range(16):
        k.e(f"v_sub_f32 v{NM+i}, 0, v{vt0}")
    k.e("s_nop 1")
    k.e(mfma32(SA, KA, Q, NM))
    for i in range(16):
        k.e(f"v_mov_b32 v{O+i}, 0")
    for i in range(8, 16):
        k.e(f"v_mov_b32 v{SB+i}, 0")
    k.e("s_mov_b32 s41, 0")
    k.stamp(22); k.stamp_rt(25)
    def smf(a, b):
        k.e(f"v_smfmac_f32_32x32x32_bf16 {vr(O,16)}, {vr(a,4)}, {vr(b,8)}, v{vIdx}")
    k.label("loop")
    for t in range(8):
        half = t & 1
        S, Sn = (SA, SB) if half == 0 else (SB, SA)
        Kn, Knn = (KB, KA) if half == 0 else (KA, KB)
        Vc, Vp = (VA, VB) if half == 0 else (VB, VA)
        base = t * 2048
        if half == 0:
            k.e(f"s_setprio {3 - t//2}")
        if t == 6:
            k.e("s_bitcmp1_b32 s44, s41")
            k.e(f"s_cbranch_scc0 {k.L('nobar')}")
            k.bar()
            k.label("nobar")
        for i in range(0, 3):
            k.e(f"v_exp_f32 v{S+i}, v{S+i}")
        smf(Vp[1], Sn + 8)
        for i in range(3, 8):
            k.e(f"v_exp_f32 v{S+i}, v{S+i}")
        k.e("s_waitcnt lgkmcnt(2)")
        k.e(mfma32(Sn, Kn, Q, NM))
        k.e(f"ds_read_b128 {vr(Knn,4)}, v{vK} offset:{base+4096}")
        for i in range(8, 13):
            k.e(f"v_exp_f32 v{S+i}, v{S+i}")
        k.e("s_waitcnt lgkmcnt(1)")
        smf(Vc[0], S)
        k.e("s_mov_b64 exec, s[42:43]")
        k.e(f"ds_read_b128 {vr(Vp[0],4)}, v{vV} offset:{base+2048+1024}")
        k.e(f"ds_read_b128 {vr(Vp[1],4)}, v{vV} offset:{base+2048+1536}")
        k.e("s_mov_b64 exec, -1")
        if t == 7:
            k.e(f"v_add_u32 v{vK}, 0x4000, v{vK}")
            k.e(f"v_add_u32 v{vV}, 0x4000, v{vV}")
            k.e("s_add_u32 s41, s41, 1")
            k.e("s_cmp_lt_u32 s41, 8")
        for i in range(13, 16):
            k.e(f"v_exp_f32 v{S+i}, v{S+i}")
    k.e(f"s_cbranch_scc1 {k.L('loop')}")
    k.e("s_nop 0")
    smf(VB[1], SB + 8)
    k.stamp(23); k.stamp_rt(26)
    k.e("s_waitcnt lgkmcnt(0)")
    k.e(f"v_mov_b32 v{vt1}, {f32(2.0**60)}")
    k.e("s_nop 7")
    k.e("s_nop 1")
    k.e(f"v_cmp_nlt_f32 vcc, v{O+8}, v{vt1}")
    k.e(f"v_rcp_f32 v{vt0}, v{O+8}")
    k.e(f"s_cbranch_vccz {k.L('fin')}")
    k.e("s_cmp_eq_u32 s44, 0")
    k.e(f"s_cbranch_scc1 {k.L('fin')}")
    k.e("s_mov_b32 s44, 0")
    k.e(f"v_mov_b32 v{vK}, v{vL16}")
    k.e(f"v_subrev_u32 v{vV}, 0x20000, v{vV}")
    k.e(f"v_mov_b32 v{vt0}, 0xff800000")
    k.e("s_mov_b32 s41, 0")
    k.label("fbloop")
    k.e(f"ds_read_b128 {vr(KA,4)}, v{vK}")
    k.e(f"v_add_u32 v{vK}, 2048, v{vK}")
    k.e("s_waitcnt lgkmcnt(0)")
    k.e(mfma32(SA, KA, Q, "0"))
    k.e("s_add_u32 s41, s41, 1")
    k.e("s_cmp_lt_u32 s41, 64")
    k.e("s_nop 7")
    k.e("s_nop 3")
    for i in range(0, 16, 2):
        k.e(f"v_max3_f32 v{vt0}, v{vt0}, v{SA+i}, v{SA+i+1}")
    k.e(f"s_cbranch_scc1 {k.L('fbloop')}")
    k.e(f"v_mov_b32 v{vK}, v{vL16}")
    k.e(f"ds_read_b128 {vr(KA,4)}, v{vK}")
    k.e("s_waitcnt lgkmcnt(0)")
    k.e(f"s_branch {k.L('setm')}")
    k.label("fin")
    for i in range(8):
        k.e(f"v_mul_f32 v{O+i}, v{vt0}, v{O+i}")
    for i in range(4):
        k.e(f"v_cvt_pk_bf16_f32 v{O+i}, v{O+2*i}, v{O+2*i+1}")
    k.e(f"buffer_store_dwordx4 {vr(O,4)}, v{vL16}, s[20:23], s47 offen{SC}")
    if FUSED:
        k.bar()
    publish(k, 1, vDst, 8, vP)
    k.stamp(24)
    if FUSED:
        k.bar()
    k.label("done")
    k.first = False
```

```python
from base import *
class G64Stream:
    def __init__(self, k, mode, sd, q):
        self.k, self.mode, self.sd, self.q = k, mode, sd, q
        self.nks, self.nst, self.split = (32, 8, 4) if mode == "wo" else (86, 22, 12)
        self.slots = {("wo", "w"): P3_W, ("wo", "a"): P3_A, ("dn", "w"): P5_W, ("dn", "a"): P5_A}[(mode, sd)]
        self.nxt = 0
        self.ph = 3 if mode == "wo" else 5
    def setup(self):
        k = self.k
        off = {("wo", "w"): WS_WO, ("wo", "a"): WS_O, ("dn", "w"): WS_WD, ("dn", "a"): WS_A}[(self.mode, self.sd)]
        if self.sd == "w":
            k.e("s_lshr_b32 s54, s2, 5")
        else:
            k.e("s_and_b32 s54, s2, 7")
            k.e("s_lshl_b32 s54, s54, 2")
            k.e("s_bfe_u32 s55, s2, 0x20003")
            k.e("s_add_u32 s54, s54, s55")
        k.e(f"s_mul_i32 s54, s54, {self.nks*2048}")
        k.e(f"s_add_u32 s54, s54, {hex(off)}")
        k.e("s_and_b32 s52, s24, 1")
        k.e("s_lshl_b32 s52, s52, 12")
        k.e("s_mov_b32 s53, s52")
        k.e(f"s_mov_b32 s18, {self.nks*2048}")
        k.e("s_mov_b32 s19, 0x00020000")
        args_ready(k)
        k.e(f"s_add_u32 s16, s{S_WS}, s54")
        k.e(f"s_addc_u32 s17, s{S_WS+1}, 0")
    def issue(self, n=1):
        k = self.k
        for _ in range(n):
            s = self.nxt
            assert s < self.nst
            k.e(f"s_add_u32 m0, s52, {self.slots[s % len(self.slots)]}")
            if s == 0:
                k.e("s_nop 0")
            else:
                k.e("s_add_u32 s53, s53, 8192")
            for g in range(4):
                k.e(f"buffer_load_dwordx4 v3, s[16:19], s53 offen offset:{g*1024}{SC} lds")
            self.q.add((self.ph, s), 4)
            self.nxt += 1
    def wait(self, s):
        self.q.wait(lambda t: t <= (self.ph, s))

class P4Stream:
    def __init__(self, k, sd, q):
        self.k, self.sd, self.q = k, sd, q
        self.slots = P4_W if sd == "w" else P4_X
        self.stride = 12288 if sd == "w" else 8192
        self.nxt = 0
    def setup(self):
        k = self.k
        k.e("s_and_b32 s48, s24, 1")
        k.e(f"s_mul_i32 s48, s48, {self.stride//2}")
        if self.sd == "w":
            k.e("s_and_b32 s49, s2, 1")
            k.e("s_lshl_b32 s49, s49, 3")
            k.e("s_lshr_b32 s51, s2, 5")
            k.e("s_add_u32 s49, s49, s51")
            k.e(f"s_mul_i32 s49, s49, {32*6144}")
            k.e(f"s_add_u32 s49, s49, {hex(WS_WGU)}")
        else:
            k.e("s_and_b32 s49, s2, 6")
            k.e("s_lshl_b32 s49, s49, 1")
            k.e("s_bfe_u32 s51, s2, 0x20003")
            k.e("s_add_u32 s49, s49, s51")
            k.e("s_lshl_b32 s49, s49, 17")
            k.e(f"s_add_u32 s49, s49, {hex(WS_H)}")
        k.e("s_add_u32 s49, s49, s48")
        k.e("s_mov_b32 s50, s49")
        args_ready(k)
    def issue(self, n=1):
        k = self.k
        for _ in range(n):
            h = self.nxt
            assert h < 16
            k.e(f"s_add_u32 m0, s48, {self.slots[h % len(self.slots)]}")
            if h:
                k.e(f"s_add_u32 s50, s50, {self.stride}")
            else:
                k.e("s_nop 0")
            n_i = self.stride // 2048
            for g in range(n_i):
                if g == 4:
                    k.e("s_add_u32 m0, m0, 4096")
                    k.e("s_add_u32 s51, s50, 4096")
                k.e(f"buffer_load_dwordx4 v3, s[20:23], s{50 if g < 4 else 51} offen offset:{(g%4)*1024}{SC} lds")
            self.q.add((4, h), n_i)
            self.nxt += 1
    def wait(self, h):
        self.q.wait(lambda t: t <= (4, h))

class Ctx:
    def __init__(self, k):
        self.q = VQ(k)
        self.w3 = G64Stream(k, "wo", "w", self.q)
        self.w4 = P4Stream(k, "w", self.q)
        self.w5 = G64Stream(k, "dn", "w", self.q)
```

```python
from base import *
from streams import *
G_DA = opt("G_DA", 5)
TICK4 = opt("TICK4", 0); TICK5 = opt("TICK5", 0)
W4_SPLIT = opt("W4_SPLIT", 2); NREG = opt("NREG", 6)
LEAD = opt("P4_LEAD", 6)
CAP = [int(c) for c in os.environ.get("P4_CAP", "112")]
RW3, RX, RW4 = 24, 56, 64
BARS4 = [0, 1] + list(range(3, 16, 2))
MISC = P4_MISC; MISC2 = MISC + 2048
vt0, vt1, vL16, vP = 1, 2, 3, 4

def lds_put(k, va, sbase, dst, regs):
    cur = None
    for d, r in zip(dst, regs):
        w = d & ~0xffff
        if w != cur:
            k.e(f"s_add_u32 s62, s{sbase}, {hex(w)}")
            k.e(f"v_add_u32 v{va}, s62, v3")
            cur = w
        k.e(f"ds_write_b128 v{va}, {vr(r,4)} offset:{d & 0xffff}")

def grp_regs(k):
    k.e("s_and_b32 s47, s2, 1")
    k.e("s_lshl_b32 s47, s47, 3")
    k.e("s_lshr_b32 s62, s2, 5")
    k.e("s_add_u32 s47, s47, s62")

def p3_preload(k, ctx, l2_warm):
    k.e("s_cmp_lt_u32 s24, 2")
    k.e(f"s_cbranch_scc1 {k.L('pre01')}")
    ctx.w3.setup()
    ctx.w3.issue(4)
    k.label("pre01")
    ctx.w4.setup()
    k.e("s_lshl_b32 s57, s24, 11")
    k.e("s_lshl_b32 s58, s26, 16")
    k.e("s_add_u32 s58, s58, s57")
    k.e(f"s_add_u32 s58, s58, {hex(WS_WO + 4*8192)}")
    for s in range(4):
        for g in range(2):
            k.e(f"buffer_load_dwordx4 {vr(RW3+8*s+4*g,4)}, v3, s[20:23], s58 offen offset:{g*1024} sc1")
        k.e("s_add_u32 s58, s58, 8192")
    k.e("v_lshrrev_b32 v1, 3, v0")
    k.e("v_xor_b32 v2, v1, v0")
    k.e("v_and_b32 v2, 7, v2")
    k.e("v_lshlrev_b32 v1, 10, v1")
    k.e("v_lshl_add_u32 v1, v2, 4, v1")
    k.e("s_lshl_b32 s56, s25, 16")
    k.e("s_lshl_b32 s58, s24, 14")
    k.e("s_add_u32 s56, s56, s58")
    k.e("s_lshl_b32 s58, s26, 7")
    k.e("s_add_u32 s56, s56, s58")
    srd(k, 12, S_X, 2048 * 1024)
    k.e("s_add_u32 s58, s56, 8192")
    k.e(f"buffer_load_dwordx4 {vr(RX,4)}, v1, s[12:15], s56 offen")
    k.e(f"buffer_load_dwordx4 {vr(RX+4,4)}, v1, s[12:15], s58 offen")
    k.e("s_mul_i32 s59, s24, 3072")
    k.e("s_sub_u32 s58, s49, s48")
    k.e("s_add_u32 s58, s58, s59")
    for h in range(NREG):
        for g in range(3):
            k.e(f"buffer_load_dwordx4 {vr(RW4+12*h+4*g,4)}, v3, s[20:23], s58 offen offset:{g*1024} sc1")
        k.e("s_add_u32 s58, s58, 12288")
    k.e(f"s_add_u32 s50, s50, {(NREG-1)*12288}")
    ctx.w4.nxt = NREG
    k.e("s_waitcnt vmcnt(0)")
    ctx.q.drain()
    l2_warm()
    grp_regs(k)
    k.e("s_min_u32 s46, s24, 2")
    k.e("s_lshl_b32 s46, s46, 8")
    k.e(f"s_add_u32 s46, s46, {MISC2}")
    k.e("v_lshl_add_u32 v21, v0, 2, s46")
    k.stamp(27)

def w3_put(k):
    k.bar()
    k.stamp(28)
    lds_put(k, 2, 57, [P3_W[4+s] + g*1024 for s in range(4) for g in range(2)] + [P3_RES, P3_RES + 1024],
            [RW3 + 4*i for i in range(8)] + [RX, RX + 4])

def w4_put(k, lo, hi):
    order = sorted(range(lo, hi), key=lambda h: P4_W[h])
    lds_put(k, 1, 59, [P4_W[h] + g*1024 for h in order for g in range(3)], [RW4 + 12*h + 4*g for h in order for g in range(3)])

def p4_loader(k, S, D0, sb, extra=None):
    k.bar()
    w4_put(k, 0, W4_SPLIT)
    k.bar()
    w4_put(k, W4_SPLIT, NREG)
    k.e(f"ds_write_b32 v21, v{V_AP}")
    k.e("s_waitcnt lgkmcnt(0)")
    k.bar()
    N = len(S.slots)
    if S.nxt < D0: S.issue(D0 - S.nxt)
    for bi, last in enumerate(BARS4):
        assert S.nxt > last
        S.wait(last)
        if TICK4: k.stamp(1 + bi)
        k.bar()
        if TICK4: k.stamp(10 + bi)
        if sb and bi in (0, len(BARS4) - 1): k.stamp(sb + (bi > 0))
        free = BARS4[bi - 1] if bi >= 1 else -1
        lim = min(15, free + N, last + LEAD)
        if bi < len(CAP): lim = min(lim, S.nxt - 1 + CAP[bi])
        if S.nxt <= lim: S.issue(lim + 1 - S.nxt)
        if extra: extra(bi)
    assert S.nxt == 16
    k.bar()

def role_A(k, ctx):
    k.phase("ra")
    q = VQ(k)
    A3 = G64Stream(k, "wo", "a", q); X = P4Stream(k, "x", q); A5 = G64Stream(k, "dn", "a", q)
    A3.setup(); X.setup()
    w3_put(k)
    poll0(k, 1, "act", vt0, vP, 30, wave=0)
    k.e("s_waitcnt lgkmcnt(0)")
    A3.issue(G_DA)
    for s in range(8):
        A3.wait(s); k.bar()
        if s in (0, 7): k.stamp(32 + (s > 0))
        if A3.nxt < 8: A3.issue()
        if s == 4: A5.setup()
    k.e("s_cmp_ge_u32 s47, 15")
    k.e(f"s_cbranch_scc1 {k.L('empty')}")
    p4_loader(k, X, 4, 42)
    k.label("p5")
    k.bar(2)
    A5.issue(min(G_DA, len(A5.slots) - 2))
    for s in range(22):
        A5.wait(s)
        if TICK5 and s < 19: k.stamp(1 + s)
        k.bar()
        if TICK5 and s < 19: k.stamp(30 + s)
        if s in (0, 21): k.stamp(52 + (s > 0))
        if A5.nxt < 22: A5.issue()
    k.e(f"s_branch {k.name}_fin")
    k.label("empty")
    k.bar(2)
    k.e(f"s_branch {k.L('p5')}")

def role_W(k, ctx):
    k.phase("rw")
    ctx.w5.setup()
    w3_put(k)
    k.bar(2)
    k.e("s_waitcnt lgkmcnt(0)")
    k.bar(8)
    k.e("s_cmp_ge_u32 s47, 15")
    k.e(f"s_cbranch_scc1 {k.L('empty')}")
    def pre5(bi):
        n = {5: 1, 6: 3, 7: 5, 8: 3}.get(bi, 0)
        if n: ctx.w5.issue(n)
    p4_loader(k, ctx.w4, 3, 0, pre5)
    k.label("p5")
    W = ctx.w5; NW = len(W.slots)
    k.bar(2)
    for s in range(22):
        assert W.nxt > s
        W.wait(s); k.bar()
        if W.nxt < 22 and W.nxt <= s - 2 + NW: W.issue()
    k.e(f"s_branch {k.name}_fin")
    k.label("empty")
    k.bar(2)
    G64Stream(k, "dn", "w", VQ(k)).issue(12)
    k.e(f"s_branch {k.L('p5')}")

def role_S(k):
    k.phase("rs")
    vX, vC = 6, 7
    XS = [8 + 4*i for i in range(4)]; tl = [24 + i for i in range(4)]
    vSum, vSq, vSum2, vSq2 = 28, 29, 30, 31
    C = 32; t2 = 36; RS = 37
    grp_regs(k)
    k.e("s_and_b32 s29, s24, 3")
    k.e("s_lshl_b32 s27, s29, 10")
    k.e(f"v_add_u32 v{vX}, s27, v{vL16}")
    for z in (vSum, vSq, vSum2, vSq2):
        k.e(f"v_mov_b32 v{z}, 0")
    k.e("s_mov_b32 s41, 0xffff0000")
    k.e("s_mov_b32 s40, 0")
    k.e("s_mov_b32 s39, 0")
    k.e("s_mov_b32 s37, 0x4000")
    k.e(f"v_and_b32 v{vC}, 0x1ff, v{vL16}")
    k.e("s_lshl_b32 s27, s29, 9")
    k.e(f"s_add_u32 s27, s27, {MISC}")
    k.e(f"v_add_u32 v{vC}, s27, v{vC}")
    k.e("s_setprio 3")
    k.bar(3)
    k.e("s_lshl_b32 s27, s2, 4")
    k.e("s_add_u32 s27, s27, s24")
    k.e("s_cmp_lg_u32 s27, 9")
    k.e(f"s_cbranch_scc1 {k.L('norst')}")
    srd(k, 12, S_DBG, 256)
    k.e(f"buffer_store_dwordx2 {vr(vSum,2)}, v{vSum}, s[12:15], 0 offen sc1")
    k.label("norst")
    k.bar(7)
    k.e("s_cmp_ge_u32 s47, 15")
    k.e(f"s_cbranch_scc1 {k.L('empty')}")
    poll0(k, 2, "h", vt0, vP, 40)
    def proc(X):
        for i in range(4):
            a, b = tl[(2*i) % 4], tl[(2*i+1) % 4]
            x = X + i
            for ln in [f"v_lshlrev_b32 v{a}, 16, v{x}", f"v_and_b32 v{b}, s41, v{x}",
                       f"v_fmac_f32 v{vSq}, v{a}, v{a}", f"v_fmac_f32 v{vSq2}, v{b}, v{b}",
                       f"v_add_f32 v{vSum}, v{vSum}, v{a}", f"v_add_f32 v{vSum2}, v{vSum2}, v{b}"]:
                k.e(ln)
    k.label("sloop")
    k.e(f"v_add_u32 v{vt0}, s39, v{vX}")
    k.e("s_cmp_lt_u32 s40, 2")
    k.e("s_cselect_b32 s38, 0x2000, s37")
    k.bar()
    for n in range(4):
        k.e(f"ds_read_b128 {vr(XS[n],4)}, v{vt0} offset:{n*4096}")
    for x in ["s_add_u32 s39, s39, s38", f"s_cmp_eq_u32 s39, {6*8192}", "s_cselect_b32 s39, 0, s39",
              "s_add_u32 s40, s40, 1", "s_cmp_lt_u32 s40, 3"]: k.e(x)
    for n in range(4):
        k.e(f"s_waitcnt lgkmcnt({3-n})")
        proc(XS[n])
        if n == 1:
            k.e(f"s_cbranch_scc1 {k.L('sloop')}")
            k.e("s_cmp_lt_u32 s40, 9")
    k.e(f"s_cbranch_scc1 {k.L('sloop')}")
    k.e(f"v_add_f32 v{vSum}, v{vSum}, v{vSum2}")
    k.e(f"v_add_f32 v{vSq}, v{vSq}, v{vSq2}")
    k.e("s_nop 1")
    k.e(f"v_permlane32_swap_b32 v{vSum}, v{vSq}")
    k.e(f"v_add_f32 v{vSum}, v{vSum}, v{vSq}")
    k.e(f"v_mov_b32 v{vSq}, v{vSum}")
    k.e("s_nop 1")
    k.e(f"v_permlane32_swap_b32 v{vSum}, v{vSq}")
    ln_finish(k, vSum, vSq, C, RS, t2)
    A_ = -2.0 * 1.4426950408889634 * 0.7978845608028654
    k.e(f"v_mul_f32 v{C+3}, v{t2}, v{t2}")
    k.e(f"v_mul_f32 v{C+1}, {f32(A_)}, v{RS}")
    k.e(f"v_mul_f32 v{C+2}, v{RS}, v{RS}")
    k.e(f"v_mul_f32 v{C+2}, v{C+2}, v{C+1}")
    k.e(f"v_mul_f32 v{C+2}, {f32(0.044715)}, v{C+2}")
    k.e(f"ds_write_b128 v{vC}, {vr(C,4)}")
    k.e("s_waitcnt lgkmcnt(0)")
    k.label("empty")
    k.bar()
    poll0(k, 3, "act", vt0, vP, 50, mask="0x3fffffff")
    k.e(f"s_branch {k.name}_fin")

def g64_main(k, A, W, vA, vW, sets, acc, nst):
    def mf(s):
        S = sets[s & 1]
        return [mfma32(acc, S['W'][j], S['A'][j], "0" if (s == 0 and j == 0) else None) for j in range(4)]
    def reads(s):
        S = sets[s & 1]
        ao = A[s % len(A)]; w = W[s % len(W)]
        rd = []
        for j in range(4):
            rd.append(f"ds_read_b128 {vr(S['A'][j],4)}, v{vA[ao >> 16]} offset:{(ao & 65535) + j*2048}")
            rd.append(f"ds_read_b128 {vr(S['W'][j],4)}, v{vW[w >> 16]} offset:{(w & 65535) + j*2048}")
        return rd
    k.bar(2)
    for x in reads(0): k.e(x)
    for s in range(1, nst):
        k.bar()
        rd = reads(s); m = mf(s - 1)
        k.e(rd[0]); k.e(rd[1])
        k.e("s_waitcnt lgkmcnt(2)")
        for j in range(4):
            k.e(m[j])
            for x in rd[2+2*j:4+2*j]: k.e(x)
    return mf(nst - 1)

def add_resid(k, R, acc, T, out):
    for i in range(8):
        k.e(f"v_cvt_pk_bf16_f32 v{out+i}, v{acc+2*i}, v{acc+2*i+1}")
    for i in range(8):
        k.e(f"v_lshlrev_b32 v{acc+2*i}, 16, v{out+i}")
        k.e(f"v_and_b32 v{acc+2*i+1}, s41, v{out+i}")
    for i in range(0, 16, 2):
        k.e(f"v_pk_add_f32 {vr(acc+i,2)}, {vr(acc+i,2)}, {vr(T+i,2)}")
    for i in range(8):
        k.e(f"v_cvt_pk_bf16_f32 v{out+i}, v{acc+2*i}, v{acc+2*i+1}")

def role_C(k):
    k.phase("rc")
    k.nv = 6
    vMB = k.v(); vO = k.v()
    R = k.v(8)
    base = k.nv
    vA = [k.v() for _ in range(3)]; vW = [k.v() for _ in range(3)]
    vRa = k.v(4)
    acc = k.v(16); T = k.v(16)
    sets = [dict(A=[k.v(4) for _ in range(4)], W=[k.v(4) for _ in range(4)]) for _ in range(2)]
    def g64_addr():
        k.e("s_lshl_b32 s27, s33, 10")
        k.e(f"v_add_u32 v{vA[0]}, s27, v{vL16}")
        k.e("s_lshl_b32 s27, s34, 10")
        k.e(f"v_add_u32 v{vW[0]}, s27, v{vL16}")
        for i in (1, 2):
            k.e(f"v_add_u32 v{vA[i]}, {hex(i*65536)}, v{vA[0]}")
            k.e(f"v_add_u32 v{vW[i]}, {hex(i*65536)}, v{vW[0]}")
    def unpack():
        for i in range(8):
            k.e(f"v_lshlrev_b32 v{T+2*i}, 16, v{R+i}")
            k.e(f"v_and_b32 v{T+2*i+1}, s41, v{R+i}")
    tile_map_row(k)
    grp_regs(k)
    k.e("s_and_b32 s33, s24, 1")
    k.e("s_bfe_u32 s34, s24, 0x10001")
    k.e("s_and_b32 s46, s24, 3")
    k.e("s_mov_b32 s41, 0xffff0000")
    g64_addr()
    k.e(f"v_and_b32 v{vt0}, 31, v0")
    k.e(f"v_lshrrev_b32 v{vt1}, 5, v0")
    k.e("s_lshr_b32 s35, s25, 1")
    k.e("s_lshl_b32 s35, s35, 5")
    k.e("s_lshl_b32 s30, s26, 2")
    k.e("s_add_u32 s35, s35, s30")
    k.e("s_lshl_b32 s30, s34, 1")
    k.e("s_add_u32 s35, s35, s30")
    k.e("s_lshl_b32 s35, s35, 2")
    k.e("s_and_b32 s30, s25, 1")
    k.e("s_lshl_b32 s30, s30, 1")
    k.e("s_add_u32 s35, s35, s30")
    k.e("s_add_u32 s35, s35, s33")
    k.e("s_lshl_b32 s35, s35, 10")
    k.e(f"s_add_u32 s35, s35, {hex(WS_H)}")
    k.e("s_add_u32 s36, s35, 4096")
    k.e(f"v_and_b32 v{vP}, 7, v0")
    k.e("s_lshl_b32 s27, s34, 2")
    k.e(f"v_xor_b32 v{vRa}, s27, v{vP}")
    k.e(f"v_lshlrev_b32 v{vRa}, 4, v{vRa}")
    k.e(f"v_lshl_add_u32 v{vRa}, v{vt0}, 7, v{vRa}")
    k.e(f"v_lshl_add_u32 v{vRa}, v{vt1}, 3, v{vRa}")
    k.e("s_lshl_b32 s27, s33, 12")
    k.e(f"s_add_u32 s27, s27, {P3_RES}")
    k.e(f"v_add_u32 v{vRa}, s27, v{vRa}")
    for j in range(1, 4):
        k.e(f"v_xor_b32 v{vRa+j}, {j*16}, v{vRa}")
    k.e(f"v_lshlrev_b32 v{vO}, 10, v{vt0}")
    k.e(f"v_lshl_add_u32 v{vO}, v{vt1}, 4, v{vO}")
    k.e("s_lshl_b32 s29, s25, 16")
    k.e("s_lshl_b32 s30, s33, 15")
    k.e("s_add_u32 s29, s29, s30")
    k.e("s_lshl_b32 s30, s26, 7")
    k.e("s_add_u32 s29, s29, s30")
    k.e("s_lshl_b32 s30, s34, 6")
    k.e("s_add_u32 s29, s29, s30")
    srd(k, 12, S_OUT, 2048 * 1024)
    k.e(f"v_bfe_u32 v{vMB}, v0, 3, 1")
    k.e(f"v_lshlrev_b32 v{vMB}, 9, v{vMB}")
    k.e(f"v_lshl_add_u32 v{vMB}, v{vP}, 14, v{vMB}")
    k.e("s_lshr_b32 s27, s25, 3")
    k.e("s_lshl_b32 s27, s27, 10")
    k.e("s_bfe_u32 s28, s25, 0x20001")
    k.e("s_lshl_b32 s28, s28, 12")
    k.e("s_add_u32 s27, s27, s28")
    k.e("s_and_b32 s28, s25, 1")
    k.e("s_lshl_b32 s28, s28, 8")
    k.e("s_add_u32 s27, s27, s28")
    k.e("s_lshl_b32 s28, s26, 5")
    k.e("s_add_u32 s27, s27, s28")
    k.e("s_lshl_b32 s28, s46, 3")
    k.e("s_add_u32 s27, s27, s28")
    k.e(f"v_add_u32 v{vMB}, s27, v{vMB}")
    m = g64_main(k, P3_A, P3_W, vA, vW, sets, acc, 8)
    k.stamp(32)
    for j in range(4):
        k.e(f"ds_read_b64 {vr(R+2*j,2)}, v{vRa+j}")
    for j in range(4):
        k.e(f"s_waitcnt lgkmcnt({10-2*j})")
        k.e(m[j])
    k.e("s_waitcnt lgkmcnt(0)")
    k.bar()
    unpack()
    add_resid(k, R, acc, T, R)
    k.e(f"buffer_store_dwordx4 {vr(R,4)}, v{vL16}, s[20:23], s35 offen sc1")
    k.e(f"buffer_store_dwordx4 {vr(R+4,4)}, v{vL16}, s[20:23], s36 offen sc1")
    k.stamp(33)
    publish(k, 2, vMB, 15, vP)
    k.stamp(34)
    k.bar()
    k.e("s_cmp_ge_u32 s47, 15")
    k.e(f"s_cbranch_scc1 {k.L('g4')}")
    g64_top = k.nv
    k.nv = base
    vX = k.v(); vW4 = [k.v(), k.v()]
    ac4 = [[k.v(16) for _ in range(3)] for _ in range(2)]
    st4 = [dict(X=[k.v(4) for _ in range(2)], W=[k.v(4) for _ in range(3)]) for _ in range(2)]
    CC = [k.v(4), k.v(4)]
    S0 = st4[0]['X'][0]
    BP = [S0, S0 + 4]; AP = [S0 + 8, S0 + 12, S0 + 16]
    T4 = st4[1]['X'][0]
    k.e("s_and_b32 s37, s2, 6")
    k.e("s_lshl_b32 s37, s37, 1")
    k.e("s_bfe_u32 s27, s2, 0x20003")
    k.e("s_add_u32 s37, s37, s27")
    k.e("s_lshl_b32 s27, s33, 11")
    k.e(f"v_add_u32 v{vX}, s27, v{vL16}")
    k.e("s_mul_i32 s27, s34, 3072")
    k.e(f"s_add_u32 s27, s27, {P4_W[0]}")
    k.e(f"v_add_u32 v{vW4[0]}, s27, v{vL16}")
    k.e(f"v_subrev_u32 v{vW4[1]}, {P4_W[0]-P4_W[4]}, v{vW4[0]}")
    k.e("s_mul_i32 s42, s47, 6")
    k.e("s_mul_i32 s43, s34, 3")
    k.e("s_add_u32 s42, s42, s43")
    k.e("s_lshl_b32 s27, s37, 1")
    k.e("s_add_u32 s27, s27, s33")
    k.e("s_mul_i32 s45, s27, 86")
    k.e("s_add_u32 s45, s45, s42")
    k.e("s_lshl_b32 s45, s45, 11")
    k.e(f"s_add_u32 s45, s45, {hex(WS_A)}")
    k.e("s_lshl_b32 s28, s47, 1")
    k.e("s_add_u32 s28, s28, s34")
    mbox_g64(k, vMB, vt0, 27, 28)
    k.e("v_cmp_gt_u32 vcc, 32, v0")
    k.e(f"v_and_b32 v{vt0}, 0x1ff, v{vL16}")
    k.e("s_lshl_b32 s27, s33, 10")
    k.e(f"s_add_u32 s27, s27, {MISC}")
    k.e(f"v_add_u32 v{vt0}, s27, v{vt0}")
    k.e(f"v_and_b32 v{vt1}, 31, v0")
    k.e("s_mul_i32 s27, s34, 384")
    k.e(f"s_add_u32 s27, s27, {MISC2}")
    k.e(f"v_lshl_add_u32 v{vt1}, v{vt1}, 2, s27")
    def mf(ks):
        S = st4[ks & 1]
        return [mfma32(ac4[b][u], S['W'][u], S['X'][b], "0" if ks == 0 else None) for u in range(3) for b in range(2)]
    def reads(ks):
        S = st4[ks & 1]
        h, kk = ks >> 1, ks & 1
        xo = P4_X[h % 6] + kk * 4096
        sl = h % 8
        i, wo = (0, sl * 12288) if sl < 4 else (1, (sl - 4) * 12288)
        wo += kk * 6144
        return [f"ds_read_b128 {vr(S['W'][0],4)}, v{vW4[i]} offset:{wo}",
                f"ds_read_b128 {vr(S['X'][0],4)}, v{vX} offset:{xo}",
                f"ds_read_b128 {vr(S['X'][1],4)}, v{vX} offset:{xo+1024}",
                f"ds_read_b128 {vr(S['W'][1],4)}, v{vW4[i]} offset:{wo+1024}",
                f"ds_read_b128 {vr(S['W'][2],4)}, v{vW4[i]} offset:{wo+2048}"]
    firsts = {2 * (b + 1) for b in BARS4[:-1]}
    k.bar(2)
    for x in reads(0): k.e(x)
    k.e("s_waitcnt lgkmcnt(0)")
    for ks in range(31):
        if ks + 1 in firsts:
            k.bar()
        m = mf(ks)
        spread(k, m[:-1], reads(ks + 1), [], 2, 0)
        k.e("s_waitcnt lgkmcnt(0)")
        k.e(m[-1])
    k.stamp(42)
    m = mf(31)
    z = [r + i for r in BP + AP for i in (1, 2, 3)]
    for j in range(3):
        k.e(m[j])
        for r in z[j*5:j*5+5]:
            k.e(f"v_mov_b32 v{r}, 0")
    for u in range(3):
        k.e(f"ds_read_b32 v{AP[u]}, v{vt1} offset:{u*128}")
    k.e(m[3]); k.e(m[4])
    k.bar()
    for b in range(2):
        k.e(f"ds_read_b128 {vr(CC[b],4)}, v{vt0} offset:{b*512}")
    k.e(m[5])
    k.e("s_waitcnt lgkmcnt(0)")
    for b in range(2):
        k.e(f"v_cndmask_b32 v{BP[b]}, 0, v{CC[b]}, vcc")
    k.e("s_nop 0")
    for u in range(3):
        for b in range(2):
            k.e(mfma32(ac4[b][u], AP[u], BP[b]))
    k.e("s_nop 2")
    T_ = T4
    for u in range(3):
        k.e("s_cmp_lt_u32 s42, 86")
        k.e(f"s_cselect_b32 s28, s45, {hex(OOB)}")
        k.e("s_add_u32 s42, s42, 1")
        k.e("s_add_u32 s45, s45, 2048")
        for b in range(2):
            a = ac4[b][u]; C = CC[b]
            for i in range(0, 8, 2):
                k.e(f"v_pk_mul_f32 {vr(T_+i,2)}, {vr(a+i,2)}, {vr(a+i,2)}")
            for i in range(0, 8, 2):
                k.e(f"v_pk_fma_f32 {vr(T_+i,2)}, {vr(T_+i,2)}, {vr(C+2,2)}, {vr(C,2)} op_sel:[0,0,1] op_sel_hi:[1,0,1]")
            for i in range(0, 8, 2):
                k.e(f"v_pk_mul_f32 {vr(T_+i,2)}, {vr(T_+i,2)}, {vr(a+i,2)}")
            for i in range(8):
                k.e(f"v_exp_f32 v{T_+i}, v{T_+i}")
            for i in range(0, 8, 2):
                k.e(f"v_pk_mul_f32 {vr(a+i,2)}, {vr(a+i,2)}, {vr(a+8+i,2)}")
            for i in range(0, 8, 2):
                k.e(f"v_pk_fma_f32 {vr(T_+i,2)}, {vr(T_+i,2)}, {vr(C+2,2)}, {vr(C+2,2)} op_sel:[0,1,1]")
            for i in range(8):
                k.e(f"v_rcp_f32 v{T_+i}, v{T_+i}")
            for i in range(0, 8, 2):
                k.e(f"v_pk_mul_f32 {vr(a+i,2)}, {vr(a+i,2)}, {vr(T_+i,2)}")
            for i in range(4):
                k.e(f"v_cvt_pk_bf16_f32 v{a+i}, v{a+2*i}, v{a+2*i+1}")
            k.e(f"buffer_store_dwordx4 {vr(a,4)}, v{vL16}, s[20:23], s28 offen offset:{b*1024} sc1")
    k.stamp(43)
    publish(k, 3, vMB, 8, vP)
    k.stamp(44)
    k.label("g4")
    k.bar()
    g64_addr()
    unpack()
    m = g64_main(k, P5_A, P5_W, vA, vW, sets, acc, 22)
    k.stamp(52)
    for j in range(4):
        k.e(f"s_waitcnt lgkmcnt({6-2*j})")
        k.e(m[j])
    k.e("s_nop 7")
    k.e("s_nop 3")
    add_resid(k, R, acc, T, R)
    k.e(f"v_permlane32_swap_b32 v{R}, v{R+2}")
    k.e(f"v_permlane32_swap_b32 v{R+1}, v{R+3}")
    k.e(f"buffer_store_dwordx4 {vr(R,4)}, v{vO}, s[12:15], s29 offen")
    k.e(f"v_permlane32_swap_b32 v{R+4}, v{R+6}")
    k.e(f"v_permlane32_swap_b32 v{R+5}, v{R+7}")
    k.e(f"buffer_store_dwordx4 {vr(R+4,4)}, v{vO}, s[12:15], s29 offen offset:32")
```

```python
from base import *
from p1 import phase1
from p2 import phase2
from tail import *
from streams import Ctx

DIAG = os.environ.get("DIAG", "")
def gen_diag():
    k = K("k6_diag_kernel")
    k.maxv = 16
    e = k.e
    e("s_cmp_ge_u32 s2, 1"); e("s_cbranch_scc1 k6_end")
    e("s_load_dwordx4 s[4:7], s[0:1], 64")
    e("v_lshlrev_b32 v1, 2, v0")
    e("s_waitcnt lgkmcnt(0)")
    e(f"s_add_u32 s12, s6, {hex(WS_DBG)}"); e("s_addc_u32 s13, s7, 0"); e("s_mov_b32 s14, 0x100000"); e("s_mov_b32 s15, 0x00020000")
    e("s_mov_b64 s[16:17], s[4:5]"); e("s_mov_b32 s18, 256"); e("s_mov_b32 s19, 0x00020000")
    e("v_mov_b32 v2, 0"); e("v_mov_b32 v3, 0"); e("v_mov_b32 v4, -1"); e("v_mov_b32 v8, 0"); e("v_mov_b32 v9, 0")
    e("s_mov_b32 s20, 0")
    k.lines.append("k6_l:")
    e("buffer_load_dword v5, v1, s[12:15], s20 offen")
    e("buffer_load_dword v6, v1, s[12:15], s20 offen offset:1024")
    e("s_add_u32 s20, s20, 4096")
    e("s_waitcnt vmcnt(0)")
    e("v_max_u32 v2, v2, v5"); e("v_max_u32 v3, v3, v6"); e("v_min_u32 v4, v4, v5")
    e("v_and_b32 v5, 0xffffff, v5"); e("v_and_b32 v6, 0xffffff, v6")
    e("v_add_u32 v8, v8, v5"); e("v_add_u32 v9, v9, v6")
    e("s_cmp_lt_u32 s20, 0xe0000"); e("s_cbranch_scc1 k6_l")
    e("v_readlane_b32 s21, v4, 0")
    e("v_mov_b32 v7, 0")
    e("s_and_b32 s23, s21, 0xffffff")
    e("s_mul_i32 s23, s23, 224")
    sel = [(0,1),(1,1),(1,2),(1,3),(0,21),(1,22),(1,23),(1,24),(0,31),(1,33),(0,41),(1,42),(1,43),(0,51),(1,52),(1,62)]
    for n, (w, i) in enumerate(sel):
        e(f"v_readlane_b32 s22, v{2+w}, {i}")
        e(f"v_readlane_b32 s24, v{8+w}, {i}")
        e("s_sub_u32 s22, s22, s21")
        e("s_sub_u32 s24, s24, s23")
        e("s_mul_i32 s24, s24, 293"); e("s_lshr_b32 s24, s24, 16")
        e("s_mul_i32 s24, s24, 10000")
        e("s_add_u32 s25, s22, s24")
        e(f"v_writelane_b32 v7, s25, {n}")
        if DIAG == f"{w}:{i}":
            e("s_mov_b32 s30, s22")
    e("s_nop 1")
    e("buffer_store_dword v7, v1, s[16:19], 0 offen")
    if DIAG == "0": e("s_mov_b32 s30, 0")
    e("s_min_u32 s30, s30, 10000"); e("s_mul_i32 s30, s30, 10")
    e("s_memrealtime s[22:23]"); e("s_waitcnt lgkmcnt(0)")
    k.lines.append("k6_spin:")
    e("s_memrealtime s[24:25]"); e("s_waitcnt lgkmcnt(0)"); e("s_sub_u32 s26, s24, s22"); e("s_cmp_lt_u32 s26, s30"); e("s_cbranch_scc1 k6_spin")
    k.lines.append("k6_end:")
    e("s_endpgm")
    return k

def build():
    ref = open(f"cdna_kernels/{NAME}.s.ref").read().splitlines()
    head = [l for l in ref if l.startswith(";") and "@launch" not in l and "Override" not in l and "grid=ceil" not in l]
    out = "\n".join(head) + "\n"
    k = K(NAME + "_kernel")
    ctx = Ctx(k)
    entry(k)
    phase1(k)
    def after_helper():
        k.e("s_cmp_ge_u32 s24, 2")
        k.e(f"s_cbranch_scc1 {k.name}_role_w")
        role_A(k, ctx)
        k.lines.append(f"{k.name}_role_w:")
        role_W(k, ctx)
        k.lines.append(f"{k.name}_role_s:")
        role_S(k)
    phase2(k, lambda f: p3_preload(k, ctx, f), after_helper)
    k.e("s_cmp_ge_u32 s24, 8")
    k.e(f"s_cbranch_scc1 {k.name}_role_s")
    role_C(k)
    finish(k, 0)
    ks = [k]
    if DIAG:
        out += f"; @launch kernel={k.name} grid=(256,1,1) block=(768,1,1) lds={k.lds}\n"
        out += "; @launch kernel=k6_diag_kernel grid=(1,1,1) block=(64,1,1) lds=0\n"
        ks.append(gen_diag())
    else:
        out += f"; @launch grid=(256,1,1) block=(768,1,1) lds={k.lds}\n"
    out += '.amdgcn_target "amdgcn-amd-amdhsa--gfx950"\n'
    for k in ks:
        out += k.text()
    return out

if __name__ == "__main__":
    out = build()
    open(sys.argv[1], "w").write(out)
    bad = hazard.check(out)
    print("hazards:", len(bad))
```
